```python
import torch

def _softmax(x, axis=-1):
    return torch.softmax(x, dim=axis)

def _gelu(x):
    return torch.nn.functional.gelu(x, approximate='tanh')

def _silu(x):
    return torch.nn.functional.silu(x)

def _sigmoid(x):
    return torch.sigmoid(x)

def _layernorm(x, axis=-1, eps=1e-05):
    m = x.mean(dim=axis, keepdim=True)
    v = x.var(dim=axis, keepdim=True, unbiased=False)
    return (x - m) / torch.sqrt(v + eps)

def _scatter_add(tgt, idx, src, axis=0):
    return tgt.clone().index_add_(axis, idx, src)

def _segment_sum(src, seg, n):
    out = torch.zeros((n,) + src.shape[1:], dtype=src.dtype)
    return out.index_add_(0, seg, src)

def _pad(x, pw):
    flat = tuple((v for pair in reversed(pw) for v in pair))
    return torch.nn.functional.pad(x, flat)
kernel_name = 'standalone__window_attn_twins__vision'

def setup_inputs():

    _w = lambda a: (lambda t: t.to(torch.bfloat16) if t.is_floating_point() else t)(torch.as_tensor(a))
    H = W = 224 // 8 * 8
    C = 96
    return {'x': _w((lambda *s: torch.randn(*s, dtype=torch.bfloat16) * 0.8)(1, H, W, C)), 'wq': _w((lambda *s: torch.randn(*s, dtype=torch.bfloat16) * 0.8)(C, C)), 'wkv': _w((lambda *s: torch.randn(*s, dtype=torch.bfloat16) * 0.8)(C, 2 * C)), 'wo': _w((lambda *s: torch.randn(*s, dtype=torch.bfloat16) * 0.05)(C, C))}

def reference(x, wq, wkv, wo):
    B, H, W, C = x.shape
    win = 8
    nh, nw = (H // win, W // win)
    xs = x.reshape(B, nh, win, nw, win, C).mean(axis=(2, 4)).reshape(B, nh * nw, C)
    q = x.reshape(B, H * W, C) @ wq
    kv = xs @ wkv
    k, v = (kv[..., :C].clone(), kv[..., C:].clone())
    scale = C ** (-0.5)
    p = _softmax(torch.einsum('bqc,bkc->bqk', q, k) * scale, axis=-1)
    o = torch.einsum('bqk,bkc->bqc', p, v) @ wo
    return o.reshape(B, H, W, C)
```

```python
import math, struct, sys

def f32bits(x):
    return struct.unpack('<I', struct.pack('<f', x))[0]

class Asm:
    def __init__(self):
        self.lines = []
    def __call__(self, s):
        for l in s.strip('\n').split('\n'):
            self.lines.append('    ' + l.strip() if not l.strip().endswith(':') else l.strip())
    def label(self, s):
        self.lines.append(s + ':')
    def raw(self, s):
        self.lines.append(s)
    def text(self):
        return '\n'.join(self.lines) + '\n'

X_BYTES = 224 * 224 * 96 * 2
KV_BYTES = 25 * 12288
CST = 96 ** -0.5 * math.log2(math.e)

WKV_LDS = 0
WO_LDS = 36864
XS_LDS = 55296
KVS_LDS = 56064
K1_LDS = 57600

def gen_prep(a):
    a.raw('.p2align 8')
    a.raw('.globl prep_kernel')
    a.raw('.type prep_kernel,@function')
    a.label('prep_kernel')
    a('''
    s_cmp_ge_u32 s2, 196
    s_cbranch_scc1 L_prep_end
    s_load_dwordx8 s[4:11], s[0:1], 0
    s_load_dwordx2 s[12:13], s[0:1], 48
    v_lshrrev_b32 v2, 6, v0
    v_and_b32 v1, 63, v0
    v_readfirstlane_b32 s14, v2
    v_lshrrev_b32 v3, 3, v0
    v_mul_u32_u24 v4, 43, v3
    v_lshrrev_b32 v4, 9, v4
    v_mul_u32_u24 v5, 12, v4
    v_sub_u32 v5, v3, v5
    v_and_b32 v6, 7, v0
    v_lshl_add_u32 v7, v4, 3, v6
    v_mul_u32_u24 v7, 192, v7
    v_lshl_add_u32 v7, v5, 4, v7
    s_mul_i32 s15, s2, 9363
    s_lshr_b32 s15, s15, 16
    s_mul_i32 s36, s15, 7
    s_sub_u32 s36, s2, s36
    s_mul_i32 s37, s15, 344064
    s_mul_i32 s36, s36, 6144
    s_add_u32 s37, s37, s36
    v_lshlrev_b32 v8, 4, v1
    s_waitcnt lgkmcnt(0)
    s_mov_b32 s16, s4
    s_mov_b32 s17, s5
    s_mov_b32 s18, %d
    s_mov_b32 s19, 0x20000
    ''' % X_BYTES)
    for r in range(8):
        a(f'buffer_load_dwordx4 v[{16+4*r}:{19+4*r}], v7, s[16:19], s37 offen')
        if r < 7:
            a('s_add_u32 s37, s37, 43008')
    a('''
    s_mov_b32 s20, s6
    s_mov_b32 s21, s7
    s_mov_b32 s22, 18432
    s_mov_b32 s23, 0x20000
    s_mov_b32 s24, s8
    s_mov_b32 s25, s9
    s_mov_b32 s26, 36864
    s_mov_b32 s27, 0x20000
    s_mov_b32 s28, s10
    s_mov_b32 s29, s11
    s_mov_b32 s30, 18432
    s_mov_b32 s31, 0x20000
    s_mov_b32 s32, s12
    s_mov_b32 s33, s13
    s_mov_b32 s34, %d
    s_mov_b32 s35, 0x20000
    s_mul_i32 s38, s14, 6144
    s_mov_b32 m0, s38
    s_mul_i32 s39, s14, 3072
    ''' % KV_BYTES)
    for p in range(4):
        a(f'buffer_load_dwordx4 v8, s[24:27], s38 offen offset:{1024*p} lds')
    a('s_add_u32 s38, s38, 4096')
    a('s_mov_b32 m0, s38')
    a('s_add_u32 s40, s39, %d' % WO_LDS)
    for p in range(2):
        a(f'buffer_load_dwordx4 v8, s[24:27], s38 offen offset:{1024*p} lds')
    a('s_mov_b32 m0, s40')
    a('''
    v_lshrrev_b32 v9, 4, v1
    v_and_b32 v10, 15, v1
    ''')
    for p in range(3):
        a(f'buffer_load_dwordx4 v8, s[28:31], s39 offen offset:{1024*p} lds')
    a('''
    v_mul_u32_u24 v11, 192, v10
    v_lshl_add_u32 v11, v9, 4, v11
    ''')
    for s in range(3):
        a(f'buffer_load_dwordx4 v[{48+4*s}:{51+4*s}], v11, s[20:23], s39 offen offset:{64*s}')
    a('''
    v_lshrrev_b32 v62, 2, v10
    v_and_b32 v63, 3, v10
    v_lshl_add_u32 v62, v9, 3, v62
    v_mul_u32_u24 v12, 384, v62
    v_lshl_add_u32 v12, v63, 3, v12
    v_lshl_add_u32 v12, v2, 6, v12
    v_mul_u32_u24 v13, 192, v62
    v_lshl_add_u32 v13, v63, 3, v13
    v_lshl_add_u32 v13, v2, 5, v13
    v_add_u32 v13, %d, v13
    v_mul_u32_u24 v14, 192, v63
    v_lshl_add_u32 v14, v9, 4, v14
    v_add_u32 v14, %d, v14
    v_mul_u32_u24 v60, 384, v63
    v_add_u32 v60, %d, v60
    v_lshl_add_u32 v15, v9, 4, v60
    v_lshl_add_u32 v60, v9, 3, v60
    v_lshl_add_u32 v60, v2, 6, v60
    v_mul_u32_u24 v61, 192, v4
    v_lshl_add_u32 v61, v5, 4, v61
    v_add_u32 v61, %d, v61
    ''' % (WO_LDS, XS_LDS, KVS_LDS, XS_LDS))
    a('''
    s_lshr_b32 s41, s2, 3
    s_mul_i32 s41, s41, 12288
    s_and_b32 s43, s2, 7
    s_lshr_b32 s44, s43, 2
    s_mul_i32 s44, s44, 3
    s_lshr_b32 s45, s14, 1
    s_add_u32 s44, s44, s45
    s_lshl_b32 s44, s44, 10
    s_add_u32 s42, s41, s44
    s_add_u32 s42, s42, 6144
    s_and_b32 s44, s2, 1
    s_lshl_b32 s44, s44, 9
    s_add_u32 s42, s42, s44
    s_and_b32 s44, s14, 1
    s_lshl_b32 s44, s44, 8
    s_add_u32 s42, s42, s44
    s_lshr_b32 s44, s2, 1
    s_and_b32 s44, s44, 1
    s_lshl_b32 s44, s44, 3
    s_add_u32 s42, s42, s44
    s_lshl_b32 s44, s14, 10
    s_add_u32 s41, s41, s44
    s_lshl_b32 s44, s43, 6
    s_add_u32 s41, s41, s44
    v_lshrrev_b32 v64, 1, v9
    v_lshl_add_u32 v64, v64, 5, v10
    v_lshlrev_b32 v64, 4, v64
    v_and_b32 v65, 1, v9
    v_lshl_add_u32 v64, v65, 3, v64
    v_lshlrev_b32 v65, 4, v10
    s_mov_b32 s46, 0xffff0000
    ''')
    nout = 12
    for r in range(8):
        a(f's_waitcnt vmcnt({nout + 7 - r})')
        for d in range(4):
            src = 16 + 4 * r + d
            if r == 0:
                a(f'v_lshlrev_b32 v{68+2*d}, 16, v{src}')
                a(f'v_and_b32 v{69+2*d}, s46, v{src}')
            else:
                a(f'v_lshlrev_b32 v{76+2*d}, 16, v{src}')
                a(f'v_and_b32 v{77+2*d}, s46, v{src}')
        if r > 0:
            for d in range(8):
                a(f'v_add_f32 v{68+d}, v{68+d}, v{76+d}')
    for ctl in ('quad_perm:[1,0,3,2]', 'quad_perm:[2,3,0,1]', 'row_half_mirror'):
        for d in range(8):
            a(f'v_add_f32_dpp v{68+d}, v{68+d}, v{68+d} {ctl} row_mask:0xf bank_mask:0xf')
    a('s_mov_b32 s47, 0x3c800000')
    for d in range(8):
        a(f'v_mul_f32 v{68+d}, s47, v{68+d}')
    for d in range(4):
        a(f'v_cvt_pk_bf16_f32 v{76+d}, v{68+2*d}, v{69+2*d}')
    a('''
    v_cmp_eq_u32 vcc, 0, v6
    s_and_saveexec_b64 s[48:49], vcc
    ds_write_b128 v61, v[76:79]
    s_mov_b64 exec, s[48:49]
    s_waitcnt vmcnt(0) lgkmcnt(0)
    s_barrier
    ''')
    for s in range(3):
        a(f'ds_read_b128 v[{80+4*s}:{83+4*s}], v14 offset:{64*s}')
    for s in range(3):
        for nt2 in range(2):
            for half in range(2):
                d = 16 + (nt2 * 3 + s) * 4 + 2 * half
                a(f'ds_read_b64_tr_b16 v[{d}:{d+1}], v12 offset:{s*12288 + half*1536 + nt2*32}')
    for s in range(3):
        for half in range(2):
            d = 92 + 4 * s + 2 * half
            a(f'ds_read_b64_tr_b16 v[{d}:{d+1}], v13 offset:{s*6144 + half*768}')
    for s in range(3):
        a(f's_waitcnt lgkmcnt({6 + 4*(2-s)})')
        for nt2 in range(2):
            d = 16 + (nt2 * 3 + s) * 4
            c = '0' if s == 0 else f'v[{104+4*nt2}:{107+4*nt2}]'
            a(f'v_mfma_f32_16x16x32_bf16 v[{104+4*nt2}:{107+4*nt2}], v[{d}:{d+3}], v[{80+4*s}:{83+4*s}], {c}')
    a('''
    v_cmp_gt_u32 vcc, 4, v10
    s_nop 7
    v_cvt_pk_bf16_f32 v112, v104, v105
    v_cvt_pk_bf16_f32 v113, v106, v107
    v_cvt_pk_bf16_f32 v114, v108, v109
    v_cvt_pk_bf16_f32 v115, v110, v111
    s_and_saveexec_b64 s[48:49], vcc
    ds_write_b64 v60, v[112:113]
    ds_write_b64 v60, v[114:115] offset:32
    s_mov_b64 exec, s[48:49]
    s_waitcnt lgkmcnt(0)
    s_barrier
    ''')
    for s in range(3):
        a(f'ds_read_b128 v[{16+4*s}:{19+4*s}], v15 offset:{64*s}')
        a(f'ds_read_b128 v[{28+4*s}:{31+4*s}], v15 offset:{192+64*s}')
    for s in range(3):
        a(f's_waitcnt lgkmcnt({2*(2-s)})')
        c = '0' if s == 0 else 'v[104:107]'
        a(f'v_mfma_f32_16x16x32_bf16 v[104:107], v[{48+4*s}:{51+4*s}], v[{16+4*s}:{19+4*s}], {c}')
        c = '0' if s == 0 else 'v[108:111]'
        a(f'v_mfma_f32_16x16x32_bf16 v[108:111], v[{28+4*s}:{31+4*s}], v[{92+4*s}:{95+4*s}], {c}')
    a('''
    s_mov_b32 s47, 0x%08x
    s_nop 7
    v_mul_f32 v104, s47, v104
    v_mul_f32 v105, s47, v105
    v_mul_f32 v106, s47, v106
    v_mul_f32 v107, s47, v107
    v_cvt_pk_bf16_f32 v112, v104, v105
    v_cvt_pk_bf16_f32 v113, v106, v107
    v_cvt_pk_bf16_f32 v114, v108, v109
    v_cvt_pk_bf16_f32 v115, v110, v111
    s_and_saveexec_b64 s[48:49], vcc
    buffer_store_dwordx2 v[112:113], v64, s[32:35], s41 offen
    s_mov_b64 exec, s[48:49]
    v_cmp_gt_u32 vcc, 16, v1
    s_and_saveexec_b64 s[48:49], vcc
    buffer_store_dwordx2 v[114:115], v65, s[32:35], s42 offen
    ''' % f32bits(CST))
    a.label('L_prep_end')
    a('s_endpgm')

def kd(name, vgpr, acc, sgpr=102):
    return f'''.amdhsa_kernel {name}
  .amdhsa_next_free_vgpr {vgpr}
  .amdhsa_next_free_sgpr {sgpr}
  .amdhsa_accum_offset {acc}
  .amdhsa_group_segment_fixed_size 0
  .amdhsa_kernarg_size 56
  .amdhsa_user_sgpr_count 2
  .amdhsa_user_sgpr_kernarg_segment_ptr 1
  .amdhsa_system_sgpr_workgroup_id_x 1
.end_amdhsa_kernel
'''

HEADER = '''; Kernarg layout for this problem (56 bytes, ptrs only, base s[0:1]):
'''

if __name__ == '__main__':
    a = Asm()
    gen_prep(a)
    out = HEADER
    out += f'; @launch kernel=prep_kernel grid=(196,1,1) block=(384,1,1) lds={K1_LDS}\n'
    out += '.amdgcn_target "amdgcn-amd-amdhsa--gfx950"\n.text\n'
    out += a.text()
    out += '.section .rodata,"a"\n.p2align 6\n'
    out += kd('prep_kernel', 120, 120)
    open(sys.argv[1] if len(sys.argv) > 1 else 'k1.s', 'w').write(out)
```

```python
import sys
from gen import *

vLB = [12, 13, 14, 15]
vDMA = 16
vL = {'own': 17, 'B0': 18, 'B1': 19, 'B2': 20}
vXO = 21
vS = [32, 48, 64, 80]
vM = {'own': 96, 'B0': 112, 'B1': 128, 'B2': 144}
rO = {'own': ('v', 160), 'B0': ('v', 208), 'B1': ('a', 0), 'B2': ('a', 48)}
aX = {'own': 96, 'B0': 120, 'B1': 144, 'B2': 168}
aK = 192
aV = 216
BUF = 49152
K2_LDS = 3 * BUF
MERGE = 12544

sW = 14
sCNT = 28
sT = 29
sG = [30, 31, 32]
sDn = 33
sDp = 34
sTE = 35
sTMP = 36
sXo = 37
sXb = [38, 39, 40]

def rng(kind, base, n):
    return f'{kind}[{base}:{base+n-1}]'

def qk_mfma(tile, sbuf, s, cinit=None):
    d = rng('v', vS[sbuf], 16)
    if s == 0:
        c = rng('v', vM[tile], 16) if cinit is None else cinit
    else:
        c = d
    return f'v_mfma_f32_32x32x16_bf16 {d}, {rng("a", aK+4*s, 4)}, {rng("a", aX[tile]+4*s, 4)}, {c}'

def pv_mfma(tile, sbuf, t, ct, cinit=None):
    k, b = rO[tile]
    d = rng(k, b + 16 * ct, 16)
    c = d if cinit is None else cinit
    return f'v_mfma_f32_32x32x16_bf16 {d}, {rng("a", aV+4*(3*t+ct), 4)}, {rng("v", vS[sbuf]+8*t, 4)}, {c}'

def softmax_ops(tile, sbuf, n=16):
    S = vS[sbuf]; L = vL[tile]
    ops = []
    def E(i): return (f'v_exp_f32 v{S+i}, v{S+i}', 2, ('E', i))
    def A(i): return (f'v_add_f32 v{L}, v{L}, v{S+i}', 1, ('A', i))
    def C(p):
        t, j = divmod(p, 4)
        return (f'v_cvt_pk_bf16_f32 v{S+8*t+j}, v{S+2*p}, v{S+2*p+1}', 1, ('C', p))
    ops += [E(0), E(1)]
    for p in range(1, n // 2):
        ops += [E(2*p), A(2*p-2), E(2*p+1), A(2*p-1), C(p-1)]
    ops += [A(n-2), A(n-1), C(n//2-1)]
    return ops

def ready(op, done_seq):
    kind, i = op[2]
    def pos(tag):
        return done_seq.index(tag) if tag in done_seq else None
    n = len(done_seq)
    if kind == 'E':
        return True
    if kind == 'A':
        p = pos(('E', i))
        return p is not None and n - p >= 2
    if kind == 'C':
        p = i
        for q in (2*p, 2*p+1):
            e = pos(('E', q))
            if e is None or n - e < 2: return False
            if pos(('A', q)) is None: return False
        t, j = divmod(p, 4)
        dst = 8*t + j
        if pos(('A', dst)) is None: return False
        if dst // 2 != p and pos(('C', dst // 2)) is None: return False
        return True
    return True

def schedule_stage(a, mfmas, shadow, mem, pre, valu, extra_valu=()):
    q = list(valu) + [(t, 1, ('X', k)) for k, t in enumerate(extra_valu)]
    seq = []
    ngap = len(mfmas)
    total = sum(o[1] for o in q)
    caps = [6 - len(mem.get(g, [])) - len(pre.get(g, [])) for g in range(ngap)]
    assert sum(caps) >= total, (sum(caps), total)
    slack = sum(caps) - total
    used_total = 0
    for g in range(ngap):
        a(mfmas[g]); seq.append(None)
        if g in shadow:
            a(shadow[g]); seq.append(None)
        for m in pre.get(g, []):
            a(m); seq.append(None)
        for m in mem.get(g, []):
            a(m); seq.append(None)
        cap = caps[g]
        remaining_caps = sum(caps[g+1:])
        while cap > 0 and q:
            remaining = sum(o[1] for o in q)
            target = total * (g + 1) / ngap
            if used_total >= target and remaining <= remaining_caps - 2 * (ngap - g - 1) // 3:
                break
            pick = None
            for k, o in enumerate(q[:6]):
                if o[1] <= cap and ready(o, seq):
                    pick = k; break
            if pick is None:
                break
            o = q.pop(pick)
            a(o[0]); seq.append(o[2]); cap -= o[1]; used_total += o[1]
    assert not q, f'leftover {len(q)}'

def kread(pos, s):
    return f'ds_read_b128 {rng("a", aK+4*s, 4)}, v{vLB[pos]} offset:{1024*s}'
def vread(pos, f):
    return f'ds_read_b128 {rng("a", aV+4*f, 4)}, v{vLB[pos]} offset:{6144+1024*f}'
def dma(q, p):
    return f'buffer_load_dwordx4 v{vDMA}, s[24:27], s{sG[q]} offen offset:{1024*p} lds'

def gen_loop(a, helper):
    nm = 'h' if helper else 'o'
    B = ['B0', 'B1', 'B2'] if helper else ['B0', 'B0', 'B0']
    units = [('own', 0), (B[0], 0), ('own', 1), (B[1], 1), ('own', 2), (B[2], 2), ('own', 3)]
    sb = [0, 1, 2, 0, 1, 2, 3]
    a.raw('.p2align 6')
    a.label(f'L_loop_{nm}')
    for u in range(7):
        nxt = (u + 1) % 7
        prv = (u - 1) % 7
        mf = [qk_mfma(units[nxt][0], sb[nxt], s) for s in range(6)]
        mf += [pv_mfma(units[prv][0], sb[prv], t, ct) for t in range(2) for ct in range(3)]
        shadow = {}; mem = {}; pre = {}; extra = []
        kload = {0: 1, 2: 2, 4: 3, 5: 0}
        vload = {2: 1, 4: 2, 6: 3, 0: 0}
        if u in kload:
            for s in range(6):
                mem.setdefault(s, []).append(kread(kload[u], s))
        if u in vload:
            for f in range(6):
                mem.setdefault(6 + f, []).append(vread(vload[u], f))
        if prv in vload or (u - 1) % 7 in vload:
            n = 5 if u in kload else 0
            shadow[5] = f's_waitcnt lgkmcnt({n})'
        if u in kload:
            n = 5 if u in vload else 0
            shadow[11] = f's_waitcnt lgkmcnt({n})'
        if u == 1:
            shadow[0] = 's_waitcnt vmcnt(0)'
            pre[0] = ['s_barrier']
            shadow[1] = f's_mov_b32 m0, s{sTE}'
            for i, g in enumerate((2, 3, 4, 6)):
                mem.setdefault(g, []).append(dma(0, i))
            shadow[7] = f's_add_u32 m0, s{sTE}, 4096'
            for i, g in enumerate((8, 10)):
                mem.setdefault(g, []).append(dma(1, i))
        if u == 3:
            for i, g in enumerate((0, 1)):
                mem.setdefault(g, []).append(dma(1, 2 + i))
            shadow[2] = f's_add_u32 m0, s{sTE}, 8192'
            for i, g in enumerate((3, 4, 6, 7)):
                mem.setdefault(g, []).append(dma(2, i))
            extra += [f'v_add_u32 v{vLB[0]}, s{sDn}, v{vLB[0]}',
                      f'v_add_u32 v{vLB[3]}, s{sDp}, v{vLB[3]}',
                      f'v_add_u32 v{vLB[1]}, s{sDn}, v{vLB[1]}']
            shadow[8] = f's_add_u32 s{sG[0]}, s{sG[0]}, {BUF}'
            shadow[9] = f's_add_u32 s{sG[1]}, s{sG[1]}, {BUF}'
            shadow[10] = f's_add_u32 s{sG[2]}, s{sG[2]}, {BUF}'
            shadow[11] = f's_add_u32 s{sT}, s{sT}, s{sDp}'
        if u == 5:
            extra += [f'v_add_u32 v{vLB[2]}, s{sDn}, v{vLB[2]}']
        if u == 6:
            shadow[0] = f's_add_u32 s{sTMP}, s{sDn}, s{sDp}'
            shadow[1] = f's_mov_b32 s{sDp}, s{sDn}'
            shadow[2] = f's_sub_u32 s{sDn}, 0, s{sTMP}'
            shadow[3] = f's_add_u32 s{sCNT}, s{sCNT}, 1'
            shadow[4] = f's_cmp_lt_u32 s{sCNT}, 4'
            shadow[6] = f's_cselect_b32 s{sTE}, s{sT}, 0x30000'
            shadow[7] = f's_cmp_lt_u32 s{sCNT}, 6'
            assert 5 not in shadow
        schedule_stage(a, mf, shadow, mem, pre, softmax_ops(units[u][0], sb[u]), extra)
    a(f's_cbranch_scc1 L_loop_{nm}')

def rowmax16(a, sbuf, tile, t0, t1):
    S = vS[sbuf]
    a(f'v_max3_f32 v{t0}, v{S}, v{S+1}, v{S+2}')
    a(f'v_max3_f32 v{t1}, v{S+3}, v{S+4}, v{S+5}')
    a(f'v_max3_f32 v{t0}, v{t0}, v{S+6}, v{S+7}')
    a(f'v_max_f32 v{t0}, v{t0}, v{t1}')
    a(f'v_mov_b32 v{t1}, v{t0}')
    a('s_nop 1')
    a(f'v_permlane32_swap_b32 v{t0}, v{t1}')
    a('s_nop 0')
    a(f'v_max_f32 v{t0}, v{t0}, v{t1}')
    a(f'v_sub_f32 v{vM[tile]}, 0, v{t0}')
    for i in range(1, 16):
        a(f'v_mov_b32 v{vM[tile]+i}, v{vM[tile]}')

def half_softmax(a, sbuf, tile):
    S = vS[sbuf]; L = vL[tile]
    for i in range(8):
        a(f'v_add_f32 v{S+i}, v{S+i}, v{vM[tile]}')
    for i in range(8):
        a(f'v_exp_f32 v{S+i}, v{S+i}')
    a(f'v_add_f32 v{L}, v{S}, v{S+1}')
    for i in range(2, 8):
        a(f'v_add_f32 v{L}, v{L}, v{S+i}')
    for j in range(4):
        a(f'v_cvt_pk_bf16_f32 v{S+j}, v{S+2*j}, v{S+2*j+1}')

def tile_out(a, tile, soff):
    k, b = rO[tile]
    assert k == 'v'
    L = vL[tile]
    a(f'v_mov_b32 v2, v{L}')
    a('s_nop 1')
    a(f'v_permlane32_swap_b32 v{L}, v2')
    a('s_nop 0')
    a(f'v_add_f32 v2, v{L}, v2')
    a('v_rcp_f32 v2, v2')
    a('s_nop 0')
    a('v_mov_b32 v3, v2')
    T = vS[0]
    n = 0
    for ct in range(3):
        for aa in range(2):
            o = b + 16 * ct + 8 * aa
            t = T + 4 * n
            for j in range(4):
                a(f'v_pk_mul_f32 v[{o+2*j}:{o+2*j+1}], v[{o+2*j}:{o+2*j+1}], v[2:3]')
            for j in range(4):
                a(f'v_cvt_pk_bf16_f32 v{t+j}, v{o+2*j}, v{o+2*j+1}')
            a('s_nop 1')
            a(f'v_permlane32_swap_b32 v{t}, v{t+2}')
            a(f'v_permlane32_swap_b32 v{t+1}, v{t+3}')
            a(f'buffer_store_dwordx4 v[{t}:{t+3}], v{vXO}, s[20:23], s{soff} offen offset:{64*ct+32*aa}')
            n += 1

def gen_attn(a):
    a.raw('.p2align 8')
    a.raw('.globl attn_kernel')
    a.raw('.type attn_kernel,@function')
    a.label('attn_kernel')
    a(f'''
    s_cmp_ge_u32 s2, 224
    s_cbranch_scc1 L_attn_end
    s_load_dwordx2 s[4:5], s[0:1], 0
    s_load_dwordx2 s[6:7], s[0:1], 32
    s_load_dwordx2 s[8:9], s[0:1], 48
    v_lshrrev_b32 v2, 6, v0
    v_and_b32 v1, 63, v0
    v_readfirstlane_b32 s{sW}, v2
    v_lshlrev_b32 v{vDMA}, 4, v1
    v_and_b32 v3, 31, v1
    v_lshrrev_b32 v4, 5, v1
    v_mul_u32_u24 v{vXO}, 192, v3
    v_lshl_add_u32 v{vXO}, v4, 4, v{vXO}
    s_mul_i32 s{sTMP}, s2, 43008
    s_mul_i32 s{sXo}, s{sW}, 6144
    s_add_u32 s{sXo}, s{sXo}, s{sTMP}
    s_add_u32 s{sXb[0]}, s{sXo}, {4*6144}
    s_add_u32 s{sXb[1]}, s{sTMP}, {5*6144}
    s_add_u32 s{sXb[2]}, s{sTMP}, {6*6144}
    s_add_u32 s41, s{sTMP}, {4*6144}
    s_cmp_eq_u32 s{sW}, 3
    s_cselect_b32 s{sXb[0]}, s41, s{sXb[0]}
    s_mul_i32 s42, s{sW}, 3072
    s_add_u32 s43, s42, {2*BUF}
    s_add_u32 s42, s42, {24*12288}
    s_mul_i32 s44, s{sW}, 12288
    s_mov_b32 m0, s43
    s_waitcnt lgkmcnt(0)
    s_mov_b32 s16, s4
    s_mov_b32 s17, s5
    s_mov_b32 s18, {X_BYTES}
    s_mov_b32 s19, 0x20000
    s_mov_b32 s24, s8
    s_mov_b32 s25, s9
    s_mov_b32 s26, {KV_BYTES}
    s_mov_b32 s27, 0x20000
    ''')
    def xload(tile, soff):
        for s in range(6):
            a(f'buffer_load_dwordx4 {rng("a", aX[tile]+4*s, 4)}, v{vXO}, s[16:19], s{soff} offen offset:{32*s}')
    for p in range(3):
        a(f'buffer_load_dwordx4 v{vDMA}, s[24:27], s42 offen offset:{1024*p} lds')
    xload('own', sXo)
    xload('B0', sXb[0])
    a(f'''
    s_mov_b32 s20, s6
    s_mov_b32 s21, s7
    s_mov_b32 s22, {X_BYTES}
    s_mov_b32 s23, 0x20000
    s_cmp_lg_u32 s{sW}, 3
    s_cbranch_scc1 L_skip_xb
    ''')
    xload('B1', sXb[1])
    xload('B2', sXb[2])
    a.label('L_skip_xb')
    for g in range(2):
        for q in range(3):
            a(f's_add_u32 s45, s44, {g*BUF + q*4096}')
            a('s_mov_b32 m0, s45')
            a('s_nop 0')
            for p in range(4):
                a(f'buffer_load_dwordx4 v{vDMA}, s[24:27], s45 offen offset:{1024*p} lds')
    a(f'''
    s_mov_b32 s{sCNT}, 0
    s_add_u32 s{sT}, s44, {2*BUF}
    s_mov_b32 s{sTE}, s{sT}
    s_add_u32 s{sG[0]}, s44, {2*BUF}
    s_add_u32 s{sG[1]}, s44, {2*BUF+4096}
    s_add_u32 s{sG[2]}, s44, {2*BUF+8192}
    s_mov_b32 s{sDn}, {BUF}
    s_mov_b32 s{sDp}, {(-2*BUF) & 0xffffffff}
    ''')
    for i in range(4):
        a(f's_add_u32 s45, s{sW}, {1+i}')
        a('s_and_b32 s45, s45, 3')
        a('s_mul_i32 s45, s45, 12288')
        if i == 3:
            a(f's_add_u32 s45, s45, {2*BUF}')
        a(f'v_add_u32 v{vLB[i]}, s45, v{vDMA}')
    a(f'v_add_u32 v22, {2*BUF}, v{vDMA}')
    for i in range(48):
        a(f'v_mov_b32 v{rO["own"][1]+i}, 0')
    for i in range(12):
        a(f'v_accvgpr_write_b32 a{aV+12+i}, 0')
    a(f'''
    s_cmp_lg_u32 s{sW}, 3
    s_cbranch_scc1 L_owner
    ''')
    for i in range(48):
        a(f'v_mov_b32 v{rO["B0"][1]+i}, 0')
    for i in range(96):
        a(f'v_accvgpr_write_b32 a{i}, 0')
    for t in ('B0', 'B1', 'B2'):
        a(f'v_mov_b32 v{vL[t]}, 0')
    def half_reads():
        a('s_waitcnt vmcnt(24)')
        a('s_barrier')
        for s in range(6):
            a(f'ds_read_b128 {rng("a", aK+4*s, 4)}, v22 offset:{1024*s}')
        for f in range(3):
            a(f'ds_read_b128 {rng("a", aV+4*f, 4)}, v22 offset:{6144+1024*f}')
        a('s_waitcnt lgkmcnt(3)')
    half_reads()
    for s in range(6): a(qk_mfma('own', 3, s, '0'))
    for s in range(6): a(qk_mfma('B0', 0, s, '0'))
    for s in range(6): a(qk_mfma('B1', 1, s, '0'))
    rowmax16(a, 3, 'own', 2, 3)
    for s in range(6): a(qk_mfma('B2', 2, s, '0'))
    half_softmax(a, 3, 'own')
    for i in range(4): a(f'v_mov_b32 v{vS[3]+8+i}, 0')
    rowmax16(a, 0, 'B0', 2, 3)
    rowmax16(a, 1, 'B1', 2, 3)
    rowmax16(a, 2, 'B2', 2, 3)
    def first_qk():
        a('s_waitcnt vmcnt(12)')
        a('s_barrier')
        for s in range(6):
            a(kread(0, s))
        a('s_waitcnt lgkmcnt(0)')
        for s in range(6): a(qk_mfma('own', 0, s))
        a('s_nop 11')
    first_qk()
    gen_loop(a, True)
    a('s_waitcnt lgkmcnt(0)')
    for t in range(2):
        for ct in range(3):
            a(pv_mfma('own', 3, t, ct))
    for e, t in enumerate(('B0', 'B1', 'B2')):
        k, b = rO[t]
        for j in range(12):
            a(f'ds_write_b128 v{vDMA}, {rng(k, b+4*j, 4)} offset:{e*MERGE + 1024*j}')
    a('v_lshlrev_b32 v2, 2, v1')
    for e, t in enumerate(('B0', 'B1', 'B2')):
        a(f'ds_write_b32 v2, v{vL[t]} offset:{e*MERGE + 12288}')
    a('s_waitcnt lgkmcnt(0)')
    a('s_barrier')
    tile_out(a, 'own', sXo)
    a('s_endpgm')
    a.label('L_owner')
    half_reads()
    for s in range(6): a(qk_mfma('own', 3, s, '0'))
    for s in range(6): a(qk_mfma('B0', 1, s, '0'))
    a('s_nop 7')
    rowmax16(a, 3, 'own', 2, 3)
    half_softmax(a, 3, 'own')
    for i in range(4): a(f'v_mov_b32 v{vS[3]+8+i}, 0')
    rowmax16(a, 1, 'B0', 2, 3)
    half_softmax(a, 1, 'B0')
    a('s_waitcnt lgkmcnt(0)')
    a('s_nop 1')
    for ct in range(3):
        a(pv_mfma('B0', 1, 0, ct, '0'))
    first_qk()
    gen_loop(a, False)
    a('s_waitcnt lgkmcnt(0)')
    for t in range(2):
        for ct in range(3):
            a(pv_mfma('own', 3, t, ct))
    a(f's_mul_i32 s45, s{sW}, {MERGE}')
    a(f'v_add_u32 v6, s45, v{vDMA}')
    a('v_lshlrev_b32 v7, 2, v1')
    a('v_add_u32 v7, s45, v7')
    a('s_nop 15')
    tile_out(a, 'own', sXo)
    a('s_barrier')
    T = vM['own']
    for j in range(12):
        a(f'ds_read_b128 {rng("v", T+4*j, 4)}, v6 offset:{1024*j}')
    a('ds_read_b32 v8, v7 offset:12288')
    b = rO['B0'][1]
    for j in range(12):
        a(f's_waitcnt lgkmcnt({12-j})')
        a(f'v_pk_add_f32 v[{b+4*j}:{b+4*j+1}], v[{b+4*j}:{b+4*j+1}], v[{T+4*j}:{T+4*j+1}]')
        a(f'v_pk_add_f32 v[{b+4*j+2}:{b+4*j+3}], v[{b+4*j+2}:{b+4*j+3}], v[{T+4*j+2}:{T+4*j+3}]')
    a('s_waitcnt lgkmcnt(0)')
    a(f'v_add_f32 v{vL["B0"]}, v{vL["B0"]}, v8')
    tile_out(a, 'B0', sXb[0])
    a.label('L_attn_end')
    a('s_endpgm')

def build(path):
    a = Asm()
    gen_prep(a)
    gen_attn(a)
    out = HEADER
    out += f'; @launch kernel=prep_kernel grid=(196,1,1) block=(384,1,1) lds={K1_LDS}\n'
    out += f'; @launch kernel=attn_kernel grid=(224,1,1) block=(256,1,1) lds={K2_LDS}\n'
    out += '.amdgcn_target "amdgcn-amd-amdhsa--gfx950"\n.text\n'
    out += a.text()
    out += '.section .rodata,"a"\n.p2align 6\n'
    out += kd('prep_kernel', 120, 120)
    out += '.p2align 6\n'
    out += kd('attn_kernel', 512, 256)
    open(path, 'w').write(out)

if __name__ == '__main__':
    build(sys.argv[1] if len(sys.argv) > 1 else 'k2.s')
```

```python
import math, struct, sys

def f32bits(x):
    return struct.unpack('<I', struct.pack('<f', x))[0]

class Asm:
    def __init__(self):
        self.lines = []
    def __call__(self, s):
        for l in s.strip('\n').split('\n'):
            self.lines.append('    ' + l.strip() if not l.strip().endswith(':') else l.strip())
    def label(self, s):
        self.lines.append(s + ':')
    def raw(self, s):
        self.lines.append(s)
    def text(self):
        return '\n'.join(self.lines) + '\n'

X_BYTES = 224 * 224 * 96 * 2
KV_BYTES = 25 * 12288
CST = 96 ** -0.5 * math.log2(math.e)

WKV_LDS = 0
WO_LDS = 36864
XS_LDS = 55296
KVS_LDS = 56064
K1_LDS = 57600

PSTAMPS = [False]
def pst(a, idx, rt=False):
    if not PSTAMPS[0]: return
    a(f's_mem{"real" if rt else ""}time s[{60+2*idx}:{61+2*idx}]')
def pst_store(a, n):
    if not PSTAMPS[0]: return
    a('s_mov_b64 exec, -1')
    a('s_waitcnt vmcnt(0) lgkmcnt(0)')
    a(f's_memtime s[{60+2*(n-2)}:{61+2*(n-2)}]')
    a(f's_memrealtime s[{60+2*(n-1)}:{61+2*(n-1)}]')
    a('s_waitcnt lgkmcnt(0)')
    a('s_mov_b32 s52, s12')
    a('s_mov_b32 s53, s13')
    a('s_mov_b32 s54, 0x1000000')
    a('s_mov_b32 s55, 0x20000')
    a('s_mul_i32 s56, s2, 6')
    a('s_add_u32 s56, s56, s14')
    a('s_lshl_b32 s56, s56, 6')
    a('s_add_u32 s56, s56, 0x200000')
    a('v_mov_b32 v2, 0')
    for i in range(n):
        a(f'v_mov_b32 v3, s{60+2*i}')
        a(f'buffer_store_dword v3, v2, s[52:55], s56 offen offset:{4*i}')

def gen_prep(a):
    a.raw('.p2align 8')
    a.raw('.globl prep_kernel')
    a.raw('.type prep_kernel,@function')
    a.label('prep_kernel')
    a('''
    s_cmp_ge_u32 s2, 196
    s_cbranch_scc1 L_prep_end
    ''')
    pst(a, 0, True)
    pst(a, 1)
    a('''
    s_load_dwordx8 s[4:11], s[0:1], 0
    s_load_dwordx2 s[12:13], s[0:1], 48
    v_lshrrev_b32 v2, 6, v0
    v_and_b32 v1, 63, v0
    v_readfirstlane_b32 s14, v2
    v_lshrrev_b32 v3, 3, v0
    v_mul_u32_u24 v4, 43, v3
    v_lshrrev_b32 v4, 9, v4
    v_mul_u32_u24 v5, 12, v4
    v_sub_u32 v5, v3, v5
    v_and_b32 v6, 7, v0
    v_lshl_add_u32 v7, v4, 3, v6
    v_mul_u32_u24 v7, 192, v7
    v_lshl_add_u32 v7, v5, 4, v7
    s_mul_i32 s15, s2, 9363
    s_lshr_b32 s15, s15, 16
    s_mul_i32 s36, s15, 7
    s_sub_u32 s36, s2, s36
    s_mul_i32 s37, s15, 344064
    s_mul_i32 s36, s36, 6144
    s_add_u32 s37, s37, s36
    v_lshlrev_b32 v8, 4, v1
    s_waitcnt lgkmcnt(0)
    s_mov_b32 s16, s4
    s_mov_b32 s17, s5
    s_mov_b32 s18, %d
    s_mov_b32 s19, 0x20000
    ''' % X_BYTES)
    pst(a, 2)
    for r in range(8):
        a(f'buffer_load_dwordx4 v[{16+4*r}:{19+4*r}], v7, s[16:19], s37 offen')
        if r < 7:
            a('s_add_u32 s37, s37, 43008')
    a('''
    s_mov_b32 s20, s6
    s_mov_b32 s21, s7
    s_mov_b32 s22, 18432
    s_mov_b32 s23, 0x20000
    s_mov_b32 s24, s8
    s_mov_b32 s25, s9
    s_mov_b32 s26, 36864
    s_mov_b32 s27, 0x20000
    s_mov_b32 s28, s10
    s_mov_b32 s29, s11
    s_mov_b32 s30, 18432
    s_mov_b32 s31, 0x20000
    s_mov_b32 s32, s12
    s_mov_b32 s33, s13
    s_mov_b32 s34, %d
    s_mov_b32 s35, 0x20000
    s_mul_i32 s38, s14, 6144
    s_mov_b32 m0, s38
    s_mul_i32 s39, s14, 3072
    ''' % KV_BYTES)
    for p in range(4):
        a(f'buffer_load_dwordx4 v8, s[24:27], s38 offen offset:{1024*p} lds')
    a('s_add_u32 s38, s38, 4096')
    a('s_mov_b32 m0, s38')
    a('s_add_u32 s40, s39, %d' % WO_LDS)
    for p in range(2):
        a(f'buffer_load_dwordx4 v8, s[24:27], s38 offen offset:{1024*p} lds')
    a('s_mov_b32 m0, s40')
    a('''
    v_lshrrev_b32 v9, 4, v1
    v_and_b32 v10, 15, v1
    ''')
    for p in range(3):
        a(f'buffer_load_dwordx4 v8, s[28:31], s39 offen offset:{1024*p} lds')
    a('''
    v_mul_u32_u24 v11, 192, v10
    v_lshl_add_u32 v11, v9, 4, v11
    ''')
    for s in range(3):
        a(f'buffer_load_dwordx4 v[{48+4*s}:{51+4*s}], v11, s[20:23], s39 offen offset:{64*s}')
    a('''
    v_lshrrev_b32 v62, 2, v10
    v_and_b32 v63, 3, v10
    v_lshl_add_u32 v62, v9, 3, v62
    v_mul_u32_u24 v12, 384, v62
    v_lshl_add_u32 v12, v63, 3, v12
    v_lshl_add_u32 v12, v2, 6, v12
    v_mul_u32_u24 v13, 192, v62
    v_lshl_add_u32 v13, v63, 3, v13
    v_lshl_add_u32 v13, v2, 5, v13
    v_add_u32 v13, %d, v13
    v_mul_u32_u24 v14, 192, v63
    v_lshl_add_u32 v14, v9, 4, v14
    v_add_u32 v14, %d, v14
    v_mul_u32_u24 v60, 384, v63
    v_add_u32 v60, %d, v60
    v_lshl_add_u32 v15, v9, 4, v60
    v_lshl_add_u32 v60, v9, 3, v60
    v_lshl_add_u32 v60, v2, 6, v60
    v_mul_u32_u24 v61, 192, v4
    v_lshl_add_u32 v61, v5, 4, v61
    v_add_u32 v61, %d, v61
    ''' % (WO_LDS, XS_LDS, KVS_LDS, XS_LDS))
    a('''
    s_lshr_b32 s41, s2, 3
    s_mul_i32 s41, s41, 12288
    s_and_b32 s43, s2, 7
    s_lshr_b32 s44, s43, 2
    s_mul_i32 s44, s44, 3
    s_lshr_b32 s45, s14, 1
    s_add_u32 s44, s44, s45
    s_lshl_b32 s44, s44, 10
    s_add_u32 s42, s41, s44
    s_add_u32 s42, s42, 6144
    s_and_b32 s44, s2, 1
    s_lshl_b32 s44, s44, 9
    s_add_u32 s42, s42, s44
    s_and_b32 s44, s14, 1
    s_lshl_b32 s44, s44, 8
    s_add_u32 s42, s42, s44
    s_lshr_b32 s44, s2, 1
    s_and_b32 s44, s44, 1
    s_lshl_b32 s44, s44, 3
    s_add_u32 s42, s42, s44
    s_lshl_b32 s44, s14, 10
    s_add_u32 s41, s41, s44
    s_lshl_b32 s44, s43, 6
    s_add_u32 s41, s41, s44
    v_lshrrev_b32 v64, 1, v9
    v_lshl_add_u32 v64, v64, 5, v10
    v_lshlrev_b32 v64, 4, v64
    v_and_b32 v65, 1, v9
    v_lshl_add_u32 v64, v65, 3, v64
    v_lshlrev_b32 v65, 4, v10
    s_mov_b32 s46, 0xffff0000
    ''')
    pst(a, 3)
    nout = 12
    for r in range(8):
        a(f's_waitcnt vmcnt({nout + 7 - r})')
        if r == 0: pst(a, 4)
        if r == 7: pst(a, 5)
        for d in range(4):
            src = 16 + 4 * r + d
            if r == 0:
                a(f'v_lshlrev_b32 v{68+2*d}, 16, v{src}')
                a(f'v_and_b32 v{69+2*d}, s46, v{src}')
            else:
                a(f'v_lshlrev_b32 v{76+2*d}, 16, v{src}')
                a(f'v_and_b32 v{77+2*d}, s46, v{src}')
        if r > 0:
            for d in range(8):
                a(f'v_add_f32 v{68+d}, v{68+d}, v{76+d}')
    for ctl in ('quad_perm:[1,0,3,2]', 'quad_perm:[2,3,0,1]', 'row_half_mirror'):
        for d in range(8):
            a(f'v_add_f32_dpp v{68+d}, v{68+d}, v{68+d} {ctl} row_mask:0xf bank_mask:0xf')
    a('s_mov_b32 s47, 0x3c800000')
    for d in range(8):
        a(f'v_mul_f32 v{68+d}, s47, v{68+d}')
    for d in range(4):
        a(f'v_cvt_pk_bf16_f32 v{76+d}, v{68+2*d}, v{69+2*d}')
    a('''
    v_cmp_eq_u32 vcc, 0, v6
    s_and_saveexec_b64 s[48:49], vcc
    ds_write_b128 v61, v[76:79]
    s_mov_b64 exec, s[48:49]
    s_waitcnt vmcnt(0) lgkmcnt(0)
    s_barrier
    ''')
    pst(a, 6)
    for s in range(3):
        a(f'ds_read_b128 v[{80+4*s}:{83+4*s}], v14 offset:{64*s}')
    for s in range(3):
        for nt2 in range(2):
            for half in range(2):
                d = 16 + (nt2 * 3 + s) * 4 + 2 * half
                a(f'ds_read_b64_tr_b16 v[{d}:{d+1}], v12 offset:{s*12288 + half*1536 + nt2*32}')
    for s in range(3):
        for half in range(2):
            d = 92 + 4 * s + 2 * half
            a(f'ds_read_b64_tr_b16 v[{d}:{d+1}], v13 offset:{s*6144 + half*768}')
    for s in range(3):
        a(f's_waitcnt lgkmcnt({6 + 4*(2-s)})')
        for nt2 in range(2):
            d = 16 + (nt2 * 3 + s) * 4
            c = '0' if s == 0 else f'v[{104+4*nt2}:{107+4*nt2}]'
            a(f'v_mfma_f32_16x16x32_bf16 v[{104+4*nt2}:{107+4*nt2}], v[{d}:{d+3}], v[{80+4*s}:{83+4*s}], {c}')
    a('''
    v_cmp_gt_u32 vcc, 4, v10
    s_nop 7
    v_cvt_pk_bf16_f32 v112, v104, v105
    v_cvt_pk_bf16_f32 v113, v106, v107
    v_cvt_pk_bf16_f32 v114, v108, v109
    v_cvt_pk_bf16_f32 v115, v110, v111
    s_and_saveexec_b64 s[48:49], vcc
    ds_write_b64 v60, v[112:113]
    ds_write_b64 v60, v[114:115] offset:32
    s_mov_b64 exec, s[48:49]
    s_waitcnt lgkmcnt(0)
    s_barrier
    ''')
    pst(a, 7)
    for s in range(3):
        a(f'ds_read_b128 v[{16+4*s}:{19+4*s}], v15 offset:{64*s}')
        a(f'ds_read_b128 v[{28+4*s}:{31+4*s}], v15 offset:{192+64*s}')
    for s in range(3):
        a(f's_waitcnt lgkmcnt({2*(2-s)})')
        c = '0' if s == 0 else 'v[104:107]'
        a(f'v_mfma_f32_16x16x32_bf16 v[104:107], v[{48+4*s}:{51+4*s}], v[{16+4*s}:{19+4*s}], {c}')
        c = '0' if s == 0 else 'v[108:111]'
        a(f'v_mfma_f32_16x16x32_bf16 v[108:111], v[{28+4*s}:{31+4*s}], v[{92+4*s}:{95+4*s}], {c}')
    a('''
    s_mov_b32 s47, 0x%08x
    s_nop 7
    v_mul_f32 v104, s47, v104
    v_mul_f32 v105, s47, v105
    v_mul_f32 v106, s47, v106
    v_mul_f32 v107, s47, v107
    v_cvt_pk_bf16_f32 v112, v104, v105
    v_cvt_pk_bf16_f32 v113, v106, v107
    v_cvt_pk_bf16_f32 v114, v108, v109
    v_cvt_pk_bf16_f32 v115, v110, v111
    s_and_saveexec_b64 s[48:49], vcc
    buffer_store_dwordx2 v[112:113], v64, s[32:35], s41 offen
    s_mov_b64 exec, s[48:49]
    v_cmp_gt_u32 vcc, 16, v1
    s_and_saveexec_b64 s[48:49], vcc
    buffer_store_dwordx2 v[114:115], v65, s[32:35], s42 offen
    ''' % f32bits(CST))
    pst(a, 8)
    pst_store(a, 11)
    a.label('L_prep_end')
    a('s_endpgm')

def kd(name, vgpr, acc, sgpr=102):
    return f'''.amdhsa_kernel {name}
  .amdhsa_next_free_vgpr {vgpr}
  .amdhsa_next_free_sgpr {sgpr}
  .amdhsa_accum_offset {acc}
  .amdhsa_group_segment_fixed_size 0
  .amdhsa_kernarg_size 56
  .amdhsa_user_sgpr_count 2
  .amdhsa_user_sgpr_kernarg_segment_ptr 1
  .amdhsa_system_sgpr_workgroup_id_x 1
.end_amdhsa_kernel
'''

HEADER = '''; Kernarg layout for this problem (56 bytes, ptrs only, base s[0:1]):
'''

if __name__ == '__main__':
    a = Asm()
    gen_prep(a)
    out = HEADER
    out += f'; @launch kernel=prep_kernel grid=(196,1,1) block=(384,1,1) lds={K1_LDS}\n'
    out += '.amdgcn_target "amdgcn-amd-amdhsa--gfx950"\n.text\n'
    out += a.text()
    out += '.section .rodata,"a"\n.p2align 6\n'
    out += kd('prep_kernel', 120, 120)
    open(sys.argv[1] if len(sys.argv) > 1 else 'k1.s', 'w').write(out)
```

```python
import sys
from gen import *

vLB = [12, 13, 14, 15]
vDMA = 16
vL = {'own': 17, 'B0': 18, 'B1': 19, 'B2': 20}
vXO = 21
vS = [32, 48, 64, 80]
vM = {'own': 96, 'B0': 112, 'B1': 128, 'B2': 144}
rO = {'own': ('v', 160), 'B0': ('v', 208), 'B1': ('a', 0), 'B2': ('a', 48)}
aX = {'own': 96, 'B0': 120, 'B1': 144, 'B2': 168}
aK = 192
aV = 216
BUF = 49152
K2_LDS = 3 * BUF
MERGE = 12544

sW = 14
sCNT = 28
sT = 29
sG = [30, 31, 32]
sDn = 33
sDp = 34
sTE = 35
sTMP = 36
sXo = 37
sXb = [38, 39, 40]

def rng(kind, base, n):
    return f'{kind}[{base}:{base+n-1}]'

def qk_mfma(tile, sbuf, s, cinit=None):
    d = rng('v', vS[sbuf], 16)
    if s == 0:
        c = rng('v', vM[tile], 16) if cinit is None else cinit
    else:
        c = d
    return f'v_mfma_f32_32x32x16_bf16 {d}, {rng("a", aK+4*s, 4)}, {rng("a", aX[tile]+4*s, 4)}, {c}'

def pv_mfma(tile, sbuf, t, ct, cinit=None):
    k, b = rO[tile]
    d = rng(k, b + 16 * ct, 16)
    c = d if cinit is None else cinit
    return f'v_mfma_f32_32x32x16_bf16 {d}, {rng("a", aV+4*(3*t+ct), 4)}, {rng("v", vS[sbuf]+8*t, 4)}, {c}'

def softmax_ops(tile, sbuf, n=16):
    S = vS[sbuf]; L = vL[tile]
    ops = []
    def E(i): return (f'v_exp_f32 v{S+i}, v{S+i}', 2, ('E', i))
    def A(i): return (f'v_add_f32 v{L}, v{L}, v{S+i}', 1, ('A', i))
    def C(p):
        t, j = divmod(p, 4)
        return (f'v_cvt_pk_bf16_f32 v{S+8*t+j}, v{S+2*p}, v{S+2*p+1}', 1, ('C', p))
    ops += [E(0), E(1)]
    for p in range(1, n // 2):
        ops += [E(2*p), A(2*p-2), E(2*p+1), A(2*p-1), C(p-1)]
    ops += [A(n-2), A(n-1), C(n//2-1)]
    return ops

def ready(op, done_seq):
    kind, i = op[2]
    def pos(tag):
        return done_seq.index(tag) if tag in done_seq else None
    n = len(done_seq)
    if kind == 'E':
        return True
    if kind == 'A':
        p = pos(('E', i))
        return p is not None and n - p >= 2
    if kind == 'C':
        p = i
        for q in (2*p, 2*p+1):
            e = pos(('E', q))
            if e is None or n - e < 2: return False
            if pos(('A', q)) is None: return False
        t, j = divmod(p, 4)
        dst = 8*t + j
        if pos(('A', dst)) is None: return False
        if dst // 2 != p and pos(('C', dst // 2)) is None: return False
        return True
    return True

def schedule_stage(a, mfmas, shadow, mem, pre, valu, extra_valu=()):
    q = list(valu) + [(t, 1, ('X', k)) for k, t in enumerate(extra_valu)]
    seq = []
    ngap = len(mfmas)
    total = sum(o[1] for o in q)
    caps = [6 - len(mem.get(g, [])) - len(pre.get(g, [])) for g in range(ngap)]
    assert sum(caps) >= total, (sum(caps), total)
    slack = sum(caps) - total
    used_total = 0
    for g in range(ngap):
        a(mfmas[g]); seq.append(None)
        if g in shadow:
            a(shadow[g]); seq.append(None)
        for m in pre.get(g, []):
            a(m); seq.append(None)
        for m in mem.get(g, []):
            a(m); seq.append(None)
        cap = caps[g]
        remaining_caps = sum(caps[g+1:])
        while cap > 0 and q:
            remaining = sum(o[1] for o in q)
            target = total * (g + 1) / ngap
            if used_total >= target and remaining <= remaining_caps - 2 * (ngap - g - 1) // 3:
                break
            pick = None
            for k, o in enumerate(q[:6]):
                if o[1] <= cap and ready(o, seq):
                    pick = k; break
            if pick is None:
                break
            o = q.pop(pick)
            a(o[0]); seq.append(o[2]); cap -= o[1]; used_total += o[1]
    assert not q, f'leftover {len(q)}'

def kread(pos, s):
    return f'ds_read_b128 {rng("a", aK+4*s, 4)}, v{vLB[pos]} offset:{1024*s}'
def vread(pos, f):
    return f'ds_read_b128 {rng("a", aV+4*f, 4)}, v{vLB[pos]} offset:{6144+1024*f}'
def dma(q, p):
    return f'buffer_load_dwordx4 v{vDMA}, s[24:27], s{sG[q]} offen offset:{1024*p} lds'

def gen_loop(a, helper):
    nm = 'h' if helper else 'o'
    B = ['B0', 'B1', 'B2'] if helper else ['B0', 'B0', 'B0']
    units = [('own', 0), (B[0], 0), ('own', 1), (B[1], 1), ('own', 2), (B[2], 2), ('own', 3)]
    sb = [0, 1, 2, 0, 1, 2, 3]
    a.raw('.p2align 6')
    a.label(f'L_loop_{nm}')
    for u in range(7):
        nxt = (u + 1) % 7
        prv = (u - 1) % 7
        mf = [qk_mfma(units[nxt][0], sb[nxt], s) for s in range(6)]
        mf += [pv_mfma(units[prv][0], sb[prv], t, ct) for t in range(2) for ct in range(3)]
        shadow = {}; mem = {}; pre = {}; extra = []
        kload = {0: 1, 2: 2, 4: 3, 5: 0}
        vload = {2: 1, 4: 2, 6: 3, 0: 0}
        if u in kload:
            for s in range(6):
                mem.setdefault(s, []).append(kread(kload[u], s))
        if u in vload:
            for f in range(6):
                mem.setdefault(6 + f, []).append(vread(vload[u], f))
        if prv in vload or (u - 1) % 7 in vload:
            n = 5 if u in kload else 0
            shadow[5] = f's_waitcnt lgkmcnt({n})'
        if u in kload:
            n = 5 if u in vload else 0
            shadow[11] = f's_waitcnt lgkmcnt({n})'
        if u == 1:
            shadow[0] = 's_waitcnt vmcnt(0)'
            pre[0] = ['s_barrier']
            shadow[1] = f's_mov_b32 m0, s{sTE}'
            for i, g in enumerate((2, 3, 4, 6)):
                mem.setdefault(g, []).append(dma(0, i))
            shadow[7] = f's_add_u32 m0, s{sTE}, 4096'
            for i, g in enumerate((8, 10)):
                mem.setdefault(g, []).append(dma(1, i))
        if u == 3:
            for i, g in enumerate((0, 1)):
                mem.setdefault(g, []).append(dma(1, 2 + i))
            shadow[2] = f's_add_u32 m0, s{sTE}, 8192'
            for i, g in enumerate((3, 4, 6, 7)):
                mem.setdefault(g, []).append(dma(2, i))
            extra += [f'v_add_u32 v{vLB[0]}, s{sDn}, v{vLB[0]}',
                      f'v_add_u32 v{vLB[3]}, s{sDp}, v{vLB[3]}',
                      f'v_add_u32 v{vLB[1]}, s{sDn}, v{vLB[1]}']
            shadow[8] = f's_add_u32 s{sG[0]}, s{sG[0]}, {BUF}'
            shadow[9] = f's_add_u32 s{sG[1]}, s{sG[1]}, {BUF}'
            shadow[10] = f's_add_u32 s{sG[2]}, s{sG[2]}, {BUF}'
            shadow[11] = f's_add_u32 s{sT}, s{sT}, s{sDp}'
        if u == 5:
            extra += [f'v_add_u32 v{vLB[2]}, s{sDn}, v{vLB[2]}']
        if u == 6:
            shadow[0] = f's_add_u32 s{sTMP}, s{sDn}, s{sDp}'
            shadow[1] = f's_mov_b32 s{sDp}, s{sDn}'
            shadow[2] = f's_sub_u32 s{sDn}, 0, s{sTMP}'
            shadow[3] = f's_add_u32 s{sCNT}, s{sCNT}, 1'
            shadow[4] = f's_cmp_lt_u32 s{sCNT}, 4'
            shadow[6] = f's_cselect_b32 s{sTE}, s{sT}, 0x30000'
            shadow[7] = f's_cmp_lt_u32 s{sCNT}, 6'
            assert 5 not in shadow
        schedule_stage(a, mf, shadow, mem, pre, softmax_ops(units[u][0], sb[u]), extra)
    a(f's_cbranch_scc1 L_loop_{nm}')

def rowmax16(a, sbuf, tile, t0, t1):
    S = vS[sbuf]
    a(f'v_max3_f32 v{t0}, v{S}, v{S+1}, v{S+2}')
    a(f'v_max3_f32 v{t1}, v{S+3}, v{S+4}, v{S+5}')
    a(f'v_max3_f32 v{t0}, v{t0}, v{S+6}, v{S+7}')
    a(f'v_max_f32 v{t0}, v{t0}, v{t1}')
    a(f'v_mov_b32 v{t1}, v{t0}')
    a('s_nop 1')
    a(f'v_permlane32_swap_b32 v{t0}, v{t1}')
    a('s_nop 0')
    a(f'v_max_f32 v{t0}, v{t0}, v{t1}')
    a(f'v_sub_f32 v{vM[tile]}, 0, v{t0}')
    for i in range(1, 16):
        a(f'v_mov_b32 v{vM[tile]+i}, v{vM[tile]}')

def half_softmax(a, sbuf, tile):
    S = vS[sbuf]; L = vL[tile]
    for i in range(8):
        a(f'v_add_f32 v{S+i}, v{S+i}, v{vM[tile]}')
    for i in range(8):
        a(f'v_exp_f32 v{S+i}, v{S+i}')
    a(f'v_add_f32 v{L}, v{S}, v{S+1}')
    for i in range(2, 8):
        a(f'v_add_f32 v{L}, v{L}, v{S+i}')
    for j in range(4):
        a(f'v_cvt_pk_bf16_f32 v{S+j}, v{S+2*j}, v{S+2*j+1}')

def tile_out(a, tile, soff):
    k, b = rO[tile]
    assert k == 'v'
    L = vL[tile]
    a(f'v_mov_b32 v2, v{L}')
    a('s_nop 1')
    a(f'v_permlane32_swap_b32 v{L}, v2')
    a('s_nop 0')
    a(f'v_add_f32 v2, v{L}, v2')
    a('v_rcp_f32 v2, v2')
    a('s_nop 0')
    a('v_mov_b32 v3, v2')
    T = vS[0]
    n = 0
    for ct in range(3):
        for aa in range(2):
            o = b + 16 * ct + 8 * aa
            t = T + 4 * n
            for j in range(4):
                a(f'v_pk_mul_f32 v[{o+2*j}:{o+2*j+1}], v[{o+2*j}:{o+2*j+1}], v[2:3]')
            for j in range(4):
                a(f'v_cvt_pk_bf16_f32 v{t+j}, v{o+2*j}, v{o+2*j+1}')
            a('s_nop 1')
            a(f'v_permlane32_swap_b32 v{t}, v{t+2}')
            a(f'v_permlane32_swap_b32 v{t+1}, v{t+3}')
            a(f'buffer_store_dwordx4 v[{t}:{t+3}], v{vXO}, s[20:23], s{soff} offen offset:{64*ct+32*aa}')
            n += 1

STAMPS = False
NST = 0
def stamp(a, idx):
    if not STAMPS: return
    a(f's_memtime s[{60+2*idx}:{61+2*idx}]')
def stamp_rt(a, idx):
    if not STAMPS: return
    a(f's_memrealtime s[{60+2*idx}:{61+2*idx}]')
def stamp_store(a, n):
    if not STAMPS: return
    a('s_waitcnt vmcnt(0) lgkmcnt(0)')
    a(f's_memtime s[{60+2*(n-2)}:{61+2*(n-2)}]')
    a(f's_memrealtime s[{60+2*(n-1)}:{61+2*(n-1)}]')
    a('s_waitcnt lgkmcnt(0)')
    a('s_mov_b32 s52, s8')
    a('s_mov_b32 s53, s9')
    a('s_mov_b32 s54, 0x1000000')
    a('s_mov_b32 s55, 0x20000')
    a(f's_lshl_b32 s56, s2, 2')
    a(f's_add_u32 s56, s56, s{sW}')
    a('s_lshl_b32 s56, s56, 6')
    a('s_add_u32 s56, s56, 0x100000')
    a('v_mov_b32 v2, 0')
    for i in range(n + 2):
        a(f'v_mov_b32 v3, s{60+2*i}')
        a(f'buffer_store_dword v3, v2, s[52:55], s56 offen offset:{4*i}')

def gen_attn(a):
    a.raw('.p2align 8')
    a.raw('.globl attn_kernel')
    a.raw('.type attn_kernel,@function')
    a.label('attn_kernel')
    a(f'''
    s_cmp_ge_u32 s2, 224
    s_cbranch_scc1 L_attn_end
    ''')
    stamp_rt(a, 0)
    stamp(a, 1)
    a(f'''
    s_load_dwordx2 s[4:5], s[0:1], 0
    s_load_dwordx2 s[6:7], s[0:1], 32
    s_load_dwordx2 s[8:9], s[0:1], 48
    v_lshrrev_b32 v2, 6, v0
    v_and_b32 v1, 63, v0
    v_readfirstlane_b32 s{sW}, v2
    v_lshlrev_b32 v{vDMA}, 4, v1
    v_and_b32 v3, 31, v1
    v_lshrrev_b32 v4, 5, v1
    v_mul_u32_u24 v{vXO}, 192, v3
    v_lshl_add_u32 v{vXO}, v4, 4, v{vXO}
    s_mul_i32 s{sTMP}, s2, 43008
    s_mul_i32 s{sXo}, s{sW}, 6144
    s_add_u32 s{sXo}, s{sXo}, s{sTMP}
    s_add_u32 s{sXb[0]}, s{sXo}, {4*6144}
    s_add_u32 s{sXb[1]}, s{sTMP}, {5*6144}
    s_add_u32 s{sXb[2]}, s{sTMP}, {6*6144}
    s_add_u32 s41, s{sTMP}, {4*6144}
    s_cmp_eq_u32 s{sW}, 3
    s_cselect_b32 s{sXb[0]}, s41, s{sXb[0]}
    s_mul_i32 s42, s{sW}, 3072
    s_add_u32 s43, s42, {2*BUF}
    s_add_u32 s42, s42, {24*12288}
    s_mul_i32 s44, s{sW}, 12288
    s_mov_b32 m0, s43
    s_waitcnt lgkmcnt(0)
    s_mov_b32 s16, s4
    s_mov_b32 s17, s5
    s_mov_b32 s18, {X_BYTES}
    s_mov_b32 s19, 0x20000
    s_mov_b32 s24, s8
    s_mov_b32 s25, s9
    s_mov_b32 s26, {KV_BYTES}
    s_mov_b32 s27, 0x20000
    ''')
    def xload(tile, soff):
        for s in range(6):
            a(f'buffer_load_dwordx4 {rng("a", aX[tile]+4*s, 4)}, v{vXO}, s[16:19], s{soff} offen offset:{32*s}')
    for p in range(3):
        a(f'buffer_load_dwordx4 v{vDMA}, s[24:27], s42 offen offset:{1024*p} lds')
    xload('own', sXo)
    xload('B0', sXb[0])
    a(f'''
    s_mov_b32 s20, s6
    s_mov_b32 s21, s7
    s_mov_b32 s22, {X_BYTES}
    s_mov_b32 s23, 0x20000
    s_cmp_lg_u32 s{sW}, 3
    s_cbranch_scc1 L_skip_xb
    ''')
    xload('B1', sXb[1])
    xload('B2', sXb[2])
    a.label('L_skip_xb')
    for g in range(2):
        for q in range(3):
            a(f's_add_u32 s45, s44, {g*BUF + q*4096}')
            a('s_mov_b32 m0, s45')
            a('s_nop 0')
            for p in range(4):
                a(f'buffer_load_dwordx4 v{vDMA}, s[24:27], s45 offen offset:{1024*p} lds')
    a(f'''
    s_mov_b32 s{sCNT}, 0
    s_add_u32 s{sT}, s44, {2*BUF}
    s_mov_b32 s{sTE}, s{sT}
    s_add_u32 s{sG[0]}, s44, {2*BUF}
    s_add_u32 s{sG[1]}, s44, {2*BUF+4096}
    s_add_u32 s{sG[2]}, s44, {2*BUF+8192}
    s_mov_b32 s{sDn}, {BUF}
    s_mov_b32 s{sDp}, {(-2*BUF) & 0xffffffff}
    ''')
    for i in range(4):
        a(f's_add_u32 s45, s{sW}, {1+i}')
        a('s_and_b32 s45, s45, 3')
        a('s_mul_i32 s45, s45, 12288')
        if i == 3:
            a(f's_add_u32 s45, s45, {2*BUF}')
        a(f'v_add_u32 v{vLB[i]}, s45, v{vDMA}')
    a(f'v_add_u32 v22, {2*BUF}, v{vDMA}')
    for i in range(48):
        a(f'v_mov_b32 v{rO["own"][1]+i}, 0')
    for i in range(12):
        a(f'v_accvgpr_write_b32 a{aV+12+i}, 0')
    a(f'''
    s_cmp_lg_u32 s{sW}, 3
    s_cbranch_scc1 L_owner
    ''')
    for i in range(48):
        a(f'v_mov_b32 v{rO["B0"][1]+i}, 0')
    for i in range(96):
        a(f'v_accvgpr_write_b32 a{i}, 0')
    for t in ('B0', 'B1', 'B2'):
        a(f'v_mov_b32 v{vL[t]}, 0')
    def half_reads():
        stamp(a, 2)
        a('s_waitcnt vmcnt(24)')
        a('s_barrier')
        stamp(a, 3)
        for s in range(6):
            a(f'ds_read_b128 {rng("a", aK+4*s, 4)}, v22 offset:{1024*s}')
        for f in range(3):
            a(f'ds_read_b128 {rng("a", aV+4*f, 4)}, v22 offset:{6144+1024*f}')
        a('s_waitcnt lgkmcnt(3)')
    half_reads()
    for s in range(6): a(qk_mfma('own', 3, s, '0'))
    for s in range(6): a(qk_mfma('B0', 0, s, '0'))
    for s in range(6): a(qk_mfma('B1', 1, s, '0'))
    rowmax16(a, 3, 'own', 2, 3)
    for s in range(6): a(qk_mfma('B2', 2, s, '0'))
    half_softmax(a, 3, 'own')
    for i in range(4): a(f'v_mov_b32 v{vS[3]+8+i}, 0')
    rowmax16(a, 0, 'B0', 2, 3)
    rowmax16(a, 1, 'B1', 2, 3)
    rowmax16(a, 2, 'B2', 2, 3)
    def first_qk():
        stamp(a, 4)
        a('s_waitcnt vmcnt(12)')
        a('s_barrier')
        stamp(a, 5)
        for s in range(6):
            a(kread(0, s))
        a('s_waitcnt lgkmcnt(0)')
        for s in range(6): a(qk_mfma('own', 0, s))
        a('s_nop 11')
        stamp(a, 6)
        stamp_rt(a, 11)
        if STAMPS: a('s_waitcnt lgkmcnt(0)')
    first_qk()
    gen_loop(a, True)
    stamp(a, 7)
    stamp_rt(a, 12)
    a('s_waitcnt lgkmcnt(0)')
    for t in range(2):
        for ct in range(3):
            a(pv_mfma('own', 3, t, ct))
    for e, t in enumerate(('B0', 'B1', 'B2')):
        k, b = rO[t]
        for j in range(12):
            a(f'ds_write_b128 v{vDMA}, {rng(k, b+4*j, 4)} offset:{e*MERGE + 1024*j}')
    a('v_lshlrev_b32 v2, 2, v1')
    for e, t in enumerate(('B0', 'B1', 'B2')):
        a(f'ds_write_b32 v2, v{vL[t]} offset:{e*MERGE + 12288}')
    a('s_waitcnt lgkmcnt(0)')
    a('s_barrier')
    tile_out(a, 'own', sXo)
    stamp(a, 8)
    stamp_store(a, 11)
    a('s_endpgm')
    a.label('L_owner')
    half_reads()
    for s in range(6): a(qk_mfma('own', 3, s, '0'))
    for s in range(6): a(qk_mfma('B0', 1, s, '0'))
    a('s_nop 7')
    rowmax16(a, 3, 'own', 2, 3)
    half_softmax(a, 3, 'own')
    for i in range(4): a(f'v_mov_b32 v{vS[3]+8+i}, 0')
    rowmax16(a, 1, 'B0', 2, 3)
    half_softmax(a, 1, 'B0')
    a('s_waitcnt lgkmcnt(0)')
    a('s_nop 1')
    for ct in range(3):
        a(pv_mfma('B0', 1, 0, ct, '0'))
    first_qk()
    gen_loop(a, False)
    stamp(a, 7)
    stamp_rt(a, 12)
    a('s_waitcnt lgkmcnt(0)')
    for t in range(2):
        for ct in range(3):
            a(pv_mfma('own', 3, t, ct))
    a(f's_mul_i32 s45, s{sW}, {MERGE}')
    a(f'v_add_u32 v6, s45, v{vDMA}')
    a('v_lshlrev_b32 v7, 2, v1')
    a('v_add_u32 v7, s45, v7')
    a('s_nop 15')
    tile_out(a, 'own', sXo)
    a('s_barrier')
    T = vM['own']
    for j in range(12):
        a(f'ds_read_b128 {rng("v", T+4*j, 4)}, v6 offset:{1024*j}')
    a('ds_read_b32 v8, v7 offset:12288')
    b = rO['B0'][1]
    for j in range(12):
        a(f's_waitcnt lgkmcnt({12-j})')
        a(f'v_pk_add_f32 v[{b+4*j}:{b+4*j+1}], v[{b+4*j}:{b+4*j+1}], v[{T+4*j}:{T+4*j+1}]')
        a(f'v_pk_add_f32 v[{b+4*j+2}:{b+4*j+3}], v[{b+4*j+2}:{b+4*j+3}], v[{T+4*j+2}:{T+4*j+3}]')
    a('s_waitcnt lgkmcnt(0)')
    a(f'v_add_f32 v{vL["B0"]}, v{vL["B0"]}, v8')
    tile_out(a, 'B0', sXb[0])
    stamp(a, 8)
    stamp_store(a, 11)
    a.label('L_attn_end')
    a('s_endpgm')

def build(path):
    a = Asm()
    gen_prep(a)
    gen_attn(a)
    out = HEADER
    out += f'; @launch kernel=prep_kernel grid=(196,1,1) block=(384,1,1) lds={K1_LDS}\n'
    out += f'; @launch kernel=attn_kernel grid=(224,1,1) block=(256,1,1) lds={K2_LDS}\n'
    out += '.amdgcn_target "amdgcn-amd-amdhsa--gfx950"\n.text\n'
    out += a.text()
    out += '.section .rodata,"a"\n.p2align 6\n'
    out += kd('prep_kernel', 120, 120)
    out += '.p2align 6\n'
    out += kd('attn_kernel', 512, 256)
    open(path, 'w').write(out)

if __name__ == '__main__':
    if len(sys.argv) > 2 and sys.argv[2] == 'stamps':
        STAMPS = True
        PSTAMPS[0] = True
    build(sys.argv[1] if len(sys.argv) > 1 else 'k2.s')
```

```python
import sys
from gen import Asm, f32bits, kd, HEADER, X_BYTES, KV_BYTES, CST
import gen2
from gen2 import (vLB, vDMA, vL, vXO, vS, vM, rO, aX, aK, aV, BUF, MERGE, rng, qk_mfma, pv_mfma,
                  softmax_ops, schedule_stage, kread, vread)

NAME = 'standalone__window_attn_twins__vision_kernel'
NPROD = 32
NCONS = 224
LDS_TOTAL = 3 * BUF + 1024
OPT = dict(stamps=False)

sW = 14
sCNT = 28; sT = 29; sG = [30, 31, 32]; sDn = 33; sDp = 34; sTE = 35; sTMP = 36; sXo = 37; sXb = [38, 39, 40]
sFO = 41
sD0 = 42
sK0 = 43
sMODE = 15
sFM = 61
sSP = 52
vF = 22
vZ = 24
FLAGV = 0x01010101

ST0 = 62
def stamp(a, idx, rt=False):
    if OPT['stamps']:
        a(f's_mem{"real" if rt else ""}time s[{ST0+2*idx}:{ST0+1+2*idx}]')
def stamp_store(a, n):
    if not OPT['stamps']: return
    a('s_mov_b64 exec, -1')
    a('s_waitcnt vmcnt(0) lgkmcnt(0)')
    a(f's_memtime s[{ST0+2*(n-2)}:{ST0+1+2*(n-2)}]')
    a(f's_memrealtime s[{ST0+2*(n-1)}:{ST0+1+2*(n-1)}]')
    a('s_waitcnt lgkmcnt(0)')
    a('s_mov_b32 s26, 0x1000000')
    a('s_lshl_b32 s3, s2, 2')
    a(f's_add_u32 s3, s3, s{sW}')
    a('s_lshl_b32 s3, s3, 6')
    a('s_add_u32 s3, s3, 0x100000')
    a('v_mov_b32 v2, 0')
    for i in range(n):
        a(f'v_mov_b32 v3, s{ST0+2*i}')
        a(f'buffer_store_dword v3, v2, s[24:27], s3 offen offset:{4*i}')

P_WKV = 0; P_WO = 36864; P_XS = 55296; P_KV = 56064
def gen_producer(a):
    XB = [16, 64]
    accA, accB, tmp = 112, 120, 128
    W1, W2, XSF, DD, KVF, CV = 136, 172, 208, 220, 232, 244
    a.label('L_producer')
    a(f'''
    s_mov_b32 s52, s6
    s_mov_b32 s53, s7
    s_mov_b32 s54, 18432
    s_mov_b32 s55, 0x20000
    s_mov_b32 s56, s8
    s_mov_b32 s57, s9
    s_mov_b32 s58, 36864
    s_mov_b32 s59, 0x20000
    s_mov_b32 s20, s10
    s_mov_b32 s21, s11
    s_mov_b32 s22, 18432
    s_mov_b32 s23, 0x20000
    s_mul_i32 s28, s{sW}, 9216
    s_mov_b32 m0, s28
    v_lshlrev_b32 v8, 4, v1
    v_and_b32 v6, 7, v1
    v_lshrrev_b32 v7, 3, v1
    ''')
    for q in range(3):
        n = 4 if q < 2 else 1
        for p in range(n):
            a(f'buffer_load_dwordx4 v8, s[56:59], s28 offen offset:{1024*p} lds')
        if q < 2:
            a('s_add_u32 s28, s28, 4096')
            a('s_mov_b32 m0, s28')
            a('s_nop 0')
    a(f'''
    s_mul_i32 s29, s{sW}, 4608
    s_add_u32 s30, s29, {P_WO}
    s_mov_b32 m0, s30
    v_lshrrev_b32 v9, 4, v1
    v_and_b32 v10, 15, v1
    ''')
    for p in range(4):
        a(f'buffer_load_dwordx4 v8, s[20:23], s29 offen offset:{1024*p} lds')
    a('''
    s_add_u32 s29, s29, 4096
    s_add_u32 s30, s30, 4096
    s_mov_b32 m0, s30
    s_mov_b32 exec_hi, 0
    buffer_load_dwordx4 v8, s[20:23], s29 offen lds
    s_mov_b64 exec, -1
    ''')
    a(f'''
    v_mul_u32_u24 v11, 192, v10
    v_lshl_add_u32 v11, v9, 4, v11
    s_and_b32 s29, s{sW}, 1
    s_mul_i32 s29, s29, 9216
    s_cmp_ge_u32 s{sW}, 2
    s_cbranch_scc1 L_p_nowq
    ''')
    for j in range(3):
        for s in range(3):
            r = W2 + 4 * (3 * j + s)
            a(f'buffer_load_dwordx4 v[{r}:{r+3}], v11, s[52:55], s29 offen offset:{64*s}')
        if j < 2:
            a('s_add_u32 s29, s29, 3072')
    a.label('L_p_nowq')
    a(f'''
    v_lshrrev_b32 v12, 6, v0
    v_lshl_add_u32 v2, v12, 3, v6
    v_mul_u32_u24 v2, 192, v2
    v_and_b32 v13, 3, v7
    v_lshl_add_u32 v3, v13, 4, v2
    v_add_u32 v3, 128, v3
    v_lshrrev_b32 v14, 2, v7
    s_mov_b32 s29, {4*43008}
    v_mul_lo_u32 v15, v14, s29
    v_add_u32 v3, v3, v15
    v_lshl_add_u32 v2, v7, 4, v2
    ''')
    def xbase(dst, u):
        a(f's_mul_i32 s29, s{u}, 9363')
        a('s_lshr_b32 s29, s29, 16')
        a('s_mul_i32 s30, s29, 7')
        a(f's_sub_u32 s30, s{u}, s30')
        a('s_mul_i32 s29, s29, 344064')
        a('s_mul_i32 s30, s30, 6144')
        a(f's_add_u32 s{dst}, s29, s30')
    def xload(buf, i, sb):
        r = XB[buf] + 4 * i
        a(f'buffer_load_dwordx4 v[{r}:{r+3}], v{2 if i < 8 else 3}, s[16:19], s{sb} offen')
    def xload_all(buf, base):
        a(f's_mov_b32 s32, s{base}')
        for r in range(8):
            xload(buf, r, 32)
            if r < 4: xload(buf, 8 + r, 32)
            if r < 7: a('s_add_u32 s32, s32, 43008')
    a('s_mov_b32 s33, s2')
    xbase(31, 33); xload_all(0, 31)
    a('s_add_u32 s33, s33, 32')
    xbase(31, 33); xload_all(1, 31)
    a('s_add_u32 s33, s33, 32')
    a(f'''
    v_lshrrev_b32 v250, 2, v10
    v_and_b32 v251, 3, v10
    v_lshl_add_u32 v250, v9, 3, v250
    s_mul_i32 s29, s{sW}, 96
    v_mul_u32_u24 v4, 384, v250
    v_lshl_add_u32 v4, v251, 3, v4
    v_add_u32 v4, s29, v4
    s_and_b32 s30, s{sW}, 1
    s_mul_i32 s30, s30, 96
    s_add_u32 s30, s30, {P_WO}
    v_mul_u32_u24 v5, 192, v250
    v_lshl_add_u32 v5, v251, 3, v5
    v_add_u32 v5, s30, v5
    v_mul_u32_u24 v11, 192, v251
    v_lshl_add_u32 v11, v9, 4, v11
    v_add_u32 v11, {P_XS}, v11
    v_mul_u32_u24 v252, 384, v251
    v_add_u32 v252, {P_KV}, v252
    s_lshr_b32 s30, s{sW}, 1
    s_mul_i32 s30, s30, 192
    v_lshl_add_u32 v12, v9, 4, v252
    v_add_u32 v12, s30, v12
    v_lshl_add_u32 v252, v9, 3, v252
    v_add_u32 v253, s29, v252
    s_mul_i32 s30, s{sW}, 192
    s_add_u32 s30, s30, {P_XS}
    v_lshlrev_b32 v254, 4, v7
    v_add_u32 v254, s30, v254
    v_lshlrev_b32 v15, 4, v13
    v_lshl_add_u32 v15, v14, 3, v15
    v_add_u32 v15, s30, v15
    v_add_u32 v15, 128, v15
    v_mov_b32 v13, v253
    v_mov_b32 v14, v254
    ''')
    a('''
    v_lshrrev_b32 v250, 1, v9
    v_lshl_add_u32 v250, v250, 5, v10
    v_lshlrev_b32 v250, 4, v250
    v_and_b32 v251, 1, v9
    v_lshl_add_u32 v250, v251, 3, v250
    v_lshlrev_b32 v251, 4, v10
    v_mov_b32 v252, 1
    v_mov_b32 v253, 0
    s_mov_b32 s34, 0xffff0000
    s_mov_b32 s35, 0x3c800000
    s_mov_b32 s36, 0x%08x
    s_mov_b32 s37, s2
    s_waitcnt vmcnt(24)
    s_barrier
    ''' % f32bits(CST))
    stamp(a, 2)
    for j in range(3):
        for s in range(3):
            for half in range(2):
                d = W1 + (3 * j + s) * 4 + 2 * half
                a(f'ds_read_b64_tr_b16 v[{d}:{d+1}], v4 offset:{s*12288 + half*1536 + j*32}')
    a(f's_cmp_lt_u32 s{sW}, 2')
    a('s_cbranch_scc1 L_p_nowo')
    for j in range(3):
        for s in range(3):
            for half in range(2):
                d = W2 + (3 * j + s) * 4 + 2 * half
                a(f'ds_read_b64_tr_b16 v[{d}:{d+1}], v5 offset:{s*6144 + half*768 + j*32}')
    a.label('L_p_nowo')
    a('s_waitcnt vmcnt(12)')
    stamp(a, 3)
    a.label('L_p_loop')
    for buf in range(2):
        a('s_waitcnt vmcnt(15)')
        xbase(31, 33)
        a('s_add_u32 s33, s33, 32')
        a('s_mov_b32 s32, s31')
        def acc(i, first, A):
            r = XB[buf] + 4 * i
            dst = A if first else tmp
            for d in range(4):
                a(f'v_lshlrev_b32 v{dst+2*d}, 16, v{r+d}')
                a(f'v_and_b32 v{dst+2*d+1}, s34, v{r+d}')
            if not first:
                for d in range(4):
                    a(f'v_pk_add_f32 v[{A+2*d}:{A+2*d+1}], v[{A+2*d}:{A+2*d+1}], v[{tmp+2*d}:{tmp+2*d+1}]')
        for r in range(8):
            acc(r, r == 0, accA)
            xload(buf, r, 32)
            if r < 4:
                acc(8 + r, r == 0, accB)
                xload(buf, 8 + r, 32)
            if r < 7: a('s_add_u32 s32, s32, 43008')
        for i in range(4):
            a(f'v_permlane32_swap_b32 v{accB+i}, v{accB+4+i}')
        for i in range(4):
            a(f'v_add_f32 v{accB+i}, v{accB+i}, v{accB+4+i}')
        regs = [accA + d for d in range(8)] + [accB + d for d in range(4)]
        for ctl in ('quad_perm:[1,0,3,2]', 'quad_perm:[2,3,0,1]', 'row_half_mirror'):
            for r in regs:
                a(f'v_add_f32_dpp v{r}, v{r}, v{r} {ctl} row_mask:0xf bank_mask:0xf')
        for r in regs:
            a(f'v_mul_f32 v{r}, s35, v{r}')
        for d in range(4):
            a(f'v_cvt_pk_bf16_f32 v{tmp+d}, v{accA+2*d}, v{accA+2*d+1}')
        for d in range(2):
            a(f'v_cvt_pk_bf16_f32 v{tmp+4+d}, v{accB+2*d}, v{accB+2*d+1}')
        a(f'''
        v_cmp_eq_u32 vcc, 0, v6
        s_and_saveexec_b64 s[60:61], vcc
        ds_write_b128 v14, v[{tmp}:{tmp+3}]
        ds_write_b64 v15, v[{tmp+4}:{tmp+5}]
        s_mov_b64 exec, s[60:61]
        ''')
        lbl = f'L_p_nopub{buf}'
        if buf == 0:
            a(f's_cmp_lt_u32 s37, 32')
            a('s_waitcnt lgkmcnt(0)')
            a(f's_cbranch_scc1 {lbl}')
            a('s_waitcnt vmcnt(12)')
            a('s_barrier')
            a(f's_cmp_lg_u32 s{sW}, 0')
            a(f's_cbranch_scc1 {lbl}b')
            a('s_sub_u32 s29, s37, 32')
            a('s_mov_b64 exec, 1')
            a('buffer_store_byte v252, v253, s[48:51], s29 offen sc0 sc1')
            a('s_mov_b64 exec, -1')
            a(f's_branch {lbl}b')
            a.label(lbl)
            a('s_barrier')
            a.label(lbl + 'b')
        else:
            a('s_waitcnt vmcnt(12) lgkmcnt(0)')
            a('s_barrier')
            a(f's_cmp_lg_u32 s{sW}, 0')
            a(f's_cbranch_scc1 {lbl}b')
            a('s_sub_u32 s29, s37, 32')
            a('s_mov_b64 exec, 1')
            a('buffer_store_byte v252, v253, s[48:51], s29 offen sc0 sc1')
            a('s_mov_b64 exec, -1')
            a.label(lbl + 'b')
        for s in range(3):
            a(f'ds_read_b128 v[{XSF+4*s}:{XSF+3+4*s}], v11 offset:{64*s}')
        a(f'''
        s_lshr_b32 s29, s37, 3
        s_mul_i32 s29, s29, 12288
        s_and_b32 s30, s37, 7
        s_lshl_b32 s38, s30, 6
        s_add_u32 s38, s38, s29
        s_and_b32 s39, s{sW}, 1
        s_mul_i32 s39, s39, 3072
        s_add_u32 s38, s38, s39
        s_lshr_b32 s30, s30, 2
        s_mul_i32 s30, s30, 3072
        s_add_u32 s39, s29, s30
        s_add_u32 s39, s39, 6144
        s_and_b32 s30, s37, 1
        s_lshl_b32 s30, s30, 9
        s_add_u32 s39, s39, s30
        s_and_b32 s30, s37, 2
        s_lshl_b32 s30, s30, 2
        s_add_u32 s39, s39, s30
        ''')
        for s in range(3):
            a(f's_waitcnt lgkmcnt({2-s})')
            for j in range(3):
                w = W1 + (3 * j + s) * 4
                c = '0' if s == 0 else f'v[{DD+4*j}:{DD+3+4*j}]'
                a(f'v_mfma_f32_16x16x32_bf16 v[{DD+4*j}:{DD+3+4*j}], v[{w}:{w+3}], v[{XSF+4*s}:{XSF+3+4*s}], {c}')
        a('v_cmp_gt_u32 vcc, 4, v10')
        a('s_nop 7')
        for j in range(3):
            a(f'v_cvt_pk_bf16_f32 v{CV+2*j}, v{DD+4*j}, v{DD+4*j+1}')
            a(f'v_cvt_pk_bf16_f32 v{CV+2*j+1}, v{DD+4*j+2}, v{DD+4*j+3}')
        a('s_and_saveexec_b64 s[60:61], vcc')
        for j in range(3):
            a(f'ds_write_b64 v13, v[{CV+2*j}:{CV+2*j+1}] offset:{32*j}')
        a('s_mov_b64 exec, s[60:61]')
        a('s_waitcnt lgkmcnt(0)')
        a('s_barrier')
        for s in range(3):
            a(f'ds_read_b128 v[{KVF+4*s}:{KVF+3+4*s}], v12 offset:{64*s}')
        a(f's_cmp_ge_u32 s{sW}, 2')
        a(f's_cbranch_scc1 L_p_v{buf}')
        for s in range(3):
            a(f's_waitcnt lgkmcnt({2-s})')
            for j in range(3):
                w = W2 + (3 * j + s) * 4
                c = '0' if s == 0 else f'v[{DD+4*j}:{DD+3+4*j}]'
                a(f'v_mfma_f32_16x16x32_bf16 v[{DD+4*j}:{DD+3+4*j}], v[{w}:{w+3}], v[{KVF+4*s}:{KVF+3+4*s}], {c}')
        a('s_nop 7')
        for r in range(12):
            a(f'v_mul_f32 v{DD+r}, s36, v{DD+r}')
        for j in range(3):
            a(f'v_cvt_pk_bf16_f32 v{CV+2*j}, v{DD+4*j}, v{DD+4*j+1}')
            a(f'v_cvt_pk_bf16_f32 v{CV+2*j+1}, v{DD+4*j+2}, v{DD+4*j+3}')
        a('s_and_saveexec_b64 s[60:61], vcc')
        for j in range(3):
            a(f'buffer_store_dwordx2 v[{CV+2*j}:{CV+2*j+1}], v250, s[24:27], s38 offen offset:{1024*j} sc0 sc1')
        a('s_mov_b64 exec, s[60:61]')
        a(f's_branch L_p_e{buf}')
        a.label(f'L_p_v{buf}')
        for s in range(3):
            a(f's_waitcnt lgkmcnt({2-s})')
            for j in range(3):
                w = W2 + (3 * j + s) * 4
                c = '0' if s == 0 else f'v[{DD+4*j}:{DD+3+4*j}]'
                a(f'v_mfma_f32_16x16x32_bf16 v[{DD+4*j}:{DD+3+4*j}], v[{KVF+4*s}:{KVF+3+4*s}], v[{w}:{w+3}], {c}')
        a('s_nop 7')
        for j in range(3):
            a(f'v_cvt_pk_bf16_f32 v{CV+2*j}, v{DD+4*j}, v{DD+4*j+1}')
            a(f'v_cvt_pk_bf16_f32 v{CV+2*j+1}, v{DD+4*j+2}, v{DD+4*j+3}')
        a(f's_cmp_eq_u32 s{sW}, 3')
        a('s_mov_b64 exec, 0xffff')
        a(f's_cbranch_scc1 L_p_v3{buf}')
        for j, off in enumerate((0, 256, 1024)):
            a(f'buffer_store_dwordx2 v[{CV+2*j}:{CV+2*j+1}], v251, s[24:27], s39 offen offset:{off} sc0 sc1')
        a(f's_branch L_p_ve{buf}')
        a.label(f'L_p_v3{buf}')
        for j, off in enumerate((1280, 2048, 2304)):
            a(f'buffer_store_dwordx2 v[{CV+2*j}:{CV+2*j+1}], v251, s[24:27], s39 offen offset:{off} sc0 sc1')
        a.label(f'L_p_ve{buf}')
        a('s_mov_b64 exec, -1')
        a.label(f'L_p_e{buf}')
        if OPT['stamps'] and buf == 0:
            a('s_cmp_ge_u32 s37, 32')
            a('s_cbranch_scc1 L_p_st4')
            stamp(a, 4)
            a.label('L_p_st4')
        a('s_add_u32 s37, s37, 32')
        if buf == 0:
            a(f's_cmp_ge_u32 s37, {7*32}')
            a('s_cbranch_scc1 L_p_done')
    a('s_branch L_p_loop')
    a.label('L_p_done')
    a('s_waitcnt vmcnt(0)')
    a('s_barrier')
    a(f's_cmp_lg_u32 s{sW}, 0')
    a('s_cbranch_scc1 L_p_fin')
    a('s_sub_u32 s29, s37, 32')
    a('s_mov_b64 exec, 1')
    a('buffer_store_byte v252, v253, s[48:51], s29 offen sc0 sc1')
    a.label('L_p_fin')
    for i in (5, 6, 7, 8, 11, 12): stamp(a, i)
    stamp_store(a, 11)
    a('s_endpgm')

def dma(q, p):
    return f'buffer_load_dwordx4 v{vDMA}, s[24:27], s{sG[q]} offen offset:{1024*p} lds'
def flag_load():
    return f'buffer_load_dwordx2 v[{vF}:{vF+1}], v{vZ}, s[48:51], s{sFO} offen sc0 sc1'

def spin(a, lbl):
    a.label(lbl)
    a(flag_load())
    a('s_waitcnt vmcnt(0)')
    a(f'v_and_b32 v{vF}, v{vF}, v{vF+1}')
    a(f'v_cmp_ne_u32 vcc, {FLAGV:#x}, v{vF}')
    a(f's_cbranch_vccz {lbl}_ok')
    a('s_sleep 2')
    a(f's_add_u32 s{sSP}, s{sSP}, 1')
    a(f's_cmp_lt_u32 s{sSP}, 0x40000')
    a(f's_cbranch_scc1 {lbl}')
    a.label(lbl + '_ok')

def gen_loop(a, helper):
    nm = 'h' if helper else 'o'
    B = ['B0', 'B1', 'B2'] if helper else ['B0', 'B0', 'B0']
    units = [('own', 0), (B[0], 0), ('own', 1), (B[1], 1), ('own', 2), (B[2], 2), ('own', 3)]
    sb = [0, 1, 2, 0, 1, 2, 3]
    a.raw('.p2align 6')
    a.label(f'L_loop_{nm}')
    kload = {0: 1, 2: 2, 4: 3, 5: 0}
    vload = {2: 1, 4: 2, 6: 3, 0: 0}
    for u in range(7):
        nxt = (u + 1) % 7
        prv = (u - 1) % 7
        mf = [qk_mfma(units[nxt][0], sb[nxt], s) for s in range(6)]
        mf += [pv_mfma(units[prv][0], sb[prv], t, ct) for t in range(2) for ct in range(3)]
        shadow = {}; mem = {}; pre = {}; extra = []; post = {}
        if u in kload:
            for s in range(6):
                mem.setdefault(s, []).append(kread(kload[u], s))
        if u in vload:
            for f in range(6):
                mem.setdefault(6 + f, []).append(vread(vload[u], f))
        if prv in vload:
            shadow[5] = f's_waitcnt lgkmcnt({5 if u in kload else 0})'
        if u in kload:
            shadow[11] = f's_waitcnt lgkmcnt({5 if u in vload else 0})'
        if u == 1:
            shadow[0] = f's_add_u32 m0, s{sTE}, 8192'
            for i, g in enumerate((1, 3, 6, 8)):
                mem.setdefault(g, []).append(dma(2, i))
            shadow[2] = f's_add_u32 s{sG[0]}, s{sG[0]}, {BUF}'
            shadow[4] = f's_add_u32 s{sG[1]}, s{sG[1]}, {BUF}'
            shadow[9] = f's_add_u32 s{sG[2]}, s{sG[2]}, {BUF}'
            shadow[10] = f's_cmp_lt_u32 s{sCNT}, 5'
            shadow[11] = f's_cselect_b32 s{sTMP}, 0, s{sK0}'
            extra += [f'v_add_u32 v{vLB[3]}, s{sDp}, v{vLB[3]}']
        if u == 2:
            shadow[0] = f's_sub_u32 s{sD0}, s{sDn}, s{sTMP}'
        if u == 3:
            mem.setdefault(0, []).append(flag_load())
            extra += [f'v_add_u32 v{vLB[0]}, s{sD0}, v{vLB[0]}',
                      f'v_add_u32 v{vLB[1]}, s{sDn}, v{vLB[1]}']
            shadow[1] = f's_cmp_lt_u32 s{sCNT}, 5'
            shadow[2] = f's_cselect_b32 s{sTE}, s{sT}, 0x30000'
            shadow[3] = f's_add_u32 s{sT}, s{sT}, s{sDp}'
            shadow[10] = 's_waitcnt vmcnt(0)'
            pre[10] = ['s_barrier']
            pre[11] = [f'v_and_b32 v{vF}, v{vF}, v{vF+1}', f'v_cmp_ne_u32 vcc, {FLAGV:#x}, v{vF}']
        if u == 4:
            shadow[1] = f's_cbranch_vccnz L_slow_{nm}\nL_back_{nm}:'
            shadow[2] = f's_add_u32 s{sFO}, s{sFO}, 32'
            shadow[3] = f's_mov_b32 m0, s{sTE}'
            shadow[4] = f's_min_u32 s{sFO}, s{sFO}, s{sFM}'
        if u == 5:
            extra += [f'v_add_u32 v{vLB[2]}, s{sDn}, v{vLB[2]}']
            for i, g in enumerate((6, 7, 9, 10)):
                mem.setdefault(g, []).append(dma(0, i))
        if u == 6:
            shadow[0] = f's_add_u32 m0, s{sTE}, 4096'
            for i, g in enumerate((1, 2, 4, 5)):
                mem.setdefault(g, []).append(dma(1, i))
            shadow[3] = f's_add_u32 s{sTMP}, s{sDn}, s{sDp}'
            shadow[6] = f's_mov_b32 s{sDp}, s{sDn}'
            shadow[7] = f's_sub_u32 s{sDn}, 0, s{sTMP}'
            shadow[8] = f's_add_u32 s{sCNT}, s{sCNT}, 1'
            shadow[9] = f's_cmp_lt_u32 s{sCNT}, 6'
        schedule_stage(a, mf, shadow, mem, pre, softmax_ops(units[u][0], sb[u]), extra)
    a(f's_cbranch_scc1 L_loop_{nm}')

def slow_path(a, nm):
    a.label(f'L_slow_{nm}')
    spin(a, f'L_spin_{nm}')
    a(f's_branch L_back_{nm}')

def rowmax(a, sbuf, tile, t0, t1, n=16):
    S = vS[sbuf]
    a(f'v_max3_f32 v{t0}, v{S}, v{S+1}, v{S+2}')
    a(f'v_max3_f32 v{t1}, v{S+3}, v{S+4}, v{S+5}')
    i = 6
    flip = 0
    while i + 1 < n:
        t = (t0, t1)[flip]; flip ^= 1
        a(f'v_max3_f32 v{t}, v{t}, v{S+i}, v{S+i+1}')
        i += 2
    a(f'v_max_f32 v{t0}, v{t0}, v{t1}')
    a(f'v_mov_b32 v{t1}, v{t0}')
    a('s_nop 1')
    a(f'v_permlane32_swap_b32 v{t0}, v{t1}')
    a('s_nop 0')
    a(f'v_max_f32 v{t0}, v{t0}, v{t1}')
    a(f'v_sub_f32 v{vM[tile]}, 0, v{t0}')
    for i in range(1, 16):
        a(f'v_mov_b32 v{vM[tile]+i}, v{vM[tile]}')

def half_softmax(a, sbuf, tile):
    S = vS[sbuf]; L = vL[tile]
    for i in range(8):
        a(f'v_exp_f32 v{S+i}, v{S+i}')
    for i in range(8):
        a(f'v_add_f32 v{L}, v{L}, v{S+i}')
    for j in range(4):
        a(f'v_cvt_pk_bf16_f32 v{S+j}, v{S+2*j}, v{S+2*j+1}')

MERGE0 = BUF

def tile_out(a, tile, soff):
    gen2.tile_out(a, tile, soff)

def gen_consumer(a):
    a(f'''
    s_sub_u32 s3, s2, {NPROD}
    v_lshlrev_b32 v{vDMA}, 4, v1
    v_and_b32 v3, 31, v1
    v_lshrrev_b32 v4, 5, v1
    v_mul_u32_u24 v{vXO}, 192, v3
    v_lshl_add_u32 v{vXO}, v4, 4, v{vXO}
    v_mov_b32 v{vZ}, 0
    s_mul_i32 s{sTMP}, s3, 43008
    s_mul_i32 s{sXo}, s{sW}, 6144
    s_add_u32 s{sXo}, s{sXo}, s{sTMP}
    s_add_u32 s{sXb[0]}, s{sXo}, {4*6144}
    s_add_u32 s{sXb[1]}, s{sTMP}, {5*6144}
    s_add_u32 s{sXb[2]}, s{sTMP}, {6*6144}
    s_add_u32 s3, s{sTMP}, {4*6144}
    s_cmp_eq_u32 s{sW}, 3
    s_cselect_b32 s{sXb[0]}, s3, s{sXb[0]}
    s_mov_b32 s20, s12
    s_mov_b32 s21, s13
    s_mov_b32 s22, {X_BYTES}
    s_mov_b32 s23, 0x20000
    ''')
    def xload(tile, soff):
        for s in range(6):
            a(f'buffer_load_dwordx4 {rng("a", aX[tile]+4*s, 4)}, v{vXO}, s[16:19], s{soff} offen offset:{32*s}')
    xload('own', sXo)
    xload('B0', sXb[0])
    a(f's_cmp_lg_u32 s{sW}, 3')
    a('s_cbranch_scc1 L_skip_xb')
    xload('B1', sXb[1])
    xload('B2', sXb[2])
    a.label('L_skip_xb')
    a(f'''
    s_mul_i32 s3, s{sW}, 12288
    s_mov_b32 s{sCNT}, 0
    s_add_u32 s{sT}, s3, {2*BUF}
    s_add_u32 s{sTE}, s3, {BUF}
    s_add_u32 s{sG[0]}, s3, {BUF}
    s_add_u32 s{sG[1]}, s3, {BUF+4096}
    s_add_u32 s{sG[2]}, s3, {BUF+8192}
    s_mov_b32 s{sDn}, {BUF}
    s_mov_b32 s{sDp}, {(-2*BUF) & 0xffffffff}
    s_lshl_b32 s{sFO}, s{sW}, 3
    s_add_u32 s{sFM}, s{sFO}, 192
    s_mov_b32 s{sSP}, 0
    ''')
    for i in range(4):
        a(f's_add_u32 s60, s{sW}, {1+i}')
        a('s_and_b32 s60, s60, 3')
        a('s_mul_i32 s60, s60, 12288')
        if i == 0:
            a(f's_mov_b32 s{sK0}, s60')
        if i == 3:
            a(f's_add_u32 s60, s60, {2*BUF}')
        a(f'v_add_u32 v{vLB[i]}, s60, v{vDMA}')
    for t in ('own', 'B0'):
        for i in range(48):
            a(f'v_mov_b32 v{rO[t][1]+i}, 0')
    for i in range(24):
        a(f'v_accvgpr_write_b32 a{aV+i}, 0')
    for i in range(96):
        a(f'v_accvgpr_write_b32 a{i}, 0')
    for t in vL:
        a(f'v_mov_b32 v{vL[t]}, 0')
    stamp(a, 2)
    spin(a, 'L_w0')
    stamp(a, 3)
    for q in range(3):
        a(f's_add_u32 s60, s3, {q*4096}')
        a('s_mov_b32 m0, s60')
        a('s_nop 0')
        for p in range(4):
            a(f'buffer_load_dwordx4 v{vDMA}, s[24:27], s60 offen offset:{1024*p} lds')
    a(f's_add_u32 s{sFO}, s{sFO}, 32')
    a('s_waitcnt vmcnt(0)')
    a('s_barrier')
    stamp(a, 4)
    for s in range(6):
        a(f'ds_read_b128 {rng("a", aK+4*s, 4)}, v{vDMA} offset:{1024*s}')
    a(f's_cmp_lg_u32 s{sW}, 3')
    a('s_cbranch_scc1 L_owner')

    def group1_and_first():
        for s in range(6):
            a(kread(0, s))
        spin(a, f'L_w1{group1_and_first.n}')
        group1_and_first.n += 1
        for q in range(2):
            a(f's_add_u32 m0, s{sTE}, {q*4096}')
            a('s_nop 0')
            for p in range(4):
                a(dma(q, p))
        a(f's_add_u32 s{sFO}, s{sFO}, 32')
        a('s_waitcnt lgkmcnt(0)')
        for s in range(6): a(qk_mfma('own', 0, s))
        for i in range(4):
            a(f'v_mov_b32 v{vS[3]+i}, 0')
            a(f'v_mov_b32 v{vS[3]+8+i}, 0')
        a('s_nop 7')
        stamp(a, 6)
        stamp(a, 11, True)
        if OPT['stamps']: a('s_waitcnt lgkmcnt(0)')
    group1_and_first.n = 0

    def post_loop(helper):
        stamp(a, 7)
        stamp(a, 12, True)
        a('s_waitcnt lgkmcnt(0)')
        ops = []
        for t in range(2):
            for ct in range(3):
                a(pv_mfma('own', 3, t, ct))
                if t == 0:
                    a(f'ds_read_b128 {rng("a", aV+4*ct, 4)}, v{vDMA} offset:{6144+1024*ct}')
        if not helper:
            for s in range(6): a(qk_mfma('B0', 1, s))
        half_softmax(a, 0, 'own')
        a('s_waitcnt lgkmcnt(0)')
        a('s_nop 0')
        for ct in range(3):
            a(pv_mfma('own', 0, 0, ct))
        if not helper:
            half_softmax(a, 1, 'B0')
            a('s_nop 1')
            for ct in range(3):
                a(pv_mfma('B0', 1, 0, ct))

    a('s_waitcnt lgkmcnt(0)')
    for s in range(6): a(qk_mfma('own', 3, s, '0'))
    for s in range(6): a(qk_mfma('B0', 0, s, '0'))
    for s in range(6): a(qk_mfma('B1', 1, s, '0'))
    rowmax(a, 3, 'own', 2, 3)
    for s in range(6): a(qk_mfma('B2', 2, s, '0'))
    rowmax(a, 0, 'B0', 2, 3)
    rowmax(a, 1, 'B1', 2, 3)
    rowmax(a, 2, 'B2', 2, 3)
    stamp(a, 5)
    group1_and_first()
    gen_loop(a, True)
    post_loop(True)
    for e, t in enumerate(('B0', 'B1', 'B2')):
        k, b = rO[t]
        for j in range(12):
            a(f'ds_write_b128 v{vDMA}, {rng(k, b+4*j, 4)} offset:{MERGE0 + e*MERGE + 1024*j}' if MERGE0 + e*MERGE + 1024*j < 65536 else
              f'ds_write_b128 v5, {rng(k, b+4*j, 4)} offset:{MERGE0 + e*MERGE + 1024*j - 32768}')
            if e == 0 and j == 0:
                a(f'v_add_u32 v5, 32768, v{vDMA}')
    a('v_lshlrev_b32 v2, 2, v1')
    a(f'v_add_u32 v2, {MERGE0}, v2')
    for e, t in enumerate(('B0', 'B1', 'B2')):
        a(f'ds_write_b32 v2, v{vL[t]} offset:{e*MERGE + 12288}')
    a('s_waitcnt lgkmcnt(0)')
    a('s_barrier')
    tile_out(a, 'own', sXo)
    stamp(a, 8)
    stamp_store(a, 11)
    a('s_endpgm')
    slow_path(a, 'h')
    a.label('L_owner')
    a('s_waitcnt lgkmcnt(0)')
    for s in range(6): a(qk_mfma('own', 3, s, '0'))
    for s in range(6): a(qk_mfma('B0', 1, s, '0'))
    a('s_nop 7')
    rowmax(a, 3, 'own', 2, 3)
    rowmax(a, 1, 'B0', 2, 3)
    stamp(a, 5)
    group1_and_first()
    gen_loop(a, False)
    post_loop(False)
    a(f's_mul_i32 s60, s{sW}, {MERGE}')
    a(f's_add_u32 s60, s60, {MERGE0}')
    a(f'v_add_u32 v6, s60, v{vDMA}')
    a('v_lshlrev_b32 v7, 2, v1')
    a('v_add_u32 v7, s60, v7')
    a('s_nop 7')
    tile_out(a, 'own', sXo)
    a('s_barrier')
    T = vM['own']
    for j in range(12):
        a(f'ds_read_b128 {rng("v", T+4*j, 4)}, v6 offset:{1024*j}')
    a('ds_read_b32 v8, v7 offset:12288')
    b = rO['B0'][1]
    for j in range(12):
        a(f's_waitcnt lgkmcnt({12-j})')
        a(f'v_pk_add_f32 v[{b+4*j}:{b+4*j+1}], v[{b+4*j}:{b+4*j+1}], v[{T+4*j}:{T+4*j+1}]')
        a(f'v_pk_add_f32 v[{b+4*j+2}:{b+4*j+3}], v[{b+4*j+2}:{b+4*j+3}], v[{T+4*j+2}:{T+4*j+3}]')
    a('s_waitcnt lgkmcnt(0)')
    a(f'v_add_f32 v{vL["B0"]}, v{vL["B0"]}, v8')
    tile_out(a, 'B0', sXb[0])
    stamp(a, 8)
    stamp_store(a, 11)
    a('s_endpgm')
    slow_path(a, 'o')

def build(path):
    a = Asm()
    a.raw(f'.globl {NAME}')
    a.raw('.p2align 8')
    a.raw(f'.type {NAME},@function')
    a.label(NAME)
    a(f'''
    s_cmp_ge_u32 s2, {NPROD+NCONS}
    s_cbranch_scc1 L_end
    ''')
    stamp(a, 0, True)
    stamp(a, 1)
    a(f'''
    s_load_dwordx8 s[4:11], s[0:1], 0
    s_load_dwordx2 s[12:13], s[0:1], 32
    s_load_dwordx4 s[44:47], s[0:1], 40
    v_lshrrev_b32 v2, 6, v0
    v_and_b32 v1, 63, v0
    v_readfirstlane_b32 s{sW}, v2
    s_waitcnt lgkmcnt(0)
    s_mov_b32 s16, s4
    s_mov_b32 s17, s5
    s_mov_b32 s18, {X_BYTES}
    s_mov_b32 s19, 0x20000
    s_mov_b32 s24, s46
    s_mov_b32 s25, s47
    s_mov_b32 s26, {KV_BYTES}
    s_mov_b32 s27, 0x20000
    s_mov_b32 s48, s44
    s_mov_b32 s49, s45
    s_mov_b32 s50, 256
    s_mov_b32 s51, 0x20000
    s_cmp_lt_u32 s2, {NPROD}
    s_cbranch_scc1 L_producer
    ''')
    gen_consumer(a)
    gen_producer(a)
    a.label('L_end')
    a('s_endpgm')
    out = HEADER
    out += f'; @launch grid=({NPROD+NCONS},1,1) block=(256,1,1) lds={LDS_TOTAL}\n'
    out += '.amdgcn_target "amdgcn-amd-amdhsa--gfx950"\n.text\n'
    out += a.text()
    out += '.section .rodata,"a"\n.p2align 6\n'
    out += kd(NAME, 512, 256)
    open(path, 'w').write(out)

if __name__ == '__main__':
    for o in sys.argv[2:]:
        OPT[o] = True
    build(sys.argv[1] if len(sys.argv) > 1 else 'k3.s')
```

```python
import sys
from gen import Asm, f32bits, kd, HEADER, X_BYTES, KV_BYTES, CST
import gen2
from gen2 import (vLB, vDMA, vL, vXO, vS, vM, rO, aX, aK, aV, BUF, MERGE, rng, qk_mfma, pv_mfma,
                  softmax_ops, schedule_stage, kread, vread)

NAME = 'standalone__window_attn_twins__vision_kernel'
NPROD = 32
NCONS = 224
LDS_TOTAL = 3 * BUF + 1024
OPT = dict(stamps=False, sleep=2, ldsc='sc0 sc1', stsc='sc0 sc1')

sW = 14
sCNT = 28; sT = 29; sG = [30, 31, 32]; sDn = 33; sDp = 34; sTE = 35; sTMP = 36; sXo = 37; sXb = [38, 39, 40]
sFO = 41
sD0 = 42
sK0 = 43
sMODE = 15
sFM = 61
sSP = 52
vF = 22
vZ = 24
FLAGV = 0x01010101

ST0 = 62
def stamp(a, idx, rt=False):
    if OPT['stamps']:
        a(f's_mem{"real" if rt else ""}time s[{ST0+2*idx}:{ST0+1+2*idx}]')
def stamp_store(a, n):
    if not OPT['stamps']: return
    a('s_mov_b64 exec, -1')
    a('s_waitcnt vmcnt(0) lgkmcnt(0)')
    a(f's_memtime s[{ST0+2*(n-2)}:{ST0+1+2*(n-2)}]')
    a(f's_memrealtime s[{ST0+2*(n-1)}:{ST0+1+2*(n-1)}]')
    a('s_waitcnt lgkmcnt(0)')
    if OPT.get('dbgout'):
        lab = f'L_dbg{len(a.lines)}'
        a('s_cmp_lg_u32 s2, 130')
        a(f's_cbranch_scc1 {lab}')
        a(f's_cmp_lg_u32 s{sW}, 0')
        a(f's_cbranch_scc1 {lab}')
        a('v_mov_b32 v2, 0')
        for i in range(13):
            base = ST0 if i in (0, 10, 11, 12) else ST0 + 2
            a(f's_sub_u32 s3, s{ST0+2*i}, s{base}')
            a('v_mov_b32 v3, s3')
            a(f'buffer_store_dword v3, v2, s[48:51], 0 offen offset:{4*i}')
        a.label(lab)
        return
    a('s_mov_b32 s26, 0x1000000')
    a('s_lshl_b32 s3, s2, 2')
    a(f's_add_u32 s3, s3, s{sW}')
    a('s_lshl_b32 s3, s3, 6')
    a('s_add_u32 s3, s3, 0x100000')
    a('v_mov_b32 v2, 0')
    for i in range(n):
        a(f'v_mov_b32 v3, s{ST0+2*i}')
        a(f'buffer_store_dword v3, v2, s[24:27], s3 offen offset:{4*i}')

P_WKV = 0; P_WO = 36864; P_XS = 55296; P_KV = 56064
def gen_producer(a):
    XB = [16, 64]
    accA, accB, tmp = 112, 120, 128
    W1, W2, XSF, DD, KVF, CV = 136, 172, 208, 220, 232, 244
    a.label('L_producer')
    a(f'''
    s_mov_b32 s52, s6
    s_mov_b32 s53, s7
    s_mov_b32 s54, 18432
    s_mov_b32 s55, 0x20000
    s_mov_b32 s56, s8
    s_mov_b32 s57, s9
    s_mov_b32 s58, 36864
    s_mov_b32 s59, 0x20000
    s_mov_b32 s20, s10
    s_mov_b32 s21, s11
    s_mov_b32 s22, 18432
    s_mov_b32 s23, 0x20000
    s_mul_i32 s28, s{sW}, 9216
    s_mov_b32 m0, s28
    v_lshlrev_b32 v8, 4, v1
    v_and_b32 v6, 7, v1
    v_lshrrev_b32 v7, 3, v1
    ''')
    for q in range(3):
        n = 4 if q < 2 else 1
        for p in range(n):
            a(f'buffer_load_dwordx4 v8, s[56:59], s28 offen offset:{1024*p} lds')
        if q < 2:
            a('s_add_u32 s28, s28, 4096')
            a('s_mov_b32 m0, s28')
            a('s_nop 0')
    a(f'''
    s_mul_i32 s29, s{sW}, 4608
    s_add_u32 s30, s29, {P_WO}
    s_mov_b32 m0, s30
    v_lshrrev_b32 v9, 4, v1
    v_and_b32 v10, 15, v1
    ''')
    for p in range(4):
        a(f'buffer_load_dwordx4 v8, s[20:23], s29 offen offset:{1024*p} lds')
    a('''
    s_add_u32 s29, s29, 4096
    s_add_u32 s30, s30, 4096
    s_mov_b32 m0, s30
    s_mov_b32 exec_hi, 0
    buffer_load_dwordx4 v8, s[20:23], s29 offen lds
    s_mov_b64 exec, -1
    ''')
    a(f'''
    v_mul_u32_u24 v11, 192, v10
    v_lshl_add_u32 v11, v9, 4, v11
    s_and_b32 s29, s{sW}, 1
    s_mul_i32 s29, s29, 9216
    s_cmp_ge_u32 s{sW}, 2
    s_cbranch_scc1 L_p_nowq
    ''')
    for j in range(3):
        for s in range(3):
            r = W2 + 4 * (3 * j + s)
            a(f'buffer_load_dwordx4 v[{r}:{r+3}], v11, s[52:55], s29 offen offset:{64*s}')
        if j < 2:
            a('s_add_u32 s29, s29, 3072')
    a.label('L_p_nowq')
    a(f'''
    v_lshrrev_b32 v12, 6, v0
    v_lshl_add_u32 v2, v12, 3, v6
    v_mul_u32_u24 v2, 192, v2
    v_and_b32 v13, 3, v7
    v_lshl_add_u32 v3, v13, 4, v2
    v_add_u32 v3, 128, v3
    v_lshrrev_b32 v14, 2, v7
    s_mov_b32 s29, {4*43008}
    v_mul_lo_u32 v15, v14, s29
    v_add_u32 v3, v3, v15
    v_lshl_add_u32 v2, v7, 4, v2
    ''')
    def xbase(dst, u):
        a(f's_mul_i32 s29, s{u}, 9363')
        a('s_lshr_b32 s29, s29, 16')
        a('s_mul_i32 s30, s29, 7')
        a(f's_sub_u32 s30, s{u}, s30')
        a('s_mul_i32 s29, s29, 344064')
        a('s_mul_i32 s30, s30, 6144')
        a(f's_add_u32 s{dst}, s29, s30')
    def xload(buf, i, sb):
        r = XB[buf] + 4 * i
        a(f'buffer_load_dwordx4 v[{r}:{r+3}], v{2 if i < 8 else 3}, s[16:19], s{sb} offen')
    def xload_all(buf, base):
        a(f's_mov_b32 s32, s{base}')
        for r in range(8):
            xload(buf, r, 32)
            if r < 4: xload(buf, 8 + r, 32)
            if r < 7: a('s_add_u32 s32, s32, 43008')
    a('s_mov_b32 s33, s2')
    xbase(31, 33); xload_all(0, 31)
    a('s_add_u32 s33, s33, 32')
    xbase(31, 33); xload_all(1, 31)
    a('s_add_u32 s33, s33, 32')
    a(f'''
    v_lshrrev_b32 v250, 2, v10
    v_and_b32 v251, 3, v10
    v_lshl_add_u32 v250, v9, 3, v250
    s_mul_i32 s29, s{sW}, 96
    v_mul_u32_u24 v4, 384, v250
    v_lshl_add_u32 v4, v251, 3, v4
    v_add_u32 v4, s29, v4
    s_and_b32 s30, s{sW}, 1
    s_mul_i32 s30, s30, 96
    s_add_u32 s30, s30, {P_WO}
    v_mul_u32_u24 v5, 192, v250
    v_lshl_add_u32 v5, v251, 3, v5
    v_add_u32 v5, s30, v5
    v_mul_u32_u24 v11, 192, v251
    v_lshl_add_u32 v11, v9, 4, v11
    v_add_u32 v11, {P_XS}, v11
    v_mul_u32_u24 v252, 384, v251
    v_add_u32 v252, {P_KV}, v252
    s_lshr_b32 s30, s{sW}, 1
    s_mul_i32 s30, s30, 192
    v_lshl_add_u32 v12, v9, 4, v252
    v_add_u32 v12, s30, v12
    v_lshl_add_u32 v252, v9, 3, v252
    v_add_u32 v253, s29, v252
    s_mul_i32 s30, s{sW}, 192
    s_add_u32 s30, s30, {P_XS}
    v_lshlrev_b32 v254, 4, v7
    v_add_u32 v254, s30, v254
    v_lshlrev_b32 v15, 4, v13
    v_lshl_add_u32 v15, v14, 3, v15
    v_add_u32 v15, s30, v15
    v_add_u32 v15, 128, v15
    v_mov_b32 v13, v253
    v_mov_b32 v14, v254
    ''')
    a('''
    v_lshrrev_b32 v250, 1, v9
    v_lshl_add_u32 v250, v250, 5, v10
    v_lshlrev_b32 v250, 4, v250
    v_and_b32 v251, 1, v9
    v_lshl_add_u32 v250, v251, 3, v250
    v_lshlrev_b32 v251, 4, v10
    v_mov_b32 v252, 1
    v_mov_b32 v253, 0
    s_mov_b32 s34, 0xffff0000
    s_mov_b32 s35, 0x3c800000
    s_mov_b32 s36, 0x%08x
    s_mov_b32 s37, s2
    s_waitcnt vmcnt(24)
    s_barrier
    ''' % f32bits(CST))
    stamp(a, 2)
    for j in range(3):
        for s in range(3):
            for half in range(2):
                d = W1 + (3 * j + s) * 4 + 2 * half
                a(f'ds_read_b64_tr_b16 v[{d}:{d+1}], v4 offset:{s*12288 + half*1536 + j*32}')
    a(f's_cmp_lt_u32 s{sW}, 2')
    a('s_cbranch_scc1 L_p_nowo')
    for j in range(3):
        for s in range(3):
            for half in range(2):
                d = W2 + (3 * j + s) * 4 + 2 * half
                a(f'ds_read_b64_tr_b16 v[{d}:{d+1}], v5 offset:{s*6144 + half*768 + j*32}')
    a.label('L_p_nowo')
    a('s_waitcnt vmcnt(12)')
    stamp(a, 3)
    a.label('L_p_loop')
    for buf in range(2):
        a('s_waitcnt vmcnt(15)')
        xbase(31, 33)
        a('s_add_u32 s33, s33, 32')
        a('s_mov_b32 s32, s31')
        def acc(i, first, A):
            r = XB[buf] + 4 * i
            dst = A if first else tmp
            for d in range(4):
                a(f'v_lshlrev_b32 v{dst+2*d}, 16, v{r+d}')
                a(f'v_and_b32 v{dst+2*d+1}, s34, v{r+d}')
            if not first:
                for d in range(4):
                    a(f'v_pk_add_f32 v[{A+2*d}:{A+2*d+1}], v[{A+2*d}:{A+2*d+1}], v[{tmp+2*d}:{tmp+2*d+1}]')
        for r in range(8):
            acc(r, r == 0, accA)
            xload(buf, r, 32)
            if r < 4:
                acc(8 + r, r == 0, accB)
                xload(buf, 8 + r, 32)
            if r < 7: a('s_add_u32 s32, s32, 43008')
        for i in range(4):
            a(f'v_permlane32_swap_b32 v{accB+i}, v{accB+4+i}')
        for i in range(4):
            a(f'v_add_f32 v{accB+i}, v{accB+i}, v{accB+4+i}')
        regs = [accA + d for d in range(8)] + [accB + d for d in range(4)]
        for ctl in ('quad_perm:[1,0,3,2]', 'quad_perm:[2,3,0,1]', 'row_half_mirror'):
            for r in regs:
                a(f'v_add_f32_dpp v{r}, v{r}, v{r} {ctl} row_mask:0xf bank_mask:0xf')
        for r in regs:
            a(f'v_mul_f32 v{r}, s35, v{r}')
        for d in range(4):
            a(f'v_cvt_pk_bf16_f32 v{tmp+d}, v{accA+2*d}, v{accA+2*d+1}')
        for d in range(2):
            a(f'v_cvt_pk_bf16_f32 v{tmp+4+d}, v{accB+2*d}, v{accB+2*d+1}')
        a(f'''
        v_cmp_eq_u32 vcc, 0, v6
        s_and_saveexec_b64 s[60:61], vcc
        ds_write_b128 v14, v[{tmp}:{tmp+3}]
        ds_write_b64 v15, v[{tmp+4}:{tmp+5}]
        s_mov_b64 exec, s[60:61]
        ''')
        lbl = f'L_p_nopub{buf}'
        if buf == 0:
            a(f's_cmp_lt_u32 s37, 32')
            a('s_waitcnt lgkmcnt(0)')
            a(f's_cbranch_scc1 {lbl}')
            a('s_waitcnt vmcnt(12)')
            a('s_barrier')
            a(f's_cmp_lg_u32 s{sW}, 0')
            a(f's_cbranch_scc1 {lbl}b')
            a('s_sub_u32 s29, s37, 32')
            a('s_mov_b64 exec, 1')
            a(f'buffer_store_byte v252, v253, s[48:51], s29 offen {OPT["stsc"]}')
            a('s_mov_b64 exec, -1')
            a(f's_branch {lbl}b')
            a.label(lbl)
            a('s_barrier')
            a.label(lbl + 'b')
        else:
            a('s_waitcnt vmcnt(12) lgkmcnt(0)')
            a('s_barrier')
            a(f's_cmp_lg_u32 s{sW}, 0')
            a(f's_cbranch_scc1 {lbl}b')
            a('s_sub_u32 s29, s37, 32')
            a('s_mov_b64 exec, 1')
            a(f'buffer_store_byte v252, v253, s[48:51], s29 offen {OPT["stsc"]}')
            a('s_mov_b64 exec, -1')
            a.label(lbl + 'b')
        for s in range(3):
            a(f'ds_read_b128 v[{XSF+4*s}:{XSF+3+4*s}], v11 offset:{64*s}')
        a(f'''
        s_lshr_b32 s29, s37, 3
        s_mul_i32 s29, s29, 12288
        s_and_b32 s30, s37, 7
        s_lshl_b32 s38, s30, 6
        s_add_u32 s38, s38, s29
        s_and_b32 s39, s{sW}, 1
        s_mul_i32 s39, s39, 3072
        s_add_u32 s38, s38, s39
        s_lshr_b32 s30, s30, 2
        s_mul_i32 s30, s30, 3072
        s_add_u32 s39, s29, s30
        s_add_u32 s39, s39, 6144
        s_and_b32 s30, s37, 1
        s_lshl_b32 s30, s30, 9
        s_add_u32 s39, s39, s30
        s_and_b32 s30, s37, 2
        s_lshl_b32 s30, s30, 2
        s_add_u32 s39, s39, s30
        ''')
        for s in range(3):
            a(f's_waitcnt lgkmcnt({2-s})')
            for j in range(3):
                w = W1 + (3 * j + s) * 4
                c = '0' if s == 0 else f'v[{DD+4*j}:{DD+3+4*j}]'
                a(f'v_mfma_f32_16x16x32_bf16 v[{DD+4*j}:{DD+3+4*j}], v[{w}:{w+3}], v[{XSF+4*s}:{XSF+3+4*s}], {c}')
        a('v_cmp_gt_u32 vcc, 4, v10')
        a('s_nop 7')
        for j in range(3):
            a(f'v_cvt_pk_bf16_f32 v{CV+2*j}, v{DD+4*j}, v{DD+4*j+1}')
            a(f'v_cvt_pk_bf16_f32 v{CV+2*j+1}, v{DD+4*j+2}, v{DD+4*j+3}')
        a('s_and_saveexec_b64 s[60:61], vcc')
        for j in range(3):
            a(f'ds_write_b64 v13, v[{CV+2*j}:{CV+2*j+1}] offset:{32*j}')
        a('s_mov_b64 exec, s[60:61]')
        a('s_waitcnt lgkmcnt(0)')
        a('s_barrier')
        for s in range(3):
            a(f'ds_read_b128 v[{KVF+4*s}:{KVF+3+4*s}], v12 offset:{64*s}')
        a(f's_cmp_ge_u32 s{sW}, 2')
        a(f's_cbranch_scc1 L_p_v{buf}')
        for s in range(3):
            a(f's_waitcnt lgkmcnt({2-s})')
            for j in range(3):
                w = W2 + (3 * j + s) * 4
                c = '0' if s == 0 else f'v[{DD+4*j}:{DD+3+4*j}]'
                a(f'v_mfma_f32_16x16x32_bf16 v[{DD+4*j}:{DD+3+4*j}], v[{w}:{w+3}], v[{KVF+4*s}:{KVF+3+4*s}], {c}')
        a('s_nop 7')
        for r in range(12):
            a(f'v_mul_f32 v{DD+r}, s36, v{DD+r}')
        for j in range(3):
            a(f'v_cvt_pk_bf16_f32 v{CV+2*j}, v{DD+4*j}, v{DD+4*j+1}')
            a(f'v_cvt_pk_bf16_f32 v{CV+2*j+1}, v{DD+4*j+2}, v{DD+4*j+3}')
        a('s_and_saveexec_b64 s[60:61], vcc')
        for j in range(3):
            a(f'buffer_store_dwordx2 v[{CV+2*j}:{CV+2*j+1}], v250, s[24:27], s38 offen offset:{1024*j} {OPT["stsc"]}')
        a('s_mov_b64 exec, s[60:61]')
        a(f's_branch L_p_e{buf}')
        a.label(f'L_p_v{buf}')
        for s in range(3):
            a(f's_waitcnt lgkmcnt({2-s})')
            for j in range(3):
                w = W2 + (3 * j + s) * 4
                c = '0' if s == 0 else f'v[{DD+4*j}:{DD+3+4*j}]'
                a(f'v_mfma_f32_16x16x32_bf16 v[{DD+4*j}:{DD+3+4*j}], v[{KVF+4*s}:{KVF+3+4*s}], v[{w}:{w+3}], {c}')
        a('s_nop 7')
        for j in range(3):
            a(f'v_cvt_pk_bf16_f32 v{CV+2*j}, v{DD+4*j}, v{DD+4*j+1}')
            a(f'v_cvt_pk_bf16_f32 v{CV+2*j+1}, v{DD+4*j+2}, v{DD+4*j+3}')
        a(f's_cmp_eq_u32 s{sW}, 3')
        a('s_mov_b64 exec, 0xffff')
        a(f's_cbranch_scc1 L_p_v3{buf}')
        for j, off in enumerate((0, 256, 1024)):
            a(f'buffer_store_dwordx2 v[{CV+2*j}:{CV+2*j+1}], v251, s[24:27], s39 offen offset:{off} {OPT["stsc"]}')
        a(f's_branch L_p_ve{buf}')
        a.label(f'L_p_v3{buf}')
        for j, off in enumerate((1280, 2048, 2304)):
            a(f'buffer_store_dwordx2 v[{CV+2*j}:{CV+2*j+1}], v251, s[24:27], s39 offen offset:{off} {OPT["stsc"]}')
        a.label(f'L_p_ve{buf}')
        a('s_mov_b64 exec, -1')
        a.label(f'L_p_e{buf}')
        if OPT['stamps'] and buf == 0:
            a('s_cmp_ge_u32 s37, 32')
            a('s_cbranch_scc1 L_p_st4')
            stamp(a, 4)
            a.label('L_p_st4')
        a('s_add_u32 s37, s37, 32')
        if buf == 0:
            a(f's_cmp_ge_u32 s37, {7*32}')
            a('s_cbranch_scc1 L_p_done')
    a('s_branch L_p_loop')
    a.label('L_p_done')
    a('s_waitcnt vmcnt(0)')
    a('s_barrier')
    a(f's_cmp_lg_u32 s{sW}, 0')
    a('s_cbranch_scc1 L_p_fin')
    a('s_sub_u32 s29, s37, 32')
    a('s_mov_b64 exec, 1')
    a(f'buffer_store_byte v252, v253, s[48:51], s29 offen {OPT["stsc"]}')
    a.label('L_p_fin')
    for i in (5, 6, 7, 8, 11, 12): stamp(a, i)
    stamp_store(a, 11)
    a('s_endpgm')

def dma(q, p):
    return f'buffer_load_dwordx4 v{vDMA}, s[24:27], s{sG[q]} offen offset:{1024*p} lds'
def flag_load():
    return f'buffer_load_dwordx2 v[{vF}:{vF+1}], v{vZ}, s[48:51], s{sFO} offen {OPT["ldsc"]}'

def spin(a, lbl):
    a.label(lbl)
    a(flag_load())
    a('s_waitcnt vmcnt(0)')
    a(f'v_and_b32 v{vF}, v{vF}, v{vF+1}')
    a(f'v_cmp_ne_u32 vcc, {FLAGV:#x}, v{vF}')
    a(f's_cbranch_vccz {lbl}_ok')
    a(f's_sleep {OPT["sleep"]}')
    a(f's_add_u32 s{sSP}, s{sSP}, 1')
    a(f's_cmp_lt_u32 s{sSP}, 0x40000')
    a(f's_cbranch_scc1 {lbl}')
    a.label(lbl + '_ok')

def gen_loop(a, helper):
    nm = 'h' if helper else 'o'
    B = ['B0', 'B1', 'B2'] if helper else ['B0', 'B0', 'B0']
    units = [('own', 0), (B[0], 0), ('own', 1), (B[1], 1), ('own', 2), (B[2], 2), ('own', 3)]
    sb = [0, 1, 2, 0, 1, 2, 3]
    a.raw('.p2align 6')
    a.label(f'L_loop_{nm}')
    kload = {0: 1, 2: 2, 4: 3, 5: 0}
    vload = {2: 1, 4: 2, 6: 3, 0: 0}
    for u in range(7):
        nxt = (u + 1) % 7
        prv = (u - 1) % 7
        mf = [qk_mfma(units[nxt][0], sb[nxt], s) for s in range(6)]
        mf += [pv_mfma(units[prv][0], sb[prv], t, ct) for t in range(2) for ct in range(3)]
        shadow = {}; mem = {}; pre = {}; extra = []; post = {}
        if u in kload:
            for s in range(6):
                mem.setdefault(s, []).append(kread(kload[u], s))
        if u in vload:
            for f in range(6):
                mem.setdefault(6 + f, []).append(vread(vload[u], f))
        if prv in vload:
            shadow[5] = f's_waitcnt lgkmcnt({5 if u in kload else 0})'
        if u in kload:
            shadow[11] = f's_waitcnt lgkmcnt({5 if u in vload else 0})'
        if u == 1:
            shadow[0] = f's_add_u32 m0, s{sTE}, 8192'
            for i, g in enumerate((1, 3, 6, 8)):
                mem.setdefault(g, []).append(dma(2, i))
            shadow[2] = f's_add_u32 s{sG[0]}, s{sG[0]}, {BUF}'
            shadow[4] = f's_add_u32 s{sG[1]}, s{sG[1]}, {BUF}'
            shadow[9] = f's_add_u32 s{sG[2]}, s{sG[2]}, {BUF}'
            shadow[10] = f's_cmp_lt_u32 s{sCNT}, 5'
            shadow[11] = f's_cselect_b32 s{sTMP}, 0, s{sK0}'
            extra += [f'v_add_u32 v{vLB[3]}, s{sDp}, v{vLB[3]}']
        if u == 2:
            shadow[0] = f's_sub_u32 s{sD0}, s{sDn}, s{sTMP}'
        if u == 3:
            mem.setdefault(0, []).append(flag_load())
            extra += [f'v_add_u32 v{vLB[0]}, s{sD0}, v{vLB[0]}',
                      f'v_add_u32 v{vLB[1]}, s{sDn}, v{vLB[1]}']
            shadow[1] = f's_cmp_lt_u32 s{sCNT}, 5'
            shadow[2] = f's_cselect_b32 s{sTE}, s{sT}, 0x30000'
            shadow[3] = f's_add_u32 s{sT}, s{sT}, s{sDp}'
            shadow[10] = 's_waitcnt vmcnt(0)'
            pre[10] = ['s_barrier']
            pre[11] = [f'v_and_b32 v{vF}, v{vF}, v{vF+1}', f'v_cmp_ne_u32 vcc, {FLAGV:#x}, v{vF}']
        if u == 4:
            shadow[1] = f's_cbranch_vccnz L_slow_{nm}\nL_back_{nm}:'
            shadow[2] = f's_add_u32 s{sFO}, s{sFO}, 32'
            shadow[3] = f's_mov_b32 m0, s{sTE}'
            shadow[4] = f's_min_u32 s{sFO}, s{sFO}, s{sFM}'
        if u == 5:
            extra += [f'v_add_u32 v{vLB[2]}, s{sDn}, v{vLB[2]}']
            for i, g in enumerate((6, 7, 9, 10)):
                mem.setdefault(g, []).append(dma(0, i))
        if u == 6:
            shadow[0] = f's_add_u32 m0, s{sTE}, 4096'
            for i, g in enumerate((1, 2, 4, 5)):
                mem.setdefault(g, []).append(dma(1, i))
            shadow[3] = f's_add_u32 s{sTMP}, s{sDn}, s{sDp}'
            shadow[6] = f's_mov_b32 s{sDp}, s{sDn}'
            shadow[7] = f's_sub_u32 s{sDn}, 0, s{sTMP}'
            shadow[8] = f's_add_u32 s{sCNT}, s{sCNT}, 1'
            shadow[9] = f's_cmp_lt_u32 s{sCNT}, 6'
        schedule_stage(a, mf, shadow, mem, pre, softmax_ops(units[u][0], sb[u]), extra)
    a(f's_cbranch_scc1 L_loop_{nm}')

def slow_path(a, nm):
    a.label(f'L_slow_{nm}')
    spin(a, f'L_spin_{nm}')
    a(f's_branch L_back_{nm}')

def rowmax(a, sbuf, tile, t0, t1, n=16):
    S = vS[sbuf]
    a(f'v_max3_f32 v{t0}, v{S}, v{S+1}, v{S+2}')
    a(f'v_max3_f32 v{t1}, v{S+3}, v{S+4}, v{S+5}')
    i = 6
    flip = 0
    while i + 1 < n:
        t = (t0, t1)[flip]; flip ^= 1
        a(f'v_max3_f32 v{t}, v{t}, v{S+i}, v{S+i+1}')
        i += 2
    a(f'v_max_f32 v{t0}, v{t0}, v{t1}')
    a(f'v_mov_b32 v{t1}, v{t0}')
    a('s_nop 1')
    a(f'v_permlane32_swap_b32 v{t0}, v{t1}')
    a('s_nop 0')
    a(f'v_max_f32 v{t0}, v{t0}, v{t1}')
    a(f'v_sub_f32 v{vM[tile]}, 0, v{t0}')
    for i in range(1, 16):
        a(f'v_mov_b32 v{vM[tile]+i}, v{vM[tile]}')

def half_softmax(a, sbuf, tile):
    S = vS[sbuf]; L = vL[tile]
    for i in range(8):
        a(f'v_exp_f32 v{S+i}, v{S+i}')
    for i in range(8):
        a(f'v_add_f32 v{L}, v{L}, v{S+i}')
    for j in range(4):
        a(f'v_cvt_pk_bf16_f32 v{S+j}, v{S+2*j}, v{S+2*j+1}')

MERGE0 = BUF

def tile_out(a, tile, soff):
    gen2.tile_out(a, tile, soff)

def gen_consumer(a):
    a(f'''
    s_sub_u32 s3, s2, {NPROD}
    v_lshlrev_b32 v{vDMA}, 4, v1
    v_and_b32 v3, 31, v1
    v_lshrrev_b32 v4, 5, v1
    v_mul_u32_u24 v{vXO}, 192, v3
    v_lshl_add_u32 v{vXO}, v4, 4, v{vXO}
    v_mov_b32 v{vZ}, 0
    s_mul_i32 s{sTMP}, s3, 43008
    s_mul_i32 s{sXo}, s{sW}, 6144
    s_add_u32 s{sXo}, s{sXo}, s{sTMP}
    s_add_u32 s{sXb[0]}, s{sXo}, {4*6144}
    s_add_u32 s{sXb[1]}, s{sTMP}, {5*6144}
    s_add_u32 s{sXb[2]}, s{sTMP}, {6*6144}
    s_add_u32 s3, s{sTMP}, {4*6144}
    s_cmp_eq_u32 s{sW}, 3
    s_cselect_b32 s{sXb[0]}, s3, s{sXb[0]}
    s_mov_b32 s20, s12
    s_mov_b32 s21, s13
    s_mov_b32 s22, {X_BYTES}
    s_mov_b32 s23, 0x20000
    ''')
    def xload(tile, soff):
        for s in range(6):
            a(f'buffer_load_dwordx4 {rng("a", aX[tile]+4*s, 4)}, v{vXO}, s[16:19], s{soff} offen offset:{32*s}')
    xload('own', sXo)
    xload('B0', sXb[0])
    a(f's_cmp_lg_u32 s{sW}, 3')
    a('s_cbranch_scc1 L_skip_xb')
    xload('B1', sXb[1])
    xload('B2', sXb[2])
    a.label('L_skip_xb')
    a(f'''
    s_mul_i32 s3, s{sW}, 12288
    s_mov_b32 s{sCNT}, 0
    s_add_u32 s{sT}, s3, {2*BUF}
    s_add_u32 s{sTE}, s3, {BUF}
    s_add_u32 s{sG[0]}, s3, {BUF}
    s_add_u32 s{sG[1]}, s3, {BUF+4096}
    s_add_u32 s{sG[2]}, s3, {BUF+8192}
    s_mov_b32 s{sDn}, {BUF}
    s_mov_b32 s{sDp}, {(-2*BUF) & 0xffffffff}
    s_lshl_b32 s{sFO}, s{sW}, 3
    s_add_u32 s{sFM}, s{sFO}, 192
    s_mov_b32 s{sSP}, 0
    ''')
    for i in range(4):
        a(f's_add_u32 s60, s{sW}, {1+i}')
        a('s_and_b32 s60, s60, 3')
        a('s_mul_i32 s60, s60, 12288')
        if i == 0:
            a(f's_mov_b32 s{sK0}, s60')
        if i == 3:
            a(f's_add_u32 s60, s60, {2*BUF}')
        a(f'v_add_u32 v{vLB[i]}, s60, v{vDMA}')
    for t in ('own', 'B0'):
        for i in range(48):
            a(f'v_mov_b32 v{rO[t][1]+i}, 0')
    for i in range(24):
        a(f'v_accvgpr_write_b32 a{aV+i}, 0')
    for i in range(96):
        a(f'v_accvgpr_write_b32 a{i}, 0')
    for t in vL:
        a(f'v_mov_b32 v{vL[t]}, 0')
    stamp(a, 2)
    spin(a, 'L_w0')
    stamp(a, 3)
    for q in range(3):
        a(f's_add_u32 s60, s3, {q*4096}')
        a('s_mov_b32 m0, s60')
        a('s_nop 0')
        for p in range(4):
            a(f'buffer_load_dwordx4 v{vDMA}, s[24:27], s60 offen offset:{1024*p} lds')
    a(f's_add_u32 s{sFO}, s{sFO}, 32')
    a('s_waitcnt vmcnt(0)')
    a('s_barrier')
    stamp(a, 4)
    for s in range(6):
        a(f'ds_read_b128 {rng("a", aK+4*s, 4)}, v{vDMA} offset:{1024*s}')
    a(f's_cmp_lg_u32 s{sW}, 3')
    a('s_cbranch_scc1 L_owner')

    def group1_and_first():
        for s in range(6):
            a(kread(0, s))
        spin(a, f'L_w1{group1_and_first.n}')
        group1_and_first.n += 1
        for q in range(2):
            a(f's_add_u32 m0, s{sTE}, {q*4096}')
            a('s_nop 0')
            for p in range(4):
                a(dma(q, p))
        a(f's_add_u32 s{sFO}, s{sFO}, 32')
        a('s_waitcnt lgkmcnt(0)')
        for s in range(6): a(qk_mfma('own', 0, s))
        for i in range(4):
            a(f'v_mov_b32 v{vS[3]+i}, 0')
            a(f'v_mov_b32 v{vS[3]+8+i}, 0')
        a('s_nop 7')
        stamp(a, 6)
        stamp(a, 11, True)
        if OPT['stamps']: a('s_waitcnt lgkmcnt(0)')
    group1_and_first.n = 0

    def post_loop(helper):
        stamp(a, 7)
        stamp(a, 12, True)
        a('s_waitcnt lgkmcnt(0)')
        ops = []
        for t in range(2):
            for ct in range(3):
                a(pv_mfma('own', 3, t, ct))
                if t == 0:
                    a(f'ds_read_b128 {rng("a", aV+4*ct, 4)}, v{vDMA} offset:{6144+1024*ct}')
        if not helper:
            for s in range(6): a(qk_mfma('B0', 1, s))
        half_softmax(a, 0, 'own')
        a('s_waitcnt lgkmcnt(0)')
        a('s_nop 0')
        for ct in range(3):
            a(pv_mfma('own', 0, 0, ct))
        if not helper:
            half_softmax(a, 1, 'B0')
            a('s_nop 1')
            for ct in range(3):
                a(pv_mfma('B0', 1, 0, ct))

    a('s_waitcnt lgkmcnt(0)')
    for s in range(6): a(qk_mfma('own', 3, s, '0'))
    for s in range(6): a(qk_mfma('B0', 0, s, '0'))
    for s in range(6): a(qk_mfma('B1', 1, s, '0'))
    rowmax(a, 3, 'own', 2, 3)
    for s in range(6): a(qk_mfma('B2', 2, s, '0'))
    rowmax(a, 0, 'B0', 2, 3)
    rowmax(a, 1, 'B1', 2, 3)
    rowmax(a, 2, 'B2', 2, 3)
    stamp(a, 5)
    group1_and_first()
    gen_loop(a, True)
    post_loop(True)
    for e, t in enumerate(('B0', 'B1', 'B2')):
        k, b = rO[t]
        for j in range(12):
            a(f'ds_write_b128 v{vDMA}, {rng(k, b+4*j, 4)} offset:{MERGE0 + e*MERGE + 1024*j}' if MERGE0 + e*MERGE + 1024*j < 65536 else
              f'ds_write_b128 v5, {rng(k, b+4*j, 4)} offset:{MERGE0 + e*MERGE + 1024*j - 32768}')
            if e == 0 and j == 0:
                a(f'v_add_u32 v5, 32768, v{vDMA}')
    a('v_lshlrev_b32 v2, 2, v1')
    a(f'v_add_u32 v2, {MERGE0}, v2')
    for e, t in enumerate(('B0', 'B1', 'B2')):
        a(f'ds_write_b32 v2, v{vL[t]} offset:{e*MERGE + 12288}')
    a('s_waitcnt lgkmcnt(0)')
    a('s_barrier')
    tile_out(a, 'own', sXo)
    stamp(a, 8)
    stamp_store(a, 11)
    a('s_endpgm')
    slow_path(a, 'h')
    a.label('L_owner')
    a('s_waitcnt lgkmcnt(0)')
    for s in range(6): a(qk_mfma('own', 3, s, '0'))
    for s in range(6): a(qk_mfma('B0', 1, s, '0'))
    a('s_nop 7')
    rowmax(a, 3, 'own', 2, 3)
    rowmax(a, 1, 'B0', 2, 3)
    stamp(a, 5)
    group1_and_first()
    gen_loop(a, False)
    post_loop(False)
    a(f's_mul_i32 s60, s{sW}, {MERGE}')
    a(f's_add_u32 s60, s60, {MERGE0}')
    a(f'v_add_u32 v6, s60, v{vDMA}')
    a('v_lshlrev_b32 v7, 2, v1')
    a('v_add_u32 v7, s60, v7')
    a('s_nop 7')
    tile_out(a, 'own', sXo)
    a('s_barrier')
    T = vM['own']
    for j in range(12):
        a(f'ds_read_b128 {rng("v", T+4*j, 4)}, v6 offset:{1024*j}')
    a('ds_read_b32 v8, v7 offset:12288')
    b = rO['B0'][1]
    for j in range(12):
        a(f's_waitcnt lgkmcnt({12-j})')
        a(f'v_pk_add_f32 v[{b+4*j}:{b+4*j+1}], v[{b+4*j}:{b+4*j+1}], v[{T+4*j}:{T+4*j+1}]')
        a(f'v_pk_add_f32 v[{b+4*j+2}:{b+4*j+3}], v[{b+4*j+2}:{b+4*j+3}], v[{T+4*j+2}:{T+4*j+3}]')
    a('s_waitcnt lgkmcnt(0)')
    a(f'v_add_f32 v{vL["B0"]}, v{vL["B0"]}, v8')
    tile_out(a, 'B0', sXb[0])
    stamp(a, 8)
    stamp_store(a, 11)
    a('s_endpgm')
    slow_path(a, 'o')

def build(path):
    a = Asm()
    a.raw(f'.globl {NAME}')
    a.raw('.p2align 8')
    a.raw(f'.type {NAME},@function')
    a.label(NAME)
    a(f'''
    s_cmp_ge_u32 s2, {NPROD+NCONS}
    s_cbranch_scc1 L_end
    ''')
    stamp(a, 0, True)
    stamp(a, 1)
    a(f'''
    s_load_dwordx8 s[4:11], s[0:1], 0
    s_load_dwordx2 s[12:13], s[0:1], 32
    s_load_dwordx4 s[44:47], s[0:1], 40
    v_lshrrev_b32 v2, 6, v0
    v_and_b32 v1, 63, v0
    v_readfirstlane_b32 s{sW}, v2
    s_waitcnt lgkmcnt(0)
    s_mov_b32 s16, s4
    s_mov_b32 s17, s5
    s_mov_b32 s18, {X_BYTES}
    s_mov_b32 s19, 0x20000
    s_mov_b32 s24, s46
    s_mov_b32 s25, s47
    s_mov_b32 s26, {KV_BYTES}
    s_mov_b32 s27, 0x20000
    s_mov_b32 s48, s44
    s_mov_b32 s49, s45
    s_mov_b32 s50, 256
    s_mov_b32 s51, 0x20000
    s_cmp_lt_u32 s2, {NPROD}
    s_cbranch_scc1 L_producer
    ''')
    gen_consumer(a)
    gen_producer(a)
    a.label('L_end')
    a('s_endpgm')
    out = HEADER
    out += f'; @launch grid=({NPROD+NCONS},1,1) block=(256,1,1) lds={LDS_TOTAL}\n'
    out += '.amdgcn_target "amdgcn-amd-amdhsa--gfx950"\n.text\n'
    out += a.text()
    out += '.section .rodata,"a"\n.p2align 6\n'
    out += kd(NAME, 512, 256)
    open(path, 'w').write(out)

if __name__ == '__main__':
    for o in sys.argv[2:]:
        if '=' in o:
            k, v = o.split('=')
            OPT[k] = int(v) if v.isdigit() else v.replace('+', ' ')
        else:
            OPT[o] = True
    build(sys.argv[1] if len(sys.argv) > 1 else 'k3.s')
```

```python
import sys
from gen import Asm, f32bits, kd, HEADER, X_BYTES, KV_BYTES, CST
from gen2 import (vLB, vDMA, vL, vXO, vS, vM, rO, aX, aK, aV, BUF, MERGE, rng, qk_mfma, pv_mfma,
                  softmax_ops, schedule_stage, kread, vread)

NAME = 'standalone__window_attn_twins__vision_kernel'
NSP = 32
NCONS = 224
WVO_OFF = KV_BYTES
WQK_OFF = KV_BYTES + 18432
FLAG_OFF = KV_BYTES + 36864
WS_BYTES = FLAG_OFF + 256 * 128
QX_LDS = 2 * BUF
MX_LDS = 2 * BUF + 24576
LK_LDS = BUF + 18432
NC_LDS = LK_LDS + 768
OST = 6656
LDS_TOTAL = 3 * BUF + 2 * OST
XST = 2 * BUF
WQ_LDS = BUF
WVO_LDS = 12288
MERGE0 = BUF
OPT = dict(stamps=False, sleep=4, ldsc='sc1', stsc='sc1')

sW = 14
sCNT = 28; sT = 29; sG = [30, 31, 32]; sDn = 33; sDp = 34; sTE = 35; sTMP = 36; sXo = 37; sXb = 38
sXB = 39; sXS = 40
sFO = 41; sD0 = 42; sK0 = 43; sFM = 61; sSP = 15; sU = 53; sW12 = 54
vF = 22; vZ = 24
sN = 4
vFO = 11
vRB = [25, 26, 27]
vSW = 28
_used = set(range(192, 196)) | set(range(200, 206)) | set(range(208, 211))
DUMMY = sum(1 << (b - 192) for b in range(192, 224) if b not in _used)
ST0 = 62

def stamp(a, idx, rt=False):
    if OPT['stamps']:
        a(f's_mem{"real" if rt else ""}time s[{ST0+2*idx}:{ST0+1+2*idx}]')
def stamp_store(a, n=11):
    if not OPT['stamps']: return
    a('s_mov_b64 exec, -1')
    a('s_waitcnt vmcnt(0) lgkmcnt(0)')
    a(f's_memtime s[{ST0+2*(n-2)}:{ST0+1+2*(n-2)}]')
    a(f's_memrealtime s[{ST0+2*(n-1)}:{ST0+1+2*(n-1)}]')
    a('s_waitcnt lgkmcnt(0)')
    a('s_mov_b32 s26, 0x1000000')
    a('s_lshl_b32 s3, s2, 2')
    a(f's_add_u32 s3, s3, s{sW}')
    a('s_lshl_b32 s3, s3, 6')
    a('s_add_u32 s3, s3, 0x100000')
    a('v_mov_b32 v2, 0')
    for i in range(16):
        a(f'v_mov_b32 v3, s{ST0+2*i}')
        a(f'buffer_store_dword v3, v2, s[24:27], s3 offen offset:{4*i}')

def gen_spare(a):
    st = OPT['stsc']
    a.label('L_spare')
    a(f'''
    s_cmp_lg_u32 s{sW}, 0
    s_cbranch_scc1 L_end
    s_cmp_gt_u32 s2, 18
    s_cbranch_scc1 L_end
    s_cmp_lt_u32 s2, 9
    s_cbranch_scc1 L_end
    v_mov_b32 v60, 1
    s_cmp_eq_u32 s2, 18
    s_cbranch_scc1 L_sp_dummy
    s_mov_b32 s52, s6
    s_mov_b32 s53, s7
    s_mov_b32 s54, 18432
    s_mov_b32 s55, 0x20000
    s_mov_b32 s56, s8
    s_mov_b32 s57, s9
    s_mov_b32 s58, 36864
    s_mov_b32 s59, 0x20000
    s_mov_b32 s20, s10
    s_mov_b32 s21, s11
    s_mov_b32 s22, 18432
    s_mov_b32 s23, 0x20000
    v_and_b32 v3, 31, v1
    v_lshrrev_b32 v4, 5, v1
    v_mul_u32_u24 v5, 192, v3
    v_lshl_add_u32 v5, v4, 4, v5
    v_mul_u32_u24 v6, 384, v3
    v_lshl_add_u32 v6, v4, 4, v6
    v_lshlrev_b32 v7, 4, v1
    s_cmp_ge_u32 s2, 9
    s_cselect_b32 s28, 9, 0
    s_sub_u32 s28, s2, s28
    s_mul_i32 s29, s28, 11
    s_lshr_b32 s29, s29, 5
    s_mul_i32 s30, s29, 3
    s_sub_u32 s30, s28, s30
    s_mul_i32 s33, s30, 6
    s_lshl_b32 s34, s29, 1
    s_add_u32 s33, s33, s34
    s_lshl_b32 s33, s33, 10
    s_cmp_ge_u32 s2, 9
    s_cbranch_scc1 L_sp_vo
    s_mul_i32 s31, s29, {32*192}
    s_mul_i32 s32, s30, {32*384}
    ''')
    for s in range(6):
        a(f'buffer_load_dwordx4 v[{8+4*s}:{11+4*s}], v5, s[52:55], s31 offen offset:{32*s}')
        a(f'buffer_load_dwordx4 v[{32+4*s}:{35+4*s}], v6, s[56:59], s32 offen offset:{32*s}')
    a(f'''
    v_lshlrev_b32 v7, 4, v3
    v_lshl_add_u32 v7, v4, 3, v7
    s_add_u32 s33, s33, {WQK_OFF}
    s_mov_b32 s35, 0x{f32bits(CST):08x}
    s_add_u32 s36, s28, 224
    ''')
    for s in range(6):
        a(f's_waitcnt vmcnt({10-2*s})')
        a(f'v_mfma_f32_32x32x16_bf16 v[64:79], v[{8+4*s}:{11+4*s}], v[{32+4*s}:{35+4*s}], {"0" if s == 0 else "v[64:79]"}')
    a('s_nop 15')
    for r in range(16):
        a(f'v_mul_f32 v{64+r}, s35, v{64+r}')
    for r in range(8):
        a(f'v_cvt_pk_bf16_f32 v{80+r}, v{64+2*r}, v{65+2*r}')
    for i in range(4):
        a(f'buffer_store_dwordx2 v[{80+2*i}:{81+2*i}], v7, s[24:27], s33 offen offset:{(i>>1)*1024 + (i&1)*512} {st}')
    a(f'''
    v_mov_b32 v{vZ}, 0
    s_lshl_b32 s36, s28, 2
    s_waitcnt vmcnt(0)
    s_mov_b64 exec, 1
    buffer_store_dword v60, v{vZ}, s[48:51], s36 offen offset:8 {st}
    s_endpgm
    ''')
    a.label('L_sp_vo')
    a(f'''
    v_lshrrev_b32 v56, 2, v1
    v_and_b32 v57, 3, v1
    v_mul_u32_u24 v56, 192, v56
    v_lshl_add_u32 v56, v57, 4, v56
    s_lshl_b32 s31, s30, 6
    s_mov_b32 s34, 0
    ''')
    for p in range(6):
        a('s_mov_b32 m0, s34')
        a('s_add_u32 s34, s34, 1024')
        a('buffer_load_dwordx4 v56, s[20:23], s31 offen lds')
        a(f's_add_u32 s31, s31, {16*192}')
    a(f's_mul_i32 s32, s29, {32*384}')
    for s in range(6):
        a(f'buffer_load_dwordx4 v[{8+4*s}:{11+4*s}], v6, s[56:59], s32 offen offset:{192+32*s}')
    a(f'''
    v_bfe_u32 v56, v1, 2, 2
    v_lshl_add_u32 v56, v4, 3, v56
    v_lshlrev_b32 v56, 6, v56
    v_bfe_u32 v58, v1, 4, 1
    v_lshl_add_u32 v56, v58, 5, v56
    v_lshl_add_u32 v56, v57, 3, v56
    s_add_u32 s33, s33, {WVO_OFF}
    s_mul_i32 s36, s30, 3
    s_add_u32 s36, s36, s29
    s_add_u32 s36, s36, 200
    s_cmp_eq_u32 s30, 2
    s_cselect_b32 s34, 2, 0
    s_add_u32 s36, s36, s34
    s_waitcnt vmcnt(6)
    ''')
    for s in range(6):
        for half in range(2):
            a(f'ds_read_b64_tr_b16 v[{32+4*s+2*half}:{33+4*s+2*half}], v56 offset:{s*1024 + half*256}')
    a('s_waitcnt vmcnt(0) lgkmcnt(0)')
    stamp(a, 2)
    for s in range(6):
        a(f'v_mfma_f32_32x32x16_bf16 v[64:79], v[{8+4*s}:{11+4*s}], v[{32+4*s}:{35+4*s}], {"0" if s == 0 else "v[64:79]"}')
    a('s_nop 15')
    for r in range(8):
        a(f'v_cvt_pk_bf16_f32 v{80+r}, v{64+2*r}, v{65+2*r}')
    for k in range(2):
        a(f'buffer_store_dwordx4 v[{80+4*k}:{83+4*k}], v7, s[24:27], s33 offen offset:{1024*k} {st}')
    a.label('L_sp_flag')
    a(f'''
    v_mov_b32 v{vZ}, 0
    s_mov_b32 s{sSP}, 0
    s_lshl_b32 s36, s36, 7
    s_add_u32 s36, s36, {FLAG_OFF}
    ''')
    stamp(a, 3)
    if OPT['stamps']:
        a('s_waitcnt vmcnt(0)')
        stamp(a, 4)
    nonce_spin(a, 'L_sp_n')
    stamp(a, 5)
    a(f'''
    s_mov_b64 exec, 1
    buffer_store_dwordx2 v[{vF}:{vF+1}], v{vZ}, s[24:27], s36 offen {st}
    ''')
    stamp_store(a)
    a('s_endpgm')
    a.label('L_sp_dummy')
    a(f'''
    s_memrealtime s[28:29]
    v_mov_b32 v4, 0
    s_waitcnt lgkmcnt(0)
    s_or_b32 s29, s29, 0x40000000
    v_mov_b32 v2, s28
    v_mov_b32 v3, s29
    s_mov_b64 exec, 1
    buffer_store_dwordx2 v[2:3], v4, s[48:51], 0 offen {st}
    s_mov_b32 exec_lo, 0x{DUMMY & 0xffffffff:08x}
    s_mov_b32 exec_hi, 0
    v_lshlrev_b32 v4, 7, v1
    s_mov_b32 s30, {FLAG_OFF + 192*128}
    buffer_store_dwordx2 v[2:3], v4, s[24:27], s30 offen {st}
    s_endpgm
    ''')

def dma(q, p):
    return f'buffer_load_dwordx4 v{vDMA}, s[24:27], s{sG[q]} offen offset:{1024*p} lds'
def flag_load():
    return f'buffer_load_dwordx2 v[{vF}:{vF+1}], v{vFO}, s[24:27], s{sFO} offen {OPT["ldsc"]}'
def flag_cmp():
    return f'v_cmp_ne_u64 vcc, s[{sN}:{sN+1}], v[{vF}:{vF+1}]'

def spin_tail(a, lbl):
    a(f's_cbranch_vccz {lbl}_ok')
    a(f's_sleep {OPT["sleep"]}')
    a(f's_add_u32 s{sSP}, s{sSP}, 1')
    a(f's_cmp_lt_u32 s{sSP}, 0x40000')
    a(f's_cbranch_scc1 {lbl}')
    a.label(lbl + '_ok')

def nonce_spin(a, lbl):
    a.label(lbl)
    a(f'buffer_load_dwordx2 v[{vF}:{vF+1}], v{vZ}, s[48:51], 0 offen {OPT["ldsc"]}')
    a('s_waitcnt vmcnt(0)')
    a(f'v_cmp_eq_u32 vcc, 0, v{vF+1}')
    spin_tail(a, lbl)

def spin(a, lbl):
    a.label(lbl)
    a(flag_load())
    a('s_waitcnt vmcnt(0)')
    a(flag_cmp())
    spin_tail(a, lbl)

def gen_loop(a, helper):
    nm = 'h' if helper else 'o'
    B = ['B0', 'B1', 'B2'] if helper else ['B0', 'B0', 'B0']
    units = [('own', 0), (B[0], 0), ('own', 1), (B[1], 1), ('own', 2), (B[2], 2), ('own', 3)]
    sb = [0, 1, 2, 0, 1, 2, 3]
    a.raw('.p2align 6')
    a.label(f'L_loop_{nm}')
    kload = {0: 1, 2: 2, 4: 3, 5: 0}
    vload = {2: 1, 4: 2, 6: 3, 0: 0}
    for u in range(7):
        nxt = (u + 1) % 7
        prv = (u - 1) % 7
        mf = [qk_mfma(units[nxt][0], sb[nxt], s) for s in range(6)]
        mf += [pv_mfma(units[prv][0], sb[prv], t, ct) for t in range(2) for ct in range(3)]
        shadow = {}; mem = {}; pre = {}; extra = []
        if u in kload:
            for s in range(6):
                mem.setdefault(s, []).append(kread(kload[u], s))
        if u in vload:
            for f in range(6):
                mem.setdefault(6 + f, []).append(vread(vload[u], f))
        if prv in vload:
            shadow[5] = f's_waitcnt lgkmcnt({5 if u in kload else 0})'
        if u in kload:
            shadow[11] = f's_waitcnt lgkmcnt({5 if u in vload else 0})'
        if u == 1:
            mem.setdefault(0, []).append(flag_load())
            shadow[1] = f's_cmp_lt_u32 s{sCNT}, 5'
            shadow[2] = f's_cselect_b32 s{sTMP}, 0, s{sK0}'
            shadow[3] = f's_cselect_b32 s{sTE}, s{sT}, 0x30000'
            shadow[4] = f's_sub_u32 s{sD0}, s{sDn}, s{sTMP}'
            shadow[6] = f's_add_u32 s{sT}, s{sT}, s{sDp}'
            extra += [f'v_add_u32 v{vLB[3]}, s{sDp}, v{vLB[3]}']
        if u == 3:
            extra += [f'v_add_u32 v{vLB[0]}, s{sD0}, v{vLB[0]}',
                      f'v_add_u32 v{vLB[1]}, s{sDn}, v{vLB[1]}']
            shadow[8] = 's_waitcnt vmcnt(0)'
            pre[8] = ['s_barrier']
            pre[9] = [flag_cmp()]
            shadow[10] = f's_mov_b32 m0, s{sTE}'
            shadow[11] = f's_cbranch_vccnz L_slow_{nm}\nL_back_{nm}:'
        if u == 4:
            shadow[0] = f's_add_u32 s{sFO}, s{sFO}, 4096'
            shadow[1] = f's_min_u32 s{sFO}, s{sFO}, s{sFM}'
            for i, g in enumerate((2, 8)):
                mem.setdefault(g, []).append(dma(0, i))
        if u == 5:
            extra += [f'v_add_u32 v{vLB[2]}, s{sDn}, v{vLB[2]}']
            for i, g in enumerate((0, 2)):
                mem.setdefault(g, []).append(dma(0, 2 + i))
            shadow[3] = f's_add_u32 m0, s{sTE}, 4096'
            shadow[4] = f's_add_u32 s{sG[0]}, s{sG[0]}, {BUF}'
            for i, g in enumerate((6, 7, 8, 9)):
                mem.setdefault(g, []).append(dma(1, i))
            shadow[10] = f's_add_u32 m0, s{sTE}, 8192'
        if u == 6:
            for i, g in enumerate((0, 1, 2, 3)):
                mem.setdefault(g, []).append(dma(2, i))
            shadow[0] = f's_add_u32 s{sG[1]}, s{sG[1]}, {BUF}'
            shadow[4] = f's_add_u32 s{sG[2]}, s{sG[2]}, {BUF}'
            shadow[5] = f's_add_u32 s{sTMP}, s{sDn}, s{sDp}'
            shadow[6] = f's_mov_b32 s{sDp}, s{sDn}'
            shadow[7] = f's_sub_u32 s{sDn}, 0, s{sTMP}'
            shadow[8] = f's_add_u32 s{sCNT}, s{sCNT}, 1'
            shadow[9] = f's_cmp_lt_u32 s{sCNT}, 6'
        schedule_stage(a, mf, shadow, mem, pre, softmax_ops(units[u][0], sb[u]), extra)
    a(f's_cbranch_scc1 L_loop_{nm}')

def slow_path(a, nm):
    a.label(f'L_slow_{nm}')
    spin(a, f'L_spin_{nm}')
    a(f's_branch L_back_{nm}')

def rowmax(a, sbuf, tile, t0, t1, n=16):
    S = vS[sbuf]
    a(f'v_max3_f32 v{t0}, v{S}, v{S+1}, v{S+2}')
    a(f'v_max3_f32 v{t1}, v{S+3}, v{S+4}, v{S+5}')
    i = 6; flip = 0
    while i + 1 < n:
        t = (t0, t1)[flip]; flip ^= 1
        a(f'v_max3_f32 v{t}, v{t}, v{S+i}, v{S+i+1}')
        i += 2
    a(f'v_max_f32 v{t0}, v{t0}, v{t1}')
    a(f'v_mov_b32 v{t1}, v{t0}')
    a('s_nop 1')
    a(f'v_permlane32_swap_b32 v{t0}, v{t1}')
    a('s_nop 0')
    a(f'v_max_f32 v{t0}, v{t0}, v{t1}')
    a(f'v_sub_f32 v{vM[tile]}, 0, v{t0}')
    for i in range(1, 16):
        a(f'v_mov_b32 v{vM[tile]+i}, v{vM[tile]}')

def half_softmax(a, sbuf, tile):
    S = vS[sbuf]; L = vL[tile]
    for i in range(8):
        a(f'v_exp_f32 v{S+i}, v{S+i}')
    for i in range(8):
        a(f'v_add_f32 v{L}, v{L}, v{S+i}')
    for j in range(4):
        a(f'v_cvt_pk_bf16_f32 v{S+j}, v{S+2*j}, v{S+2*j+1}')

def wvo_reg(f):
    return rng('v', vM['own'] + 4 * f, 4) if f < 16 else rng('a', aK + 4 * (f - 16), 4)

def wvo_load(a):
    for f in range(18):
        a(f'ds_read_b128 {wvo_reg(f)}, v{vDMA} offset:{WVO_LDS + 1024*f}')

def tile_out(a, tile, soff):
    k, b = rO[tile]
    assert k == 'v'
    L = vL[tile]
    P = vS[0]
    for r in range(24):
        a(f'v_cvt_pk_bf16_f32 v{P+r}, v{b+2*r}, v{b+2*r+1}')
    a(f'v_mov_b32 v2, v{L}')
    a('s_waitcnt lgkmcnt(0)')
    a('s_nop 0')
    a(f'v_permlane32_swap_b32 v{L}, v2')
    T = vS[2]
    def fin(cot):
        o = b + 16 * cot
        out = []
        for j in range(8):
            out.append(f'v_pk_mul_f32 v[{o+2*j}:{o+2*j+1}], v[{o+2*j}:{o+2*j+1}], v[2:3]')
        for j in range(8):
            out.append(f'v_cvt_pk_bf16_f32 v{T+8*cot+j}, v{o+2*j}, v{o+2*j+1}')
        for i in range(4):
            out.append(f'ds_write_b64 v{vSW}, v[{T+8*cot+2*i}:{T+8*cot+2*i+1}] offset:{64*cot+16*i}')
        return out
    for cot in range(3):
        d = rng('v', b + 16 * cot, 16)
        for s in range(6):
            a(f'v_mfma_f32_32x32x16_bf16 {d}, {wvo_reg(6*cot+s)}, {rng("v", P+4*s, 4)}, {"0" if s == 0 else d}')
            if cot == 0 and s == 0:
                a(f'v_add_f32 v2, v{L}, v2')
                a('v_rcp_f32 v2, v2')
                a('s_nop 0')
                a('v_mov_b32 v3, v2')
    a('s_nop 3')
    for x in fin(0): a(x)
    for x in fin(1): a(x)
    for x in fin(2): a(x)
    a('s_waitcnt lgkmcnt(0)')
    R = vS[0]
    for j in range(6):
        a(f'ds_read_b128 v[{R+4*j}:{R+4*j+3}], v{vRB[j%3]} offset:{(j//3)*16*208}')
    a(f's_add_u32 s60, s{soff}, 4096')
    for j in range(6):
        a(f's_waitcnt lgkmcnt({5-j})')
        so = soff if j < 4 else 60
        a(f'buffer_store_dwordx4 v[{R+4*j}:{R+4*j+3}], v{vDMA}, s[20:23], s{so} offen offset:{1024*(j%4)}')

def gen_consumer(a):
    st = OPT['stsc']
    a(f'''
    s_sub_u32 s3, s2, {NSP}
    v_lshlrev_b32 v{vDMA}, 4, v1
    s_lshr_b32 s55, s3, 3
    s_and_b32 s56, s3, 7
    s_mul_i32 s{sXB}, s55, 344064
    s_mul_i32 s57, s56, 6144
    s_mov_b32 s{sXS}, 43008
    s_cmp_eq_u32 s56, 7
    s_cselect_b32 s57, {7*43008}, s57
    s_cselect_b32 s{sXS}, 6144, s{sXS}
    s_add_u32 s{sXB}, s{sXB}, s57
    s_mul_i32 s{sU}, s55, 7
    s_add_u32 s{sU}, s{sU}, s56
    s_mul_i32 s{sW12}, s{sW}, 12288
    v_mov_b32 v{vZ}, 0
    s_mov_b32 s{sSP}, 0
    s_cmp_eq_u32 s{sW}, 3
    s_cbranch_scc1 L_x_done
    s_mul_i32 s57, s{sW}, 3
    s_mul_i32 s58, s57, 6144
    s_mul_i32 s57, s57, s{sXS}
    s_add_u32 s57, s57, s{sXB}
    s_add_u32 s58, s58, {XST}
    s_mov_b32 m0, s58
    s_add_u32 s59, s57, 4096
    ''')
    for t in range(3):
        for p in range(4):
            a(f'buffer_load_dwordx4 v{vDMA}, s[16:19], s57 offen offset:{1024*p} lds')
        a(f's_add_u32 m0, s58, {6144*t + 4096}')
        a(f's_add_u32 s57, s57, s{sXS}')
        for p in range(2):
            a(f'buffer_load_dwordx4 v{vDMA}, s[16:19], s59 offen offset:{1024*p} lds')
        if t < 2:
            a(f's_add_u32 m0, s58, {6144*(t+1)}')
            a(f's_add_u32 s59, s59, s{sXS}')
        if t == 1:
            a(f's_cmp_eq_u32 s{sW}, 2')
            a('s_cbranch_scc1 L_x_done')
    a.label('L_x_done')
    a(f'''
    v_and_b32 v3, 31, v1
    v_lshrrev_b32 v4, 5, v1
    v_mul_u32_u24 v{vXO}, 192, v3
    v_lshl_add_u32 v{vXO}, v4, 4, v{vXO}
    s_mul_i32 s{sXo}, s{sW}, s{sXS}
    s_add_u32 s{sXo}, s{sXo}, s{sXB}
    s_lshl_b32 s57, s{sXS}, 2
    s_add_u32 s{sXb}, s{sXo}, s57
    s_mov_b32 s20, s12
    s_mov_b32 s21, s13
    s_mov_b32 s22, {X_BYTES}
    s_mov_b32 s23, 0x20000
    s_mov_b32 s{sCNT}, 0
    s_add_u32 s{sT}, s{sW12}, {2*BUF}
    s_add_u32 s{sTE}, s{sW12}, {BUF}
    s_add_u32 s{sG[0]}, s{sW12}, {BUF}
    s_add_u32 s{sG[1]}, s{sW12}, {BUF+4096}
    s_add_u32 s{sG[2]}, s{sW12}, {BUF+8192}
    s_mov_b32 s{sDn}, {BUF}
    s_mov_b32 s{sDp}, {(-2*BUF) & 0xffffffff}
    s_lshl_b32 s{sFM}, s{sW}, 10
    s_add_u32 s{sFM}, s{sFM}, {FLAG_OFF + 192*128}
    ''')
    for i in range(4):
        a(f's_add_u32 s60, s{sW}, {1+i}')
        a('s_and_b32 s60, s60, 3')
        a('s_mul_i32 s60, s60, 12288')
        if i == 0:
            a(f's_mov_b32 s{sK0}, s60')
        if i == 3:
            a(f's_add_u32 s60, s60, {2*BUF}')
        a(f'v_add_u32 v{vLB[i]}, s60, v{vDMA}')
    a(f'''
    s_and_b32 s57, s{sW}, 1
    s_mul_i32 s57, s57, {OST}
    s_mov_b32 s58, {3*BUF}
    s_cmp_lt_u32 s{sW}, 2
    s_cselect_b32 s58, 30720, s58
    s_add_u32 s57, s57, s58
    v_mul_u32_u24 v{vSW}, 208, v3
    v_lshl_add_u32 v{vSW}, v4, 3, v{vSW}
    v_add_u32 v{vSW}, s57, v{vSW}
    ''')
    for j in range(3):
        a(f'v_add_u32 v5, {64*j}, v1')
        a('v_mul_u32_u24 v6, 171, v5')
        a('v_lshrrev_b32 v6, 11, v6')
        a('v_add_u32 v5, v5, v6')
        a(f'v_lshlrev_b32 v5, 4, v5')
        a(f'v_add_u32 v{vRB[j]}, s57, v5')
    a(f'''
    v_lshrrev_b32 v9, 4, v1
    v_and_b32 v10, 15, v1
    v_lshrrev_b32 v6, 2, v10
    v_lshl_add_u32 v6, v9, 3, v6
    v_mul_u32_u24 v5, 192, v6
    v_and_b32 v8, 3, v1
    v_lshl_add_u32 v5, v8, 3, v5
    s_lshl_b32 s57, s{sW}, 6
    s_add_u32 s57, s57, {XST}
    v_add_u32 v5, s57, v5
    v_cmp_eq_u32 vcc, v9, v10
    v_mov_b32 v6, 0x3f803f80
    v_lshlrev_b32 v8, 4, v8
    v_cndmask_b32 v{vS[3]}, 0, v6, vcc
    v_cndmask_b32 v{vS[3]+1}, 0, v6, vcc
    v_cndmask_b32 v{vS[3]+2}, 0, v6, vcc
    v_cndmask_b32 v{vS[3]+3}, 0, v6, vcc
    v_lshl_add_u32 v8, v4, 6, v8
    v_add_u32 v8, {LK_LDS}, v8
    v_and_b32 v2, 1, v9
    v_lshl_add_u32 v6, v2, 5, v10
    v_lshlrev_b32 v6, 4, v6
    v_lshrrev_b32 v7, 1, v9
    v_lshl_add_u32 v6, v7, 3, v6
    v_lshlrev_b32 v29, 4, v10
    v_lshl_add_u32 v29, v2, 6, v29
    v_lshl_add_u32 v29, v7, 3, v29
    s_lshl_b32 s57, s{sW}, 8
    s_add_u32 s57, s57, {LK_LDS}
    v_add_u32 v29, s57, v29
    v_lshlrev_b32 v7, 4, v10
    s_lshr_b32 s57, s{sU}, 3
    s_mul_i32 s57, s57, 12288
    s_and_b32 s58, s{sU}, 7
    s_lshl_b32 s59, s58, 6
    s_add_u32 s59, s59, s57
    s_lshl_b32 s60, s{sW}, 11
    s_add_u32 s59, s59, s60
    s_lshr_b32 s58, s58, 2
    s_mul_i32 s58, s58, 3072
    s_add_u32 s57, s57, s58
    s_add_u32 s57, s57, 6144
    s_and_b32 s58, s{sU}, 1
    s_lshl_b32 s58, s58, 9
    s_add_u32 s57, s57, s58
    s_and_b32 s58, s{sU}, 2
    s_lshl_b32 s58, s58, 2
    s_add_u32 s57, s57, s58
    s_lshl_b32 s60, s{sW}, 10
    s_add_u32 s57, s57, s60
    s_mul_i32 s58, s{sW}, 6144
    s_add_u32 s58, s58, {XST}
    v_add_u32 v30, s58, v{vXO}
    v_add_u32 v31, s58, v{vDMA}
    v_mov_b32 v2, {NC_LDS}
    ''')
    def zero_init():
        for t in ('own', 'B0'):
            for i in range(48):
                a(f'v_mov_b32 v{rO[t][1]+i}, 0')
        for i in range(96):
            a(f'v_accvgpr_write_b32 a{i}, 0')
        for t in vL:
            a(f'v_mov_b32 v{vL[t]}, 0')
    a(f's_cmp_lg_u32 s{sW}, 3')
    a('s_cbranch_scc1 L_nn')
    nonce_spin(a, 'L_nonce')
    a(f'ds_write_b64 v2, v[{vF}:{vF+1}]')
    a(f'ds_write_b32 v2, v{vZ} offset:8')
    a.label('L_nn')
    zero_init()
    stamp(a, 2)
    a('s_waitcnt vmcnt(0) lgkmcnt(0)')
    a('s_barrier')
    stamp(a, 3)
    a(f'ds_read_b64 v[{vF}:{vF+1}], v2')
    a(f's_cmp_eq_u32 s{sW}, 3')
    a('s_cbranch_scc1 L_w3_fetch')
    F = vM['own']
    for row in range(8):
        for c in range(2):
            for half in range(2):
                d = F + (row * 2 + c) * 4 + 2 * half
                a(f'ds_read_b64_tr_b16 v[{d}:{d+1}], v5 offset:{row*6144 + half*768 + c*32}')
    IND = rng('v', vS[3], 4)
    D = vS[0]
    for row in range(8):
        a(f's_waitcnt lgkmcnt({min(15, 4*(7-row))})')
        for c in range(2):
            f = rng('v', F + (row * 2 + c) * 4, 4)
            d1 = rng('v', D + 8 * c, 4); d2 = rng('v', D + 8 * c + 4, 4)
            a(f'v_mfma_f32_16x16x32_bf16 {d1}, {f}, {IND}, {"0" if row == 0 else d1}')
            a(f'v_mfma_f32_16x16x32_bf16 {d2}, {IND}, {f}, {"0" if row == 0 else d2}')
    a('s_mov_b32 s60, 0x3c800000')
    a('v_cmp_gt_u32 vcc, 4, v10')
    a(f'v_readfirstlane_b32 s{sN}, v{vF}')
    a(f'v_readfirstlane_b32 s{sN+1}, v{vF+1}')
    a('s_nop 4')
    for r in range(16):
        a(f'v_mul_f32 v{D+r}, s60, v{D+r}')
    for r in range(8):
        a(f'v_cvt_pk_bf16_f32 v{D+16+r}, v{D+2*r}, v{D+2*r+1}')
    a('s_cmp_eq_u32 s56, 7')
    a('s_mov_b64 exec, vcc')
    a('s_cbranch_scc1 L_nostore')
    for c in range(2):
        a(f'buffer_store_dwordx2 v[{D+16+4*c}:{D+17+4*c}], v6, s[24:27], s59 offen offset:{1024*c} {st}')
    a('s_mov_b64 exec, 0xffff')
    for c in range(2):
        a(f'buffer_store_dwordx2 v[{D+18+4*c}:{D+19+4*c}], v7, s[24:27], s57 offen offset:{256*c} {st}')
    a('s_mov_b64 exec, vcc')
    a.label('L_nostore')
    for c in range(2):
        a(f'ds_write_b64 v29, v[{D+16+4*c}:{D+17+4*c}] offset:{128*c}')
    a('s_mov_b64 exec, -1')
    stamp(a, 4)
    def xfrags():
        for s in range(6):
            a(f'ds_read_b128 {rng("a", aX["B1"]+4*s, 4)}, v30 offset:{32*s}')
        for s in range(6):
            a(f'ds_read_b128 {rng("a", aX["B2"]+4*s, 4)}, v30 offset:{4*6144+32*s}')
    xfrags()
    a(f'''
    v_mov_b32 v3, 1
    s_lshl_b32 s60, s{sU}, 7
    s_add_u32 s60, s60, {FLAG_OFF}
    s_waitcnt vmcnt(0)
    s_mov_b64 exec, 1
    ds_add_rtn_u32 v3, v2, v3 offset:8
    s_waitcnt lgkmcnt(0)
    v_cmp_eq_u32 vcc, 2, v3
    s_cmp_eq_u32 s56, 7
    s_cbranch_scc1 L_noflag
    s_cbranch_vccz L_noflag
    buffer_store_dwordx2 v[{vF}:{vF+1}], v{vZ}, s[24:27], s60 offen {st}
    ''')
    a.label('L_noflag')
    a('s_mov_b64 exec, -1')
    a('s_branch L_pool_done')
    a.label('L_w3_fetch')
    xfrags()
    a(f'v_min_u32 v{vFO}, 8, v1')
    a(f'v_lshlrev_b32 v{vFO}, 7, v{vFO}')
    a(f's_mov_b32 s{sFO}, {FLAG_OFF + 224*128}')
    a('s_waitcnt lgkmcnt(0)')
    a(f'v_readfirstlane_b32 s{sN}, v{vF}')
    a(f'v_readfirstlane_b32 s{sN+1}, v{vF+1}')
    spin(a, 'L_wq')
    a(f's_mov_b32 s57, {WQK_OFF}')
    a(f's_mov_b32 s58, {WQ_LDS}')
    for q in range(5):
        a('s_mov_b32 m0, s58')
        a('s_add_u32 s58, s58, 4096')
        for p in range(4 if q < 4 else 2):
            a(f'buffer_load_dwordx4 v{vDMA}, s[24:27], s57 offen offset:{1024*p} lds')
        a('s_add_u32 s57, s57, 4096')
    stamp(a, 4)
    a('s_waitcnt vmcnt(0)')
    a.label('L_pool_done')
    a(f'v_and_b32 v{vFO}, 7, v1')
    a(f'v_lshlrev_b32 v{vFO}, 7, v{vFO}')
    a(f's_sub_u32 s{sFO}, s{sFM}, {192*128}')
    a(f'v_add_u32 v2, {WQ_LDS}, v{vDMA}')
    a('s_waitcnt lgkmcnt(0)')
    a('s_barrier')
    stamp(a, 5)
    for f in range(18):
        a(f'ds_read_b128 {wvo_reg(f)}, v2 offset:{1024*f}')
    for s in range(6):
        a(f'ds_read_b128 {rng("a", aV+4*s, 4)}, v8 offset:{128*s}')
    def qfin(ti, ct):
        S = vS[(2 * ct + ti) % 4]
        X = aX['own' if ti == 0 else 'B0'] + 8 * ct
        out = []
        for j in range(8):
            out.append(f'v_cvt_pk_bf16_f32 v{S+j}, v{S+2*j}, v{S+2*j+1}')
        for j in range(8):
            out.append(f'v_accvgpr_write_b32 a{X+j}, v{S+j}')
        if ti == 1:
            for k in range(2):
                out.append(f'ds_write_b128 v31, v[{S+4*k}:{S+4*k+3}] offset:{(2*ct+k)*1024}')
        return out
    blocks = [(ti, ct) for ct in range(3) for ti in range(2)]
    pend = []
    for n, (ti, ct) in enumerate(blocks):
        d = rng('v', vS[(2 * ct + ti) % 4], 16)
        X = aX['B1' if ti == 0 else 'B2']
        if n == 0: a('s_waitcnt lgkmcnt(15)')
        if n == 2: a('s_waitcnt lgkmcnt(6)')
        for s in range(6):
            a(f'v_mfma_f32_32x32x16_bf16 {d}, {wvo_reg(6*ct+s)}, {rng("a", X+4*s, 4)}, {"0" if s == 0 else d}')
            if n == 4 and s == 0:
                a(flag_load())
            if n >= 2 and s >= 1:
                for _ in range(4):
                    if pend: a(pend.pop(0))
        assert not pend
        if n >= 1:
            pend += qfin(*blocks[n - 1])
    a('s_nop 7')
    for x in pend: a(x)
    for x in qfin(*blocks[-1]): a(x)
    stamp(a, 6)
    a('s_waitcnt vmcnt(0)')
    a(flag_cmp())
    a('s_cbranch_vccz L_w0_ok')
    spin(a, 'L_w0')
    stamp(a, 7)
    for q in range(3):
        a(f's_add_u32 s60, s{sW12}, {q*4096}')
        a('s_mov_b32 m0, s60')
        a('s_nop 0')
        for p in range(4):
            a(f'buffer_load_dwordx4 v{vDMA}, s[24:27], s60 offen offset:{1024*p} lds')
    a(f's_add_u32 s{sFO}, s{sFO}, 4096')
    a(flag_load())
    a('s_waitcnt lgkmcnt(0)')
    for ti, t in enumerate(('own', 'B0')):
        d = rng('v', vS[ti], 16)
        for s in range(6):
            a(f'v_mfma_f32_32x32x16_bf16 {d}, {rng("a", aV+4*s, 4)}, {rng("a", aX[t]+4*s, 4)}, {"0" if s == 0 else d}')
    a(f's_lshl_b32 s60, s{sW}, 10')
    a(f's_add_u32 s60, s60, {MX_LDS}')
    a(f'v_add_u32 v3, s60, v{vDMA}')
    a('s_nop 7')
    for ti, t in enumerate(('own', 'B0')):
        S = vS[ti]
        a(f'v_max3_f32 v2, v{S}, v{S+1}, v{S+2}')
        a(f'v_max_f32 v2, v2, v{S+3}')
        a(f'v_sub_f32 v{vM[t]}, 0, v2')
        for i in range(1, 16):
            a(f'v_mov_b32 v{vM[t]+i}, v{vM[t]}')
    a(f'ds_write_b128 v3, {rng("v", vM["B0"], 4)}')
    for i in range(24):
        a(f'v_accvgpr_write_b32 a{aV+i}, 0')
    for i in range(4):
        a(f'v_mov_b32 v{vS[3]+i}, 0')
        a(f'v_mov_b32 v{vS[3]+8+i}, 0')
    a(f'v_add_u32 v2, {XST}, v{vDMA}')
    a('s_waitcnt vmcnt(0) lgkmcnt(0)')
    a('s_barrier')
    stamp(a, 8)
    for s in range(6):
        a(kread(0, s))
    a(flag_cmp())
    a(f's_cmp_lg_u32 s{sW}, 3')
    a('s_cbranch_scc1 L_owner')

    def group1_and_first(tag, nwait):
        a(f's_waitcnt lgkmcnt({nwait})')
        for s in range(6): a(qk_mfma('own', 0, s))
        a(f's_cbranch_vccz L_w1{tag}_ok')
        spin(a, f'L_w1{tag}')
        for q in range(3):
            a(f's_add_u32 m0, s{sTE}, {q*4096}')
            a('s_nop 0')
            for p in range(4):
                a(dma(q, p))
            a(f's_add_u32 s{sG[q]}, s{sG[q]}, {BUF}')
        a(f's_add_u32 s{sFO}, s{sFO}, 4096')
        a('s_waitcnt lgkmcnt(0)')
        stamp(a, 11)
        stamp(a, 12, True)
        if OPT['stamps']: a('s_waitcnt lgkmcnt(0)')

    def post_loop(helper):
        stamp(a, 13)
        stamp(a, 14, True)
        a('s_waitcnt lgkmcnt(0)')
        for t in range(2):
            for ct in range(3):
                a(pv_mfma('own', 3, t, ct))
                if t == 0:
                    a(f'ds_read_b128 {rng("a", aV+4*ct, 4)}, v{vDMA} offset:{6144+1024*ct}')
        if not helper:
            for s in range(6): a(qk_mfma('B0', 1, s))
        half_softmax(a, 0, 'own')
        a('s_waitcnt lgkmcnt(0)')
        a('s_nop 0')
        for ct in range(3):
            a(pv_mfma('own', 0, 0, ct))
        if not helper:
            half_softmax(a, 1, 'B0')
            a('s_nop 1')
            for ct in range(3):
                a(pv_mfma('B0', 1, 0, ct))
        wvo_load(a)

    for e, t in enumerate(('B0', 'B1', 'B2')):
        for s in range(6):
            a(f'ds_read_b128 {rng("a", aX[t]+4*s, 4)}, v2 offset:{e*6144 + 1024*s}')
        for k in range(4):
            a(f'ds_read_b128 {rng("v", vM[t]+4*k, 4)}, v2 offset:{24576 + 1024*e}')
        if e == 0:
            a('s_waitcnt lgkmcnt(10)')
            for s in range(6): a(qk_mfma('own', 0, s))
    group1_and_first_h = True
    a('s_cbranch_vccz L_w1h_ok')
    spin(a, 'L_w1h')
    for q in range(3):
        a(f's_add_u32 m0, s{sTE}, {q*4096}')
        a('s_nop 0')
        for p in range(4):
            a(dma(q, p))
        a(f's_add_u32 s{sG[q]}, s{sG[q]}, {BUF}')
    a(f's_add_u32 s{sFO}, s{sFO}, 4096')
    a('s_waitcnt lgkmcnt(0)')
    stamp(a, 11)
    stamp(a, 12, True)
    if OPT['stamps']: a('s_waitcnt lgkmcnt(0)')
    gen_loop(a, True)
    post_loop(True)
    a(f'v_add_u32 v5, {MERGE0}, v{vDMA}')
    for e, t in enumerate(('B0', 'B1', 'B2')):
        k, b = rO[t]
        for j in range(12):
            a(f'ds_write_b128 v5, {rng(k, b+4*j, 4)} offset:{e*MERGE + 1024*j}')
    a('v_lshlrev_b32 v2, 2, v1')
    a(f'v_add_u32 v2, {MERGE0}, v2')
    for e, t in enumerate(('B0', 'B1', 'B2')):
        a(f'ds_write_b32 v2, v{vL[t]} offset:{e*MERGE + 12288}')
    a('s_waitcnt lgkmcnt(0)')
    a('s_barrier')
    tile_out(a, 'own', sXo)
    stamp(a, 15)
    stamp_store(a)
    a('s_endpgm')
    slow_path(a, 'h')
    a.label('L_owner')
    group1_and_first('o', 0)
    gen_loop(a, False)
    post_loop(False)
    a(f's_mul_i32 s60, s{sW}, {MERGE}')
    a(f's_add_u32 s60, s60, {MERGE0}')
    a(f'v_add_u32 v6, s60, v{vDMA}')
    a('v_lshlrev_b32 v7, 2, v1')
    a('v_add_u32 v7, s60, v7')
    tile_out(a, 'own', sXo)
    a('s_barrier')
    T = rO['own'][1]
    for j in range(12):
        a(f'ds_read_b128 {rng("v", T+4*j, 4)}, v6 offset:{1024*j}')
    a('ds_read_b32 v8, v7 offset:12288')
    b = rO['B0'][1]
    for j in range(12):
        a(f's_waitcnt lgkmcnt({12-j})')
        a(f'v_pk_add_f32 v[{b+4*j}:{b+4*j+1}], v[{b+4*j}:{b+4*j+1}], v[{T+4*j}:{T+4*j+1}]')
        a(f'v_pk_add_f32 v[{b+4*j+2}:{b+4*j+3}], v[{b+4*j+2}:{b+4*j+3}], v[{T+4*j+2}:{T+4*j+3}]')
    a('s_waitcnt lgkmcnt(0)')
    a(f'v_add_f32 v{vL["B0"]}, v{vL["B0"]}, v8')
    tile_out(a, 'B0', sXb)
    stamp(a, 15)
    stamp_store(a)
    a('s_endpgm')
    slow_path(a, 'o')

def build(path):
    a = Asm()
    a.raw(f'.globl {NAME}')
    a.raw('.p2align 8')
    a.raw(f'.type {NAME},@function')
    a.label(NAME)
    a(f'''
    s_cmp_ge_u32 s2, {NSP+NCONS}
    s_cbranch_scc1 L_end
    ''')
    stamp(a, 0, True)
    stamp(a, 1)
    a(f'''
    s_load_dwordx8 s[4:11], s[0:1], 0
    s_load_dwordx2 s[12:13], s[0:1], 32
    s_load_dwordx4 s[44:47], s[0:1], 40
    v_lshrrev_b32 v2, 6, v0
    v_and_b32 v1, 63, v0
    v_readfirstlane_b32 s{sW}, v2
    s_waitcnt lgkmcnt(0)
    s_mov_b32 s16, s4
    s_mov_b32 s17, s5
    s_mov_b32 s18, {X_BYTES}
    s_mov_b32 s19, 0x20000
    s_mov_b32 s24, s46
    s_mov_b32 s25, s47
    s_mov_b32 s26, {WS_BYTES}
    s_mov_b32 s27, 0x20000
    s_mov_b32 s48, s44
    s_mov_b32 s49, s45
    s_mov_b32 s50, 256
    s_mov_b32 s51, 0x20000
    s_cmp_lt_u32 s2, {NSP}
    s_cbranch_scc1 L_spare
    ''')
    gen_consumer(a)
    gen_spare(a)
    a.label('L_end')
    a('s_endpgm')
    out = HEADER
    out += f'; @launch grid=({NSP+NCONS},1,1) block=(256,1,1) lds={LDS_TOTAL}\n'
    out += '.amdgcn_target "amdgcn-amd-amdhsa--gfx950"\n.text\n'
    out += a.text()
    out += '.section .rodata,"a"\n.p2align 6\n'
    out += kd(NAME, 512, 256)
    open(path, 'w').write(out)

if __name__ == '__main__':
    for o in sys.argv[2:]:
        if '=' in o:
            k, v = o.split('=')
            OPT[k] = int(v) if v.isdigit() else v.replace('+', ' ')
        else:
            OPT[o] = True
    build(sys.argv[1] if len(sys.argv) > 1 else 'k5.s')
```

```python
import sys
from gen import Asm, f32bits, kd, HEADER, X_BYTES, KV_BYTES, CST
from gen2 import (vLB, vDMA, vL, vXO, vS, vM, rO, aX, aK, aV, BUF, MERGE, rng, qk_mfma, pv_mfma,
                  softmax_ops, schedule_stage, kread, vread)
import gen5
from gen5 import (NAME, NSP, NCONS, WVO_OFF, WQK_OFF, FLAG_OFF, WS_BYTES, OST, LDS_TOTAL, XST, WQ_LDS, WVO_LDS, MERGE0,
                  QX_LDS, MX_LDS, LK_LDS, NC_LDS, OPT, sW, sCNT, sT, sG, sDn, sDp, sTE, sTMP, sXo, sXb, sXB, sXS, sFO, sD0,
                  sK0, sFM, sSP, sU, sW12, vF, vZ, sN, vFO, vRB, vSW, stamp, stamp_store, gen_spare, dma, flag_load,
                  flag_cmp, spin_tail, nonce_spin, spin, gen_loop, slow_path, wvo_reg)

def cost(ins):
    op = ins.split()[0]
    if op.startswith('v_exp') or op.startswith('v_rcp'): return 2
    return 1
def is_mem(ins):
    return ins.startswith('ds_') or ins.startswith('buffer_')
def is_salu(ins):
    return ins.startswith('s_')

def weave(a, mfmas, fill, cap=6):
    q = list(fill)
    for g, m in enumerate(mfmas):
        a(m)
        c = cap
        first = True
        prev_valu = False
        while q:
            it = q[0]
            if isinstance(it, tuple):
                if it[1] > g: break
                q.pop(0); continue
            k = cost(it)
            if is_salu(it) and first: k = 0
            if is_mem(it) and prev_valu: break
            if k > c: break
            a(q.pop(0)); c -= k; first = False
            prev_valu = prev_valu or it.startswith('v_')
    for it in q:
        if not isinstance(it, tuple): a(it)

def half_softmax_ops(sbuf, tile):
    S = vS[sbuf]; L = vL[tile]
    o = [f'v_exp_f32 v{S+i}, v{S+i}' for i in range(8)]
    o += [f'v_add_f32 v{L}, v{L}, v{S+i}' for i in range(8)]
    o += [f'v_cvt_pk_bf16_f32 v{S+j}, v{S+2*j}, v{S+2*j+1}' for j in range(4)]
    return o

LO = f32bits(2.0 ** -90)
HI = f32bits(2.0 ** 90)

def lsum_ops(tile, r, tag):
    L = vL[tile]
    return [f'v_mov_b32 v{r}, v{L}', 's_nop 1', f'v_permlane32_swap_b32 v{L}, v{r}', 's_nop 0',
            f'v_add_f32 v{r}, v{L}, v{r}',
            f'v_med3_f32 v{r+1}, v{r}, s58, v{vHI}',
            f'v_cmp_neq_f32 vcc, v{r+1}, v{r}',
            f's_cbranch_vccnz L_redo_{tag}', f'L_redone_{tag}:',
            f'v_rcp_f32 v{r}, v{r}']
vHI = 9

def redo(a, tile, r, tag):
    k, b = rO[tile]
    L = vL[tile]
    X = aX[tile]
    S = vS[2]; M = vS[3]
    sd = rng('v', S, 16)
    a.label(f'L_redo_{tag}')
    a('s_waitcnt vmcnt(0) lgkmcnt(0)')
    a('s_nop 15')
    a('v_mov_b32 v4, 0xff800000')
    a('s_mov_b32 s55, 0')
    def kload():
        a('s_add_u32 s57, s55, 4096')
        for s in range(6):
            a(f'buffer_load_dwordx4 {rng("a", aK+4*s, 4)}, v{vDMA}, s[24:27], s{55 if s < 4 else 57} offen offset:{1024*(s%4)}')
    def vload(n):
        a('s_add_u32 s57, s55, 6144')
        a('s_add_u32 s59, s55, 10240')
        for f in range(n):
            a(f'buffer_load_dwordx4 {rng("a", aV+4*f, 4)}, v{vDMA}, s[24:27], s{57 if f < 4 else 59} offen offset:{1024*(f%4)}')
    def qk(c):
        for s in range(6):
            a(f'v_mfma_f32_32x32x16_bf16 {sd}, {rng("a", aK+4*s, 4)}, {rng("a", X+4*s, 4)}, {c if s == 0 else sd}')
        a('s_nop 15')
    def mx(n):
        for i in range(0, n, 2):
            a(f'v_max3_f32 v4, v4, v{S+i}, v{S+i+1}')
    a.label(f'L_redo1_{tag}')
    kload(); a('s_waitcnt vmcnt(0)'); qk('0')
    a(f's_cmp_eq_u32 s55, {24*12288}')
    a(f's_cbranch_scc1 L_redo1e_{tag}')
    mx(16)
    a('s_add_u32 s55, s55, 12288')
    a(f's_branch L_redo1_{tag}')
    a.label(f'L_redo1e_{tag}')
    mx(8)
    a('v_mov_b32 v5, v4')
    a('s_nop 1')
    a('v_permlane32_swap_b32 v4, v5')
    a('s_nop 0')
    a('v_max_f32 v4, v4, v5')
    for i in range(16):
        a(f'v_sub_f32 v{M+i}, 0, v4')
    for i in range(48):
        a(f'v_mov_b32 v{b+i}, 0')
    a(f'v_mov_b32 v{L}, 0')
    a('s_mov_b32 s55, 0')
    def sm(n):
        for i in range(n): a(f'v_exp_f32 v{S+i}, v{S+i}')
        a('s_nop 0')
        for i in range(n): a(f'v_add_f32 v{L}, v{L}, v{S+i}')
        for p in range(n // 2):
            t, j = divmod(p, 4)
            a(f'v_cvt_pk_bf16_f32 v{S+8*t+j}, v{S+2*p}, v{S+2*p+1}')
        a('s_nop 1')
        for t in range(n // 8):
            for ct in range(3):
                a(pv_mfma(tile, 2, t, ct))
    a.label(f'L_redo2_{tag}')
    kload(); vload(6); a('s_waitcnt vmcnt(0)'); qk(rng('v', M, 16))
    a(f's_cmp_eq_u32 s55, {24*12288}')
    a(f's_cbranch_scc1 L_redo2e_{tag}')
    sm(16)
    a('s_add_u32 s55, s55, 12288')
    a(f's_branch L_redo2_{tag}')
    a.label(f'L_redo2e_{tag}')
    sm(8)
    for f in (16, 17):
        a(f'ds_read_b128 {wvo_reg(f)}, v{vDMA} offset:{WVO_LDS + 1024*f}')
    a(f'v_mov_b32 v{r}, v{L}')
    a('s_nop 1')
    a(f'v_permlane32_swap_b32 v{L}, v{r}')
    a('s_nop 0')
    a(f'v_add_f32 v{r}, v{L}, v{r}')
    a('s_waitcnt lgkmcnt(0)')
    a('s_nop 15')
    a(f's_branch L_redone_{tag}')

def norm_cvt_ops(tile, r, P):
    b = rO[tile][1]
    o = []
    for j in range(24):
        o.append(f'v_mul_f32 v{b+2*j}, v{r}, v{b+2*j}')
        o.append(f'v_mul_f32 v{b+2*j+1}, v{r}, v{b+2*j+1}')
        o.append(f'v_cvt_pk_bf16_f32 v{P+j}, v{b+2*j}, v{b+2*j+1}')
    return o

def proj_mfmas(tile, P):
    b = rO[tile][1]
    m = []
    for cot in range(3):
        d = rng('v', b + 16 * cot, 16)
        for s in range(6):
            m.append(f'v_mfma_f32_32x32x16_bf16 {d}, {wvo_reg(6*cot+s)}, {rng("v", P+4*s, 4)}, {"0" if s == 0 else d}')
    return m

def fin_ops(tile, cot):
    o = rO[tile][1] + 16 * cot
    out = [f'v_cvt_pk_bf16_f32 v{o+j}, v{o+2*j}, v{o+2*j+1}' for j in range(8)]
    out += [f'ds_write_b64 v{vSW}, v[{o+2*i}:{o+2*i+1}] offset:{64*cot+16*i}' for i in range(4)]
    return out

def store_ops(R, soff, s2):
    o = ['s_waitcnt lgkmcnt(0)']
    o += [f'ds_read_b128 v[{R+4*j}:{R+4*j+3}], v{vRB[j%3]} offset:{(j//3)*16*208}' for j in range(6)]
    o += [f's_add_u32 s{s2}, s{soff}, 4096']
    return o
def store_ops2(R, soff, s2, waits=True):
    o = []
    for j in range(6):
        if waits: o.append(f's_waitcnt lgkmcnt({5-j})')
        o.append(f'buffer_store_dwordx4 v[{R+4*j}:{R+4*j+3}], v{vDMA}, s[20:23], s{soff if j < 4 else s2} offen offset:{1024*(j%4)}')
    return o

def gen_consumer(a):
    st = OPT['stsc']
    a(f'''
    s_sub_u32 s3, s2, {NSP}
    v_lshlrev_b32 v{vDMA}, 4, v1
    s_lshr_b32 s55, s3, 3
    s_and_b32 s56, s3, 7
    s_mul_i32 s{sXB}, s55, 344064
    s_mul_i32 s57, s56, 6144
    s_mov_b32 s{sXS}, 43008
    s_cmp_eq_u32 s56, 7
    s_cselect_b32 s57, {7*43008}, s57
    s_cselect_b32 s{sXS}, 6144, s{sXS}
    s_add_u32 s{sXB}, s{sXB}, s57
    s_mul_i32 s{sU}, s55, 7
    s_add_u32 s{sU}, s{sU}, s56
    s_mul_i32 s{sW12}, s{sW}, 12288
    v_mov_b32 v{vZ}, 0
    v_mov_b32 v2, {NC_LDS}
    s_mov_b32 s{sSP}, 0
    s_cmp_eq_u32 s{sW}, 3
    s_cbranch_scc1 L_x_w3
    s_mul_i32 s57, s{sW}, 3
    s_mul_i32 s58, s57, 6144
    s_mul_i32 s57, s57, s{sXS}
    s_add_u32 s57, s57, s{sXB}
    s_add_u32 s58, s58, {XST}
    s_mov_b32 m0, s58
    s_add_u32 s59, s57, 4096
    ''')
    for t in range(3):
        for p in range(4):
            a(f'buffer_load_dwordx4 v{vDMA}, s[16:19], s57 offen offset:{1024*p} lds')
        a(f's_add_u32 m0, s58, {6144*t + 4096}')
        a(f's_add_u32 s57, s57, s{sXS}')
        for p in range(2):
            a(f'buffer_load_dwordx4 v{vDMA}, s[16:19], s59 offen offset:{1024*p} lds')
        if t < 2:
            a(f's_add_u32 m0, s58, {6144*(t+1)}')
            a(f's_add_u32 s59, s59, s{sXS}')
        if t == 1:
            a(f's_cmp_eq_u32 s{sW}, 2')
            a('s_cbranch_scc1 L_x_done')
    a('s_branch L_x_done')
    a.label('L_x_w3')
    a(f'''
    s_mov_b32 s28, s6
    s_mov_b32 s29, s7
    s_mov_b32 s30, 18432
    s_mov_b32 s31, 0x20000
    s_mov_b32 s32, s8
    s_mov_b32 s33, s9
    s_mov_b32 s34, 36864
    s_mov_b32 s35, 0x20000
    v_and_b32 v3, 31, v1
    v_lshrrev_b32 v4, 5, v1
    v_mul_u32_u24 v5, 192, v3
    v_lshl_add_u32 v5, v4, 4, v5
    v_mul_u32_u24 v6, 384, v3
    v_lshl_add_u32 v6, v4, 4, v6
    ''')
    for blk in range(3):
        a(f's_mov_b32 s57, {blk*32*192}')
        a(f's_mov_b32 s58, {blk*32*384}')
        for s_ in range(6):
            r = 160 + 4 * (6 * blk + s_)
            a(f'buffer_load_dwordx4 v[{r}:{r+3}], v5, s[28:31], s57 offen offset:{32*s_}')
            r = 4 * (6 * blk + s_)
            a(f'buffer_load_dwordx4 a[{r}:{r+3}], v6, s[32:35], s58 offen offset:{32*s_}')
    a(f'ds_write_b32 v2, v{vZ}')
    a(f'ds_write_b32 v2, v{vZ} offset:4')
    a('s_waitcnt lgkmcnt(0)')
    a.label('L_x_done')
    a('s_barrier')
    a(f'''
    v_and_b32 v3, 31, v1
    v_lshrrev_b32 v4, 5, v1
    v_mul_u32_u24 v{vXO}, 192, v3
    v_lshl_add_u32 v{vXO}, v4, 4, v{vXO}
    s_mul_i32 s{sXo}, s{sW}, s{sXS}
    s_add_u32 s{sXo}, s{sXo}, s{sXB}
    s_lshl_b32 s57, s{sXS}, 2
    s_add_u32 s{sXb}, s{sXo}, s57
    s_mov_b32 s20, s12
    s_mov_b32 s21, s13
    s_mov_b32 s22, {X_BYTES}
    s_mov_b32 s23, 0x20000
    s_mov_b32 s{sCNT}, 0
    s_add_u32 s{sT}, s{sW12}, {2*BUF}
    s_add_u32 s{sTE}, s{sW12}, {BUF}
    s_add_u32 s{sG[0]}, s{sW12}, {BUF}
    s_add_u32 s{sG[1]}, s{sW12}, {BUF+4096}
    s_add_u32 s{sG[2]}, s{sW12}, {BUF+8192}
    s_mov_b32 s{sDn}, {BUF}
    s_mov_b32 s{sDp}, {(-2*BUF) & 0xffffffff}
    s_lshl_b32 s{sFM}, s{sW}, 10
    s_add_u32 s{sFM}, s{sFM}, {FLAG_OFF + 192*128}
    ''')
    a.label('L_setup')
    if OPT.get('warm', 1):
        a(f'buffer_load_dword a240, v{vZ}, s[20:23], s{sXo} offen')
        a(f'buffer_load_dword a241, v{vZ}, s[20:23], s{sXb} offen')
    for i in range(4):
        a(f's_add_u32 s60, s{sW}, {1+i}')
        a('s_and_b32 s60, s60, 3')
        a('s_mul_i32 s60, s60, 12288')
        if i == 0:
            a(f's_mov_b32 s{sK0}, s60')
        if i == 3:
            a(f's_add_u32 s60, s60, {2*BUF}')
        a(f'v_add_u32 v{vLB[i]}, s60, v{vDMA}')
    a(f'''
    s_and_b32 s57, s{sW}, 1
    s_mul_i32 s57, s57, {OST}
    s_mov_b32 s58, {3*BUF}
    s_cmp_lt_u32 s{sW}, 2
    s_cselect_b32 s58, 30720, s58
    s_add_u32 s57, s57, s58
    v_mul_u32_u24 v{vSW}, 208, v3
    v_lshl_add_u32 v{vSW}, v4, 3, v{vSW}
    v_add_u32 v{vSW}, s57, v{vSW}
    ''')
    for j in range(3):
        a(f'v_add_u32 v5, {64*j}, v1')
        a('v_mul_u32_u24 v6, 171, v5')
        a('v_lshrrev_b32 v6, 11, v6')
        a('v_add_u32 v5, v5, v6')
        a(f'v_lshlrev_b32 v5, 4, v5')
        a(f'v_add_u32 v{vRB[j]}, s57, v5')
    a(f'''
    v_lshrrev_b32 v9, 4, v1
    v_and_b32 v10, 15, v1
    v_lshrrev_b32 v6, 2, v10
    v_lshl_add_u32 v6, v9, 3, v6
    v_mul_u32_u24 v5, 192, v6
    v_and_b32 v8, 3, v1
    v_lshl_add_u32 v5, v8, 3, v5
    s_lshl_b32 s57, s{sW}, 6
    s_add_u32 s57, s57, {XST}
    v_add_u32 v5, s57, v5
    v_cmp_eq_u32 vcc, v9, v10
    v_mov_b32 v6, 0x3f803f80
    v_lshlrev_b32 v8, 4, v8
    v_cndmask_b32 v{vS[3]}, 0, v6, vcc
    v_cndmask_b32 v{vS[3]+1}, 0, v6, vcc
    v_cndmask_b32 v{vS[3]+2}, 0, v6, vcc
    v_cndmask_b32 v{vS[3]+3}, 0, v6, vcc
    v_lshl_add_u32 v8, v4, 6, v8
    v_add_u32 v8, {LK_LDS}, v8
    v_and_b32 v3, 1, v9
    v_lshl_add_u32 v6, v3, 5, v10
    v_lshlrev_b32 v6, 4, v6
    v_lshrrev_b32 v7, 1, v9
    v_lshl_add_u32 v6, v7, 3, v6
    v_lshlrev_b32 v29, 4, v10
    v_lshl_add_u32 v29, v3, 6, v29
    v_lshl_add_u32 v29, v7, 3, v29
    s_lshl_b32 s57, s{sW}, 8
    s_add_u32 s57, s57, {LK_LDS}
    v_add_u32 v29, s57, v29
    v_lshlrev_b32 v7, 4, v10
    s_lshr_b32 s57, s{sU}, 3
    s_mul_i32 s57, s57, 12288
    s_and_b32 s58, s{sU}, 7
    s_lshl_b32 s59, s58, 6
    s_add_u32 s59, s59, s57
    s_lshl_b32 s60, s{sW}, 11
    s_add_u32 s59, s59, s60
    s_lshr_b32 s58, s58, 2
    s_mul_i32 s58, s58, 3072
    s_add_u32 s57, s57, s58
    s_add_u32 s57, s57, 6144
    s_and_b32 s58, s{sU}, 1
    s_lshl_b32 s58, s58, 9
    s_add_u32 s57, s57, s58
    s_and_b32 s58, s{sU}, 2
    s_lshl_b32 s58, s58, 2
    s_add_u32 s57, s57, s58
    s_lshl_b32 s60, s{sW}, 10
    s_add_u32 s57, s57, s60
    s_mul_i32 s58, s{sW}, 6144
    s_add_u32 s58, s58, {XST}
    v_add_u32 v30, s58, v{vXO}
    v_add_u32 v31, s58, v{vDMA}
    v_and_b32 v{vFO}, 7, v1
    v_lshlrev_b32 v{vFO}, 7, v{vFO}
    s_sub_u32 s{sFO}, s{sFM}, {192*128}
    v_mov_b32 v3, 1
    ''')
    def zero_o():
        for t in ('own', 'B0'):
            for i in range(48):
                a(f'v_mov_b32 v{rO[t][1]+i}, 0')
    for t in vL:
        a(f'v_mov_b32 v{vL[t]}, 0')
    def xfrags(n):
        for s in range(6):
            a(f'ds_read_b128 {rng("a", aX["B1"]+4*s, 4)}, v30 offset:{32*s}')
        if n > 1:
            for s in range(6):
                a(f'ds_read_b128 {rng("a", aX["B2"]+4*s, 4)}, v30 offset:{4*6144+32*s}')
    a(f's_cmp_eq_u32 s{sW}, 3')
    a('s_cbranch_scc1 L_w3_b2')
    zero_o()
    a(f'buffer_load_dwordx2 v[{vF}:{vF+1}], v{vZ}, s[48:51], 0 offen {OPT["ldsc"]}')
    stamp(a, 2)
    a('s_waitcnt vmcnt(0)')
    a('s_mov_b64 exec, 1')
    a('ds_add_u32 v2, v3')
    a('s_mov_b64 exec, -1')
    a.label('L_xw')
    a(f'ds_read_b32 v4, v2')
    a('s_waitcnt lgkmcnt(0)')
    a('v_cmp_ne_u32 vcc, 3, v4')
    a('s_cbranch_vccnz L_xw')
    stamp(a, 3)
    F = vM['own']
    def trr(row):
        for c in range(2):
            for half in range(2):
                d = F + (row * 2 + c) * 4 + 2 * half
                a(f'ds_read_b64_tr_b16 v[{d}:{d+1}], v5 offset:{row*6144 + half*768 + c*32}')
    IND = rng('v', vS[3], 4)
    D = vS[0]
    for row in range(3): trr(row)
    for row in range(8):
        nahead = min(2, 7 - row) if row + 3 > 7 else 2
        a(f's_waitcnt lgkmcnt({4*min(2, 7-row)})')
        for c in range(2):
            f = rng('v', F + (row * 2 + c) * 4, 4)
            d1 = rng('v', D + 8 * c, 4); d2 = rng('v', D + 8 * c + 4, 4)
            a(f'v_mfma_f32_16x16x32_bf16 {d1}, {f}, {IND}, {"0" if row == 0 else d1}')
            a(f'v_mfma_f32_16x16x32_bf16 {d2}, {IND}, {f}, {"0" if row == 0 else d2}')
        if row + 3 < 8: trr(row + 3)
    a('s_mov_b32 s60, 0x3c800000')
    a('v_cmp_gt_u32 vcc, 4, v10')
    xfrags(2)
    for r in range(16):
        a(f'v_mul_f32 v{D+r}, s60, v{D+r}')
    for r in range(8):
        a(f'v_cvt_pk_bf16_f32 v{D+16+r}, v{D+2*r}, v{D+2*r+1}')
    a('s_cmp_eq_u32 s56, 7')
    a('s_mov_b64 exec, vcc')
    a('s_cbranch_scc1 L_nostore')
    for c in range(2):
        a(f'buffer_store_dwordx2 v[{D+16+4*c}:{D+17+4*c}], v6, s[24:27], s59 offen offset:{1024*c} {st}')
    a('s_mov_b64 exec, 0xffff')
    for c in range(2):
        a(f'buffer_store_dwordx2 v[{D+18+4*c}:{D+19+4*c}], v7, s[24:27], s57 offen offset:{256*c} {st}')
    a('s_mov_b64 exec, vcc')
    a.label('L_nostore')
    for c in range(2):
        a(f'ds_write_b64 v29, v[{D+16+4*c}:{D+17+4*c}] offset:{128*c}')
    a('s_mov_b64 exec, -1')
    stamp(a, 4)
    a(f'v_cmp_eq_u32 vcc, 0, v{vF+1}')
    a('s_cbranch_vccz L_nonce_ok')
    nonce_spin(a, 'L_nonce')
    a(f'v_readfirstlane_b32 s{sN}, v{vF}')
    a(f'v_readfirstlane_b32 s{sN+1}, v{vF+1}')
    a('s_waitcnt lgkmcnt(0)')
    a('s_barrier')
    a('s_branch L_q')
    a.label('L_w3_b2')
    stamp(a, 2)
    a('v_and_b32 v4, 31, v1')
    a('v_lshlrev_b32 v4, 4, v4')
    a('v_lshrrev_b32 v5, 5, v1')
    a('v_lshl_add_u32 v4, v5, 3, v4')
    a(f'v_add_u32 v4, {WQ_LDS}, v4')
    a(f's_mov_b32 s60, 0x{f32bits(CST):08x}')
    a(f'buffer_load_dwordx2 v[{vF}:{vF+1}], v{vZ}, s[48:51], 0 offen {OPT["ldsc"]}')
    tiles = [(0, 0), (1, 0), (0, 1), (1, 1), (2, 0), (2, 1), (0, 2), (1, 2), (2, 2)]
    def wfin(n):
        ca, cb = tiles[n]
        S = vS[n % 4]
        o = [f'v_mul_f32 v{S+r}, s60, v{S+r}' for r in range(16)]
        o += [f'v_cvt_pk_bf16_f32 v{S+r}, v{S+2*r}, v{S+2*r+1}' for r in range(8)]
        o += [f'ds_write_b64 v4, v[{S+2*i}:{S+2*i+1}] offset:{(cb*6 + 2*ca + (i>>1))*1024 + (i&1)*512}' for i in range(4)]
        return o
    mf = []; fill = []
    for n, (ca, cb) in enumerate(tiles):
        d = rng('v', vS[n % 4], 16)
        for s_ in range(6):
            pre = ''
            if s_ == 0 and n in (0, 1, 4):
                pre = f's_waitcnt vmcnt({ {0: 27, 1: 15, 4: 3}[n] })\n'
            mf.append(pre + f'v_mfma_f32_32x32x16_bf16 {d}, v[{160+4*(6*ca+s_)}:{163+4*(6*ca+s_)}], a[{4*(6*cb+s_)}:{3+4*(6*cb+s_)}], {"0" if s_ == 0 else d}')
        fill += [('at', 6 * n + 8)] + wfin(n)
    last = wfin(8)
    fill = fill[:-len(last)]
    weave(a, mf, fill)
    stamp(a, 3)
    a('s_nop 11')
    for x in last: a(x)
    zero_o()
    for i in range(96):
        a(f'v_accvgpr_write_b32 a{i}, 0')
    stamp(a, 4)
    a('s_waitcnt vmcnt(0)')
    a(f'v_cmp_eq_u32 vcc, 0, v{vF+1}')
    a('s_cbranch_vccz L_nonce3_ok')
    nonce_spin(a, 'L_nonce3')
    a(f'v_readfirstlane_b32 s{sN}, v{vF}')
    a(f'v_readfirstlane_b32 s{sN+1}, v{vF+1}')
    a('s_waitcnt lgkmcnt(0)')
    a('s_barrier')
    xfrags(1)
    a.label('L_q')
    stamp(a, 5)
    a(f'v_add_u32 v4, {WQ_LDS}, v{vDMA}')
    for f in range(18):
        a(f'ds_read_b128 {wvo_reg(f)}, v4 offset:{1024*f}')
    for s in range(6):
        a(f'ds_read_b128 {rng("a", aV+4*s, 4)}, v8 offset:{128*s}')
    a(f's_cmp_eq_u32 s{sW}, 3')
    a(f's_cselect_b32 s60, {4*6144}, 0')
    a('v_add_u32 v31, s60, v31')
    def qfin(ti, ct):
        S = vS[(2 * ct + ti) % 4]
        X = aX['own' if ti == 0 else 'B0'] + 8 * ct
        out = []
        for j in range(8):
            out.append(f'v_cvt_pk_bf16_f32 v{S+j}, v{S+2*j}, v{S+2*j+1}')
        for j in range(8):
            out.append(f'v_accvgpr_write_b32 a{X+j}, v{S+j}')
        if ti == 1:
            for k in range(2):
                out.append(f'ds_write_b128 v31, v[{S+4*k}:{S+4*k+3}] offset:{(2*ct+k)*1024}')
        return out
    def g0_dma():
        for q in range(3):
            a(f's_add_u32 s60, s{sW12}, {q*4096}')
            a('s_mov_b32 m0, s60')
            a('s_nop 0')
            for p in range(4):
                a(f'buffer_load_dwordx4 v{vDMA}, s[24:27], s60 offen offset:{1024*p} lds')
        a(f's_add_u32 s{sFO}, s{sFO}, 4096')
        a(flag_load())
    def checkpoint(k):
        a('s_cmp_eq_u32 s55, 1')
        a(f's_cbranch_scc1 L_cp{k}_e')
        a('s_waitcnt vmcnt(0)')
        a(flag_cmp())
        a(f's_cbranch_vccnz L_cp{k}_n')
        g0_dma()
        a('s_mov_b32 s55, 1')
        a(f's_branch L_cp{k}_e')
        a.label(f'L_cp{k}_n')
        a(flag_load())
        a.label(f'L_cp{k}_e')
    a('s_mov_b32 s55, 0')
    def publish():
        a(f'''
        s_cmp_eq_u32 s{sW}, 3
        s_cbranch_scc1 L_noflag
        s_lshl_b32 s60, s{sU}, 7
        s_add_u32 s60, s60, {FLAG_OFF}
        s_waitcnt vmcnt(0)
        s_mov_b64 exec, 1
        ds_add_rtn_u32 v3, v2, v3 offset:4
        s_waitcnt lgkmcnt(0)
        v_cmp_eq_u32 vcc, 2, v3
        s_cmp_eq_u32 s56, 7
        s_cbranch_scc1 L_noflag
        s_cbranch_vccz L_noflag
        buffer_store_dwordx2 v[{vF}:{vF+1}], v{vZ}, s[24:27], s60 offen {st}
        ''')
        a.label('L_noflag')
        a('s_mov_b64 exec, -1')
    blocks = [(ti, ct) for ct in range(3) for ti in range(2)]
    pend = []
    for n, (ti, ct) in enumerate(blocks):
        d = rng('v', vS[(2 * ct + ti) % 4], 16)
        X = aX['B1' if ti == 0 else 'B2']
        if n == 0: a('s_waitcnt lgkmcnt(15)')
        if n == 2: a('s_waitcnt lgkmcnt(6)')
        if n == OPT.get('pubat', 2): publish()
        if n == 5: a(flag_load())
        for s in range(6):
            a(f'v_mfma_f32_32x32x16_bf16 {d}, {wvo_reg(6*ct+s)}, {rng("a", X+4*s, 4)}, {"0" if s == 0 else d}')
            if n >= 2 and s >= 1:
                for _ in range(4):
                    if pend: a(pend.pop(0))
        assert not pend
        if n >= 1:
            pend += qfin(*blocks[n - 1])
    a('s_nop 7')
    for x in pend: a(x)
    for x in qfin(*blocks[-1]): a(x)
    stamp(a, 6)
    checkpoint(6)
    a('s_waitcnt lgkmcnt(0)')
    for ti, t in enumerate(('own', 'B0')):
        d = rng('v', vS[ti], 16)
        for s in range(6):
            a(f'v_mfma_f32_32x32x16_bf16 {d}, {rng("a", aV+4*s, 4)}, {rng("a", aX[t]+4*s, 4)}, {"0" if s == 0 else d}')
    a('s_cmp_eq_u32 s55, 1')
    a('s_cbranch_scc1 L_g0_done')
    a('s_waitcnt vmcnt(0)')
    a(flag_cmp())
    a('s_cbranch_vccz L_w0_ok')
    spin(a, 'L_w0')
    g0_dma()
    a.label('L_g0_done')
    stamp(a, 7)
    a('s_nop 7')
    a(f's_lshl_b32 s60, s{sW}, 10')
    a(f's_add_u32 s60, s60, {MX_LDS}')
    a(f'v_add_u32 v3, s60, v{vDMA}')
    for ti, t in enumerate(('own', 'B0')):
        S = vS[ti]
        a(f'v_max3_f32 v2, v{S}, v{S+1}, v{S+2}')
        a(f'v_max_f32 v2, v2, v{S+3}')
        a(f'v_sub_f32 v{vM[t]}, 0, v2')
        for i in range(1, 16):
            a(f'v_mov_b32 v{vM[t]+i}, v{vM[t]}')
    a(f'ds_write_b128 v3, {rng("v", vM["B0"], 4)}')
    for i in range(24):
        a(f'v_accvgpr_write_b32 a{aV+i}, 0')
    for i in range(4):
        a(f'v_mov_b32 v{vS[3]+i}, 0')
        a(f'v_mov_b32 v{vS[3]+8+i}, 0')
    a(f'v_add_u32 v2, {XST}, v{vDMA}')
    a(f'v_mov_b32 v{vHI}, 0x{HI:08x}')
    a('s_waitcnt vmcnt(0) lgkmcnt(0)')
    a('s_barrier')
    stamp(a, 8)
    for s in range(6):
        a(kread(0, s))
    a(flag_cmp())
    a(f's_cmp_lg_u32 s{sW}, 3')
    a('s_cbranch_scc1 L_owner')

    def group1(tag):
        a(f's_cbranch_vccz L_w1{tag}_ok')
        spin(a, f'L_w1{tag}')
        for q in range(3):
            a(f's_add_u32 m0, s{sTE}, {q*4096}')
            a('s_nop 0')
            for p in range(4):
                a(dma(q, p))
            a(f's_add_u32 s{sG[q]}, s{sG[q]}, {BUF}')
        a(f's_add_u32 s{sFO}, s{sFO}, 4096')
        a('s_waitcnt lgkmcnt(0)')
        stamp(a, 11)
        stamp(a, 12, True)
        if OPT['stamps']: a('s_waitcnt lgkmcnt(0)')

    vhalf = [f'ds_read_b128 {rng("a", aV+4*ct, 4)}, v{vDMA} offset:{6144+1024*ct}' for ct in range(3)]
    wv = [f'ds_read_b128 {wvo_reg(f)}, v{vDMA} offset:{WVO_LDS + 1024*f}' for f in range(18)]
    PA = vS[0]
    PB = vS[2]

    for e, t in enumerate(('B0', 'B1', 'B2')):
        for s in range(6):
            a(f'ds_read_b128 {rng("a", aX[t]+4*s, 4)}, v2 offset:{e*6144 + 1024*s}')
        for k in range(4):
            a(f'ds_read_b128 {rng("v", vM[t]+4*k, 4)}, v2 offset:{24576 + 1024*e}')
        if e == 0:
            a('s_waitcnt lgkmcnt(10)')
            for s in range(6): a(qk_mfma('own', 0, s))
    group1('h')
    gen_loop(a, True)
    stamp(a, 13); stamp(a, 14, True)
    a(f'v_add_u32 v5, {MERGE0}, v{vDMA}')
    a('v_lshlrev_b32 v2, 2, v1')
    a(f'v_add_u32 v2, {MERGE0}, v2')
    a(f's_mov_b32 s58, 0x{LO:08x}')
    a('s_waitcnt lgkmcnt(0)')
    wr = []
    for e, t in enumerate(('B0', 'B1', 'B2')):
        k, b = rO[t]
        wr += [f'ds_write_b128 v5, {rng(k, b+4*j, 4)} offset:{e*MERGE + 1024*j}' for j in range(12)]
        wr += [f'ds_write_b32 v2, v{vL[t]} offset:{e*MERGE + 12288}']
    mf = [pv_mfma('own', 3, t, ct) for t in range(2) for ct in range(3)]
    fill = []
    for g in range(6):
        fill.append(('at', g))
        if g < 3: fill.append(vhalf[g])
        fill += wr[5*g:5*g+5]
    weave(a, mf, fill)
    for x in wr[30:]: a(x)
    for x in half_softmax_ops(0, 'own'): a(x)
    a('s_waitcnt lgkmcnt(0)')
    a('s_barrier')
    weave(a, [pv_mfma('own', 0, 0, ct) for ct in range(3)], wv)
    a('s_nop 7')
    for x in lsum_ops('own', 2, 'h'): a(x)
    a('s_nop 0')
    for x in norm_cvt_ops('own', 2, PA): a(x)
    a('s_waitcnt lgkmcnt(0)')
    weave(a, proj_mfmas('own', PA), [('at', 9)] + fin_ops('own', 0) + [('at', 15)] + fin_ops('own', 1))
    a('s_nop 11')
    for x in fin_ops('own', 2): a(x)
    for x in store_ops(PB, sXo, 60): a(x)
    for x in store_ops2(PB, sXo, 60): a(x)
    stamp(a, 15)
    stamp_store(a)
    a('s_endpgm')
    slow_path(a, 'h')
    redo(a, 'own', 2, 'h')
    a.label('L_owner')
    a('s_waitcnt lgkmcnt(0)')
    for s in range(6): a(qk_mfma('own', 0, s))
    group1('o')
    gen_loop(a, False)
    stamp(a, 13); stamp(a, 14, True)
    a(f's_mul_i32 s60, s{sW}, {MERGE}')
    a(f's_add_u32 s60, s60, {MERGE0}')
    a(f'v_add_u32 v6, s60, v{vDMA}')
    a('v_lshlrev_b32 v7, 2, v1')
    a('v_add_u32 v7, s60, v7')
    a(f's_mov_b32 s58, 0x{LO:08x}')
    a('s_waitcnt lgkmcnt(0)')
    mf = [qk_mfma('B0', 1, s) for s in range(6)] + [pv_mfma('own', 3, t, ct) for t in range(2) for ct in range(3)]
    fill = half_softmax_ops(0, 'own')
    fill += [('at', 6), vhalf[0]] + wv[0:3] + [('at', 7), vhalf[1]] + wv[3:6] + [('at', 8), vhalf[2]] + wv[6:9]
    fill += [('at', 9)] + half_softmax_ops(1, 'B0')
    weave(a, mf, fill)
    a('s_waitcnt lgkmcnt(3)')
    mf = [pv_mfma('own', 0, 0, ct) for ct in range(3)] + [pv_mfma('B0', 1, 0, ct) for ct in range(3)]
    weave(a, mf, wv[9:])
    a('s_nop 5')
    for x in lsum_ops('own', 2, 'oo'): a(x)
    a('s_nop 0')
    for x in norm_cvt_ops('own', 2, PA): a(x)
    a('s_waitcnt lgkmcnt(0)')
    a('s_barrier')
    TT = [56, 60, 88, 92]
    b = rO['B0'][1]
    mg = ['ds_read_b32 v8, v7 offset:12288']
    for j in range(4):
        mg.append(f'ds_read_b128 v[{TT[j]}:{TT[j]+3}], v6 offset:{1024*j}')
    for j in range(12):
        t = TT[j % 4]
        mg.append(('at', j + 2))
        mg.append(f's_waitcnt lgkmcnt({min(3, 11-j)})')
        for i in range(4):
            mg.append(f'v_add_f32 v{b+4*j+i}, v{b+4*j+i}, v{t+i}')
        if j + 4 < 12:
            mg.append(('at', j + 3))
            mg.append(f'ds_read_b128 v[{t}:{t+3}], v6 offset:{1024*(j+4)}')
    mg.append(f'v_add_f32 v{vL["B0"]}, v{vL["B0"]}, v8')
    weave(a, proj_mfmas('own', PA), mg)
    for x in lsum_ops('B0', 2, 'ob'): a(x)
    a('s_nop 0')
    for x in norm_cvt_ops('B0', 2, PB): a(x)
    fill = fin_ops('own', 0) + fin_ops('own', 1) + fin_ops('own', 2) + store_ops(PA, sXo, 60)
    fill += [('at', 10)] + ['s_waitcnt lgkmcnt(0)'] + store_ops2(PA, sXo, 60, waits=False)
    fill += [('at', 12)] + fin_ops('B0', 0) + [('at', 15)] + fin_ops('B0', 1)
    weave(a, proj_mfmas('B0', PB), fill)
    a('s_nop 11')
    for x in fin_ops('B0', 2): a(x)
    for x in store_ops(PB, sXb, 60): a(x)
    for x in store_ops2(PB, sXb, 60): a(x)
    stamp(a, 15)
    stamp_store(a)
    a('s_endpgm')
    slow_path(a, 'o')
    redo(a, 'own', 2, 'oo')
    redo(a, 'B0', 2, 'ob')

def build(path):
    a = Asm()
    a.raw(f'.globl {NAME}')
    a.raw('.p2align 8')
    a.raw(f'.type {NAME},@function')
    a.label(NAME)
    a(f'''
    s_cmp_ge_u32 s2, {NSP+NCONS}
    s_cbranch_scc1 L_end
    ''')
    stamp(a, 0, True)
    stamp(a, 1)
    a(f'''
    s_load_dwordx8 s[4:11], s[0:1], 0
    s_load_dwordx2 s[12:13], s[0:1], 32
    s_load_dwordx4 s[44:47], s[0:1], 40
    v_lshrrev_b32 v2, 6, v0
    v_and_b32 v1, 63, v0
    v_readfirstlane_b32 s{sW}, v2
    s_waitcnt lgkmcnt(0)
    s_mov_b32 s16, s4
    s_mov_b32 s17, s5
    s_mov_b32 s18, {X_BYTES}
    s_mov_b32 s19, 0x20000
    s_mov_b32 s24, s46
    s_mov_b32 s25, s47
    s_mov_b32 s26, {WS_BYTES}
    s_mov_b32 s27, 0x20000
    s_mov_b32 s48, s44
    s_mov_b32 s49, s45
    s_mov_b32 s50, 256
    s_mov_b32 s51, 0x20000
    s_cmp_lt_u32 s2, {NSP}
    s_cbranch_scc1 L_spare
    ''')
    gen_consumer(a)
    gen_spare(a)
    a.label('L_end')
    a('s_endpgm')
    out = HEADER
    out += f'; @launch grid=({NSP+NCONS},1,1) block=(256,1,1) lds={LDS_TOTAL}\n'
    out += '.amdgcn_target "amdgcn-amd-amdhsa--gfx950"\n.text\n'
    out += a.text()
    out += '.section .rodata,"a"\n.p2align 6\n'
    out += kd(NAME, 512, 256)
    open(path, 'w').write(out)

if __name__ == '__main__':
    for o in sys.argv[2:]:
        if '=' in o:
            k, v = o.split('=')
            OPT[k] = int(v) if v.isdigit() else v.replace('+', ' ')
        else:
            OPT[o] = True
    build(sys.argv[1] if len(sys.argv) > 1 else 'k6.s')
```

```python
import sys
from gen import Asm, f32bits, kd, HEADER, X_BYTES, KV_BYTES, CST
from gen2 import (vLB, vDMA, vL, vXO, vS, vM, rO, aX, aK, aV, BUF, MERGE, rng, qk_mfma, pv_mfma,
                  softmax_ops, schedule_stage, kread, vread)
import gen5
from gen5 import (NAME, NSP, NCONS, WVO_OFF, WQK_OFF, FLAG_OFF, WS_BYTES, OST, LDS_TOTAL, XST, WQ_LDS, WVO_LDS, MERGE0,
                  QX_LDS, MX_LDS, LK_LDS, NC_LDS, OPT, sW, sCNT, sT, sG, sDn, sDp, sTE, sTMP, sXo, sXb, sXB, sXS, sFO, sD0,
                  sK0, sFM, sSP, sU, sW12, vF, vZ, sN, vFO, vRB, vSW, stamp, stamp_store, gen_spare, dma, flag_load,
                  flag_cmp, spin_tail, nonce_spin, spin, gen_loop, slow_path, wvo_reg)

def cost(ins):
    op = ins.split()[0]
    if op.startswith('v_exp') or op.startswith('v_rcp'): return 2
    return 1
def is_mem(ins):
    return ins.startswith('ds_') or ins.startswith('buffer_')
def is_salu(ins):
    return ins.startswith('s_')

def weave(a, mfmas, fill, cap=6):
    q = list(fill)
    for g, m in enumerate(mfmas):
        a(m)
        c = cap
        first = True
        prev_valu = False
        while q:
            it = q[0]
            if isinstance(it, tuple):
                if it[1] > g: break
                q.pop(0); continue
            k = cost(it)
            if is_salu(it) and first: k = 0
            if is_mem(it) and prev_valu: break
            if k > c: break
            a(q.pop(0)); c -= k; first = False
            prev_valu = prev_valu or it.startswith('v_')
    for it in q:
        if not isinstance(it, tuple): a(it)

def half_softmax_ops(sbuf, tile):
    S = vS[sbuf]; L = vL[tile]
    o = [f'v_exp_f32 v{S+i}, v{S+i}' for i in range(8)]
    o += [f'v_add_f32 v{L}, v{L}, v{S+i}' for i in range(8)]
    o += [f'v_cvt_pk_bf16_f32 v{S+j}, v{S+2*j}, v{S+2*j+1}' for j in range(4)]
    return o

LO = f32bits(2.0 ** -90)
HI = f32bits(2.0 ** 90)

def lsum_ops(tile, r, tag):
    L = vL[tile]
    return [f'v_mov_b32 v{r}, v{L}', 's_nop 1', f'v_permlane32_swap_b32 v{L}, v{r}', 's_nop 0',
            f'v_add_f32 v{r}, v{L}, v{r}',
            f'v_med3_f32 v{r+1}, v{r}, s58, v{vHI}',
            f'v_cmp_neq_f32 vcc, v{r+1}, v{r}',
            f's_cbranch_vccnz L_redo_{tag}', f'L_redone_{tag}:',
            f'v_rcp_f32 v{r}, v{r}']
vHI = 9

def redo(a, tile, r, tag):
    k, b = rO[tile]
    L = vL[tile]
    X = aX[tile]
    S = vS[2]; M = vS[3]
    sd = rng('v', S, 16)
    a.label(f'L_redo_{tag}')
    a('s_waitcnt vmcnt(0) lgkmcnt(0)')
    a('s_nop 15')
    a('v_mov_b32 v4, 0xff800000')
    a('s_mov_b32 s55, 0')
    def kload():
        a('s_add_u32 s57, s55, 4096')
        for s in range(6):
            a(f'buffer_load_dwordx4 {rng("a", aK+4*s, 4)}, v{vDMA}, s[24:27], s{55 if s < 4 else 57} offen offset:{1024*(s%4)}')
    def vload(n):
        a('s_add_u32 s57, s55, 6144')
        a('s_add_u32 s59, s55, 10240')
        for f in range(n):
            a(f'buffer_load_dwordx4 {rng("a", aV+4*f, 4)}, v{vDMA}, s[24:27], s{57 if f < 4 else 59} offen offset:{1024*(f%4)}')
    def qk(c):
        for s in range(6):
            a(f'v_mfma_f32_32x32x16_bf16 {sd}, {rng("a", aK+4*s, 4)}, {rng("a", X+4*s, 4)}, {c if s == 0 else sd}')
        a('s_nop 15')
    def mx(n):
        for i in range(0, n, 2):
            a(f'v_max3_f32 v4, v4, v{S+i}, v{S+i+1}')
    a.label(f'L_redo1_{tag}')
    kload(); a('s_waitcnt vmcnt(0)'); qk('0')
    a(f's_cmp_eq_u32 s55, {24*12288}')
    a(f's_cbranch_scc1 L_redo1e_{tag}')
    mx(16)
    a('s_add_u32 s55, s55, 12288')
    a(f's_branch L_redo1_{tag}')
    a.label(f'L_redo1e_{tag}')
    mx(8)
    a('v_mov_b32 v5, v4')
    a('s_nop 1')
    a('v_permlane32_swap_b32 v4, v5')
    a('s_nop 0')
    a('v_max_f32 v4, v4, v5')
    for i in range(16):
        a(f'v_sub_f32 v{M+i}, 0, v4')
    for i in range(48):
        a(f'v_mov_b32 v{b+i}, 0')
    a(f'v_mov_b32 v{L}, 0')
    a('s_mov_b32 s55, 0')
    def sm(n):
        for i in range(n): a(f'v_exp_f32 v{S+i}, v{S+i}')
        a('s_nop 0')
        for i in range(n): a(f'v_add_f32 v{L}, v{L}, v{S+i}')
        for p in range(n // 2):
            t, j = divmod(p, 4)
            a(f'v_cvt_pk_bf16_f32 v{S+8*t+j}, v{S+2*p}, v{S+2*p+1}')
        a('s_nop 1')
        for t in range(n // 8):
            for ct in range(3):
                a(pv_mfma(tile, 2, t, ct))
    a.label(f'L_redo2_{tag}')
    kload(); vload(6); a('s_waitcnt vmcnt(0)'); qk(rng('v', M, 16))
    a(f's_cmp_eq_u32 s55, {24*12288}')
    a(f's_cbranch_scc1 L_redo2e_{tag}')
    sm(16)
    a('s_add_u32 s55, s55, 12288')
    a(f's_branch L_redo2_{tag}')
    a.label(f'L_redo2e_{tag}')
    sm(8)
    for f in (16, 17):
        a(f'ds_read_b128 {wvo_reg(f)}, v{vDMA} offset:{WVO_LDS + 1024*f}')
    a(f'v_mov_b32 v{r}, v{L}')
    a('s_nop 1')
    a(f'v_permlane32_swap_b32 v{L}, v{r}')
    a('s_nop 0')
    a(f'v_add_f32 v{r}, v{L}, v{r}')
    a('s_waitcnt lgkmcnt(0)')
    a('s_nop 15')
    a(f's_branch L_redone_{tag}')

def norm_cvt_ops(tile, r, P):
    b = rO[tile][1]
    o = []
    for j in range(24):
        o.append(f'v_mul_f32 v{b+2*j}, v{r}, v{b+2*j}')
        o.append(f'v_mul_f32 v{b+2*j+1}, v{r}, v{b+2*j+1}')
        o.append(f'v_cvt_pk_bf16_f32 v{P+j}, v{b+2*j}, v{b+2*j+1}')
    return o

def proj_mfmas(tile, P):
    b = rO[tile][1]
    m = []
    for cot in range(3):
        d = rng('v', b + 16 * cot, 16)
        for s in range(6):
            m.append(f'v_mfma_f32_32x32x16_bf16 {d}, {wvo_reg(6*cot+s)}, {rng("v", P+4*s, 4)}, {"0" if s == 0 else d}')
    return m

def fin_ops(tile, cot):
    o = rO[tile][1] + 16 * cot
    out = [f'v_cvt_pk_bf16_f32 v{o+j}, v{o+2*j}, v{o+2*j+1}' for j in range(8)]
    out += [f'ds_write_b64 v{vSW}, v[{o+2*i}:{o+2*i+1}] offset:{64*cot+16*i}' for i in range(4)]
    return out

def store_ops(R, soff, s2):
    o = ['s_waitcnt lgkmcnt(0)']
    o += [f'ds_read_b128 v[{R+4*j}:{R+4*j+3}], v{vRB[j%3]} offset:{(j//3)*16*208}' for j in range(6)]
    o += [f's_add_u32 s{s2}, s{soff}, 4096']
    return o
def store_ops2(R, soff, s2, waits=True):
    o = []
    for j in range(6):
        if waits: o.append(f's_waitcnt lgkmcnt({5-j})')
        o.append(f'buffer_store_dwordx4 v[{R+4*j}:{R+4*j+3}], v{vDMA}, s[20:23], s{soff if j < 4 else s2} offen offset:{1024*(j%4)}')
    return o

def probe(a, where):
    if OPT.get('probe') != where: return
    lab = f'L_probe{len(a.lines)}'
    a.label(lab)
    a('s_memrealtime s[98:99]')
    a('s_waitcnt lgkmcnt(0)')
    a('s_sub_u32 s98, s98, s100')
    a(f's_cmp_lt_u32 s98, {OPT["D"]}')
    a(f's_cbranch_scc1 {lab}')

def gen_consumer(a):
    st = OPT['stsc']
    a(f'''
    s_sub_u32 s3, s2, {NSP}
    v_lshlrev_b32 v{vDMA}, 4, v1
    s_lshr_b32 s55, s3, 3
    s_and_b32 s56, s3, 7
    s_mul_i32 s{sXB}, s55, 344064
    s_mul_i32 s57, s56, 6144
    s_mov_b32 s{sXS}, 43008
    s_cmp_eq_u32 s56, 7
    s_cselect_b32 s57, {7*43008}, s57
    s_cselect_b32 s{sXS}, 6144, s{sXS}
    s_add_u32 s{sXB}, s{sXB}, s57
    s_mul_i32 s{sU}, s55, 7
    s_add_u32 s{sU}, s{sU}, s56
    s_mul_i32 s{sW12}, s{sW}, 12288
    v_mov_b32 v{vZ}, 0
    v_mov_b32 v2, {NC_LDS}
    s_mov_b32 s{sSP}, 0
    s_cmp_eq_u32 s{sW}, 3
    s_cbranch_scc1 L_x_w3
    s_mul_i32 s57, s{sW}, 3
    s_mul_i32 s58, s57, 6144
    s_mul_i32 s57, s57, s{sXS}
    s_add_u32 s57, s57, s{sXB}
    s_add_u32 s58, s58, {XST}
    s_mov_b32 m0, s58
    s_add_u32 s59, s57, 4096
    ''')
    for t in range(3):
        for p in range(4):
            a(f'buffer_load_dwordx4 v{vDMA}, s[16:19], s57 offen offset:{1024*p} lds')
        a(f's_add_u32 m0, s58, {6144*t + 4096}')
        a(f's_add_u32 s57, s57, s{sXS}')
        for p in range(2):
            a(f'buffer_load_dwordx4 v{vDMA}, s[16:19], s59 offen offset:{1024*p} lds')
        if t < 2:
            a(f's_add_u32 m0, s58, {6144*(t+1)}')
            a(f's_add_u32 s59, s59, s{sXS}')
        if t == 1:
            a(f's_cmp_eq_u32 s{sW}, 2')
            a('s_cbranch_scc1 L_x_done')
    a('s_branch L_x_done')
    a.label('L_x_w3')
    a(f'''
    s_mov_b32 s28, s6
    s_mov_b32 s29, s7
    s_mov_b32 s30, 18432
    s_mov_b32 s31, 0x20000
    s_mov_b32 s32, s8
    s_mov_b32 s33, s9
    s_mov_b32 s34, 36864
    s_mov_b32 s35, 0x20000
    v_and_b32 v3, 31, v1
    v_lshrrev_b32 v4, 5, v1
    v_mul_u32_u24 v5, 192, v3
    v_lshl_add_u32 v5, v4, 4, v5
    v_mul_u32_u24 v6, 384, v3
    v_lshl_add_u32 v6, v4, 4, v6
    ''')
    for blk in range(3):
        a(f's_mov_b32 s57, {blk*32*192}')
        a(f's_mov_b32 s58, {blk*32*384}')
        for s_ in range(6):
            r = 160 + 4 * (6 * blk + s_)
            a(f'buffer_load_dwordx4 v[{r}:{r+3}], v5, s[28:31], s57 offen offset:{32*s_}')
            r = 4 * (6 * blk + s_)
            a(f'buffer_load_dwordx4 a[{r}:{r+3}], v6, s[32:35], s58 offen offset:{32*s_}')
    a(f'ds_write_b32 v2, v{vZ}')
    a(f'ds_write_b32 v2, v{vZ} offset:4')
    a('s_waitcnt lgkmcnt(0)')
    a.label('L_x_done')
    a('s_barrier')
    a(f'''
    v_and_b32 v3, 31, v1
    v_lshrrev_b32 v4, 5, v1
    v_mul_u32_u24 v{vXO}, 192, v3
    v_lshl_add_u32 v{vXO}, v4, 4, v{vXO}
    s_mul_i32 s{sXo}, s{sW}, s{sXS}
    s_add_u32 s{sXo}, s{sXo}, s{sXB}
    s_lshl_b32 s57, s{sXS}, 2
    s_add_u32 s{sXb}, s{sXo}, s57
    s_mov_b32 s20, s12
    s_mov_b32 s21, s13
    s_mov_b32 s22, {X_BYTES}
    s_mov_b32 s23, 0x20000
    s_mov_b32 s{sCNT}, 0
    s_add_u32 s{sT}, s{sW12}, {2*BUF}
    s_add_u32 s{sTE}, s{sW12}, {BUF}
    s_add_u32 s{sG[0]}, s{sW12}, {BUF}
    s_add_u32 s{sG[1]}, s{sW12}, {BUF+4096}
    s_add_u32 s{sG[2]}, s{sW12}, {BUF+8192}
    s_mov_b32 s{sDn}, {BUF}
    s_mov_b32 s{sDp}, {(-2*BUF) & 0xffffffff}
    s_lshl_b32 s{sFM}, s{sW}, 10
    s_add_u32 s{sFM}, s{sFM}, {FLAG_OFF + 192*128}
    ''')
    a.label('L_setup')
    if OPT.get('warm', 1):
        a(f'buffer_load_dword a240, v{vZ}, s[20:23], s{sXo} offen')
        a(f'buffer_load_dword a241, v{vZ}, s[20:23], s{sXb} offen')
    for i in range(4):
        a(f's_add_u32 s60, s{sW}, {1+i}')
        a('s_and_b32 s60, s60, 3')
        a('s_mul_i32 s60, s60, 12288')
        if i == 0:
            a(f's_mov_b32 s{sK0}, s60')
        if i == 3:
            a(f's_add_u32 s60, s60, {2*BUF}')
        a(f'v_add_u32 v{vLB[i]}, s60, v{vDMA}')
    a(f'''
    s_and_b32 s57, s{sW}, 1
    s_mul_i32 s57, s57, {OST}
    s_mov_b32 s58, {3*BUF}
    s_cmp_lt_u32 s{sW}, 2
    s_cselect_b32 s58, 30720, s58
    s_add_u32 s57, s57, s58
    v_mul_u32_u24 v{vSW}, 208, v3
    v_lshl_add_u32 v{vSW}, v4, 3, v{vSW}
    v_add_u32 v{vSW}, s57, v{vSW}
    ''')
    for j in range(3):
        a(f'v_add_u32 v5, {64*j}, v1')
        a('v_mul_u32_u24 v6, 171, v5')
        a('v_lshrrev_b32 v6, 11, v6')
        a('v_add_u32 v5, v5, v6')
        a(f'v_lshlrev_b32 v5, 4, v5')
        a(f'v_add_u32 v{vRB[j]}, s57, v5')
    a(f'''
    v_lshrrev_b32 v9, 4, v1
    v_and_b32 v10, 15, v1
    v_lshrrev_b32 v6, 2, v10
    v_lshl_add_u32 v6, v9, 3, v6
    v_mul_u32_u24 v5, 192, v6
    v_and_b32 v8, 3, v1
    v_lshl_add_u32 v5, v8, 3, v5
    s_lshl_b32 s57, s{sW}, 6
    s_add_u32 s57, s57, {XST}
    v_add_u32 v5, s57, v5
    v_cmp_eq_u32 vcc, v9, v10
    v_mov_b32 v6, 0x3f803f80
    v_lshlrev_b32 v8, 4, v8
    v_cndmask_b32 v{vS[3]}, 0, v6, vcc
    v_cndmask_b32 v{vS[3]+1}, 0, v6, vcc
    v_cndmask_b32 v{vS[3]+2}, 0, v6, vcc
    v_cndmask_b32 v{vS[3]+3}, 0, v6, vcc
    v_lshl_add_u32 v8, v4, 6, v8
    v_add_u32 v8, {LK_LDS}, v8
    v_and_b32 v3, 1, v9
    v_lshl_add_u32 v6, v3, 5, v10
    v_lshlrev_b32 v6, 4, v6
    v_lshrrev_b32 v7, 1, v9
    v_lshl_add_u32 v6, v7, 3, v6
    v_lshlrev_b32 v29, 4, v10
    v_lshl_add_u32 v29, v3, 6, v29
    v_lshl_add_u32 v29, v7, 3, v29
    s_lshl_b32 s57, s{sW}, 8
    s_add_u32 s57, s57, {LK_LDS}
    v_add_u32 v29, s57, v29
    v_lshlrev_b32 v7, 4, v10
    s_lshr_b32 s57, s{sU}, 3
    s_mul_i32 s57, s57, 12288
    s_and_b32 s58, s{sU}, 7
    s_lshl_b32 s59, s58, 6
    s_add_u32 s59, s59, s57
    s_lshl_b32 s60, s{sW}, 11
    s_add_u32 s59, s59, s60
    s_lshr_b32 s58, s58, 2
    s_mul_i32 s58, s58, 3072
    s_add_u32 s57, s57, s58
    s_add_u32 s57, s57, 6144
    s_and_b32 s58, s{sU}, 1
    s_lshl_b32 s58, s58, 9
    s_add_u32 s57, s57, s58
    s_and_b32 s58, s{sU}, 2
    s_lshl_b32 s58, s58, 2
    s_add_u32 s57, s57, s58
    s_lshl_b32 s60, s{sW}, 10
    s_add_u32 s57, s57, s60
    s_mul_i32 s58, s{sW}, 6144
    s_add_u32 s58, s58, {XST}
    v_add_u32 v30, s58, v{vXO}
    v_add_u32 v31, s58, v{vDMA}
    v_and_b32 v{vFO}, 7, v1
    v_lshlrev_b32 v{vFO}, 7, v{vFO}
    s_sub_u32 s{sFO}, s{sFM}, {192*128}
    v_mov_b32 v3, 1
    ''')
    def zero_o():
        for t in ('own', 'B0'):
            for i in range(48):
                a(f'v_mov_b32 v{rO[t][1]+i}, 0')
    for t in vL:
        a(f'v_mov_b32 v{vL[t]}, 0')
    def xfrags(n):
        for s in range(6):
            a(f'ds_read_b128 {rng("a", aX["B1"]+4*s, 4)}, v30 offset:{32*s}')
        if n > 1:
            for s in range(6):
                a(f'ds_read_b128 {rng("a", aX["B2"]+4*s, 4)}, v30 offset:{4*6144+32*s}')
    a(f's_cmp_eq_u32 s{sW}, 3')
    a('s_cbranch_scc1 L_w3_b2')
    zero_o()
    a(f'buffer_load_dwordx2 v[{vF}:{vF+1}], v{vZ}, s[48:51], 0 offen {OPT["ldsc"]}')
    stamp(a, 2)
    a('s_waitcnt vmcnt(0)')
    a('s_mov_b64 exec, 1')
    a('ds_add_u32 v2, v3')
    a('s_mov_b64 exec, -1')
    a.label('L_xw')
    a(f'ds_read_b32 v4, v2')
    a('s_waitcnt lgkmcnt(0)')
    a('v_cmp_ne_u32 vcc, 3, v4')
    a('s_cbranch_vccnz L_xw')
    stamp(a, 3)
    F = vM['own']
    def trr(row):
        for c in range(2):
            for half in range(2):
                d = F + (row * 2 + c) * 4 + 2 * half
                a(f'ds_read_b64_tr_b16 v[{d}:{d+1}], v5 offset:{row*6144 + half*768 + c*32}')
    IND = rng('v', vS[3], 4)
    D = vS[0]
    for row in range(3): trr(row)
    for row in range(8):
        nahead = min(2, 7 - row) if row + 3 > 7 else 2
        a(f's_waitcnt lgkmcnt({4*min(2, 7-row)})')
        for c in range(2):
            f = rng('v', F + (row * 2 + c) * 4, 4)
            d1 = rng('v', D + 8 * c, 4); d2 = rng('v', D + 8 * c + 4, 4)
            a(f'v_mfma_f32_16x16x32_bf16 {d1}, {f}, {IND}, {"0" if row == 0 else d1}')
            a(f'v_mfma_f32_16x16x32_bf16 {d2}, {IND}, {f}, {"0" if row == 0 else d2}')
        if row + 3 < 8: trr(row + 3)
    a('s_mov_b32 s60, 0x3c800000')
    a('v_cmp_gt_u32 vcc, 4, v10')
    xfrags(2)
    for r in range(16):
        a(f'v_mul_f32 v{D+r}, s60, v{D+r}')
    for r in range(8):
        a(f'v_cvt_pk_bf16_f32 v{D+16+r}, v{D+2*r}, v{D+2*r+1}')
    a('s_cmp_eq_u32 s56, 7')
    a('s_mov_b64 exec, vcc')
    a('s_cbranch_scc1 L_nostore')
    for c in range(2):
        a(f'buffer_store_dwordx2 v[{D+16+4*c}:{D+17+4*c}], v6, s[24:27], s59 offen offset:{1024*c} {st}')
    a('s_mov_b64 exec, 0xffff')
    for c in range(2):
        a(f'buffer_store_dwordx2 v[{D+18+4*c}:{D+19+4*c}], v7, s[24:27], s57 offen offset:{256*c} {st}')
    a('s_mov_b64 exec, vcc')
    a.label('L_nostore')
    for c in range(2):
        a(f'ds_write_b64 v29, v[{D+16+4*c}:{D+17+4*c}] offset:{128*c}')
    a('s_mov_b64 exec, -1')
    stamp(a, 4)
    a(f'v_cmp_eq_u32 vcc, 0, v{vF+1}')
    a('s_cbranch_vccz L_nonce_ok')
    nonce_spin(a, 'L_nonce')
    a(f'v_readfirstlane_b32 s{sN}, v{vF}')
    a(f'v_readfirstlane_b32 s{sN+1}, v{vF+1}')
    a('s_waitcnt lgkmcnt(0)')
    a('s_barrier')
    a('s_branch L_q')
    a.label('L_w3_b2')
    stamp(a, 2)
    a('v_and_b32 v4, 31, v1')
    a('v_lshlrev_b32 v4, 4, v4')
    a('v_lshrrev_b32 v5, 5, v1')
    a('v_lshl_add_u32 v4, v5, 3, v4')
    a(f'v_add_u32 v4, {WQ_LDS}, v4')
    a(f's_mov_b32 s60, 0x{f32bits(CST):08x}')
    a(f'buffer_load_dwordx2 v[{vF}:{vF+1}], v{vZ}, s[48:51], 0 offen {OPT["ldsc"]}')
    tiles = [(0, 0), (1, 0), (0, 1), (1, 1), (2, 0), (2, 1), (0, 2), (1, 2), (2, 2)]
    def wfin(n):
        ca, cb = tiles[n]
        S = vS[n % 4]
        o = [f'v_mul_f32 v{S+r}, s60, v{S+r}' for r in range(16)]
        o += [f'v_cvt_pk_bf16_f32 v{S+r}, v{S+2*r}, v{S+2*r+1}' for r in range(8)]
        o += [f'ds_write_b64 v4, v[{S+2*i}:{S+2*i+1}] offset:{(cb*6 + 2*ca + (i>>1))*1024 + (i&1)*512}' for i in range(4)]
        return o
    mf = []; fill = []
    for n, (ca, cb) in enumerate(tiles):
        d = rng('v', vS[n % 4], 16)
        for s_ in range(6):
            pre = ''
            if s_ == 0 and n in (0, 1, 4):
                pre = f's_waitcnt vmcnt({ {0: 27, 1: 15, 4: 3}[n] })\n'
            mf.append(pre + f'v_mfma_f32_32x32x16_bf16 {d}, v[{160+4*(6*ca+s_)}:{163+4*(6*ca+s_)}], a[{4*(6*cb+s_)}:{3+4*(6*cb+s_)}], {"0" if s_ == 0 else d}')
        fill += [('at', 6 * n + 8)] + wfin(n)
    last = wfin(8)
    fill = fill[:-len(last)]
    weave(a, mf, fill)
    stamp(a, 3)
    a('s_nop 11')
    for x in last: a(x)
    zero_o()
    for i in range(96):
        a(f'v_accvgpr_write_b32 a{i}, 0')
    stamp(a, 4)
    a('s_waitcnt vmcnt(0)')
    a(f'v_cmp_eq_u32 vcc, 0, v{vF+1}')
    a('s_cbranch_vccz L_nonce3_ok')
    nonce_spin(a, 'L_nonce3')
    a(f'v_readfirstlane_b32 s{sN}, v{vF}')
    a(f'v_readfirstlane_b32 s{sN+1}, v{vF+1}')
    a('s_waitcnt lgkmcnt(0)')
    probe(a, 'b2')
    a('s_barrier')
    xfrags(1)
    a.label('L_q')
    stamp(a, 5)
    a(f'v_add_u32 v4, {WQ_LDS}, v{vDMA}')
    for f in range(18):
        a(f'ds_read_b128 {wvo_reg(f)}, v4 offset:{1024*f}')
    for s in range(6):
        a(f'ds_read_b128 {rng("a", aV+4*s, 4)}, v8 offset:{128*s}')
    a(f's_cmp_eq_u32 s{sW}, 3')
    a(f's_cselect_b32 s60, {4*6144}, 0')
    a('v_add_u32 v31, s60, v31')
    def qfin(ti, ct):
        S = vS[(2 * ct + ti) % 4]
        X = aX['own' if ti == 0 else 'B0'] + 8 * ct
        out = []
        for j in range(8):
            out.append(f'v_cvt_pk_bf16_f32 v{S+j}, v{S+2*j}, v{S+2*j+1}')
        for j in range(8):
            out.append(f'v_accvgpr_write_b32 a{X+j}, v{S+j}')
        if ti == 1:
            for k in range(2):
                out.append(f'ds_write_b128 v31, v[{S+4*k}:{S+4*k+3}] offset:{(2*ct+k)*1024}')
        return out
    def g0_dma():
        for q in range(3):
            a(f's_add_u32 s60, s{sW12}, {q*4096}')
            a('s_mov_b32 m0, s60')
            a('s_nop 0')
            for p in range(4):
                a(f'buffer_load_dwordx4 v{vDMA}, s[24:27], s60 offen offset:{1024*p} lds')
        a(f's_add_u32 s{sFO}, s{sFO}, 4096')
        a(flag_load())
    def checkpoint(k):
        a('s_cmp_eq_u32 s55, 1')
        a(f's_cbranch_scc1 L_cp{k}_e')
        a('s_waitcnt vmcnt(0)')
        a(flag_cmp())
        a(f's_cbranch_vccnz L_cp{k}_n')
        g0_dma()
        a('s_mov_b32 s55, 1')
        a(f's_branch L_cp{k}_e')
        a.label(f'L_cp{k}_n')
        a(flag_load())
        a.label(f'L_cp{k}_e')
    a('s_mov_b32 s55, 0')
    def publish():
        a(f'''
        s_cmp_eq_u32 s{sW}, 3
        s_cbranch_scc1 L_noflag
        s_lshl_b32 s60, s{sU}, 7
        s_add_u32 s60, s60, {FLAG_OFF}
        s_waitcnt vmcnt(0)
        s_mov_b64 exec, 1
        ds_add_rtn_u32 v3, v2, v3 offset:4
        s_waitcnt lgkmcnt(0)
        v_cmp_eq_u32 vcc, 2, v3
        s_cmp_eq_u32 s56, 7
        s_cbranch_scc1 L_noflag
        s_cbranch_vccz L_noflag
        buffer_store_dwordx2 v[{vF}:{vF+1}], v{vZ}, s[24:27], s60 offen {st}
        ''')
        a.label('L_noflag')
        a('s_mov_b64 exec, -1')
    blocks = [(ti, ct) for ct in range(3) for ti in range(2)]
    pend = []
    for n, (ti, ct) in enumerate(blocks):
        d = rng('v', vS[(2 * ct + ti) % 4], 16)
        X = aX['B1' if ti == 0 else 'B2']
        if n == 0: a('s_waitcnt lgkmcnt(15)')
        if n == 2: a('s_waitcnt lgkmcnt(6)')
        if n == OPT.get('pubat', 2): publish()
        if n == 5: a(flag_load())
        for s in range(6):
            a(f'v_mfma_f32_32x32x16_bf16 {d}, {wvo_reg(6*ct+s)}, {rng("a", X+4*s, 4)}, {"0" if s == 0 else d}')
            if n >= 2 and s >= 1:
                for _ in range(4):
                    if pend: a(pend.pop(0))
        assert not pend
        if n >= 1:
            pend += qfin(*blocks[n - 1])
    a('s_nop 7')
    for x in pend: a(x)
    for x in qfin(*blocks[-1]): a(x)
    stamp(a, 6)
    checkpoint(6)
    a('s_waitcnt lgkmcnt(0)')
    for ti, t in enumerate(('own', 'B0')):
        d = rng('v', vS[ti], 16)
        for s in range(6):
            a(f'v_mfma_f32_32x32x16_bf16 {d}, {rng("a", aV+4*s, 4)}, {rng("a", aX[t]+4*s, 4)}, {"0" if s == 0 else d}')
    a('s_cmp_eq_u32 s55, 1')
    a('s_cbranch_scc1 L_g0_done')
    a('s_waitcnt vmcnt(0)')
    a(flag_cmp())
    a('s_cbranch_vccz L_w0_ok')
    spin(a, 'L_w0')
    g0_dma()
    a.label('L_g0_done')
    stamp(a, 7)
    a('s_nop 7')
    a(f's_lshl_b32 s60, s{sW}, 10')
    a(f's_add_u32 s60, s60, {MX_LDS}')
    a(f'v_add_u32 v3, s60, v{vDMA}')
    for ti, t in enumerate(('own', 'B0')):
        S = vS[ti]
        a(f'v_max3_f32 v2, v{S}, v{S+1}, v{S+2}')
        a(f'v_max_f32 v2, v2, v{S+3}')
        a(f'v_sub_f32 v{vM[t]}, 0, v2')
        for i in range(1, 16):
            a(f'v_mov_b32 v{vM[t]+i}, v{vM[t]}')
    a(f'ds_write_b128 v3, {rng("v", vM["B0"], 4)}')
    for i in range(24):
        a(f'v_accvgpr_write_b32 a{aV+i}, 0')
    for i in range(4):
        a(f'v_mov_b32 v{vS[3]+i}, 0')
        a(f'v_mov_b32 v{vS[3]+8+i}, 0')
    a(f'v_add_u32 v2, {XST}, v{vDMA}')
    a(f'v_mov_b32 v{vHI}, 0x{HI:08x}')
    a('s_waitcnt vmcnt(0) lgkmcnt(0)')
    probe(a, 'b3')
    a('s_barrier')
    stamp(a, 8)
    for s in range(6):
        a(kread(0, s))
    a(flag_cmp())
    a(f's_cmp_lg_u32 s{sW}, 3')
    a('s_cbranch_scc1 L_owner')

    def group1(tag):
        a(f's_cbranch_vccz L_w1{tag}_ok')
        spin(a, f'L_w1{tag}')
        for q in range(3):
            a(f's_add_u32 m0, s{sTE}, {q*4096}')
            a('s_nop 0')
            for p in range(4):
                a(dma(q, p))
            a(f's_add_u32 s{sG[q]}, s{sG[q]}, {BUF}')
        a(f's_add_u32 s{sFO}, s{sFO}, 4096')
        a('s_waitcnt lgkmcnt(0)')
        stamp(a, 11)
        stamp(a, 12, True)
        if OPT['stamps']: a('s_waitcnt lgkmcnt(0)')

    vhalf = [f'ds_read_b128 {rng("a", aV+4*ct, 4)}, v{vDMA} offset:{6144+1024*ct}' for ct in range(3)]
    wv = [f'ds_read_b128 {wvo_reg(f)}, v{vDMA} offset:{WVO_LDS + 1024*f}' for f in range(18)]
    PA = vS[0]
    PB = vS[2]

    for e, t in enumerate(('B0', 'B1', 'B2')):
        for s in range(6):
            a(f'ds_read_b128 {rng("a", aX[t]+4*s, 4)}, v2 offset:{e*6144 + 1024*s}')
        for k in range(4):
            a(f'ds_read_b128 {rng("v", vM[t]+4*k, 4)}, v2 offset:{24576 + 1024*e}')
        if e == 0:
            a('s_waitcnt lgkmcnt(10)')
            for s in range(6): a(qk_mfma('own', 0, s))
    group1('h')
    gen_loop(a, True)
    stamp(a, 13); stamp(a, 14, True)
    a(f'v_add_u32 v5, {MERGE0}, v{vDMA}')
    a('v_lshlrev_b32 v2, 2, v1')
    a(f'v_add_u32 v2, {MERGE0}, v2')
    a(f's_mov_b32 s58, 0x{LO:08x}')
    a('s_waitcnt lgkmcnt(0)')
    wr = []
    for e, t in enumerate(('B0', 'B1', 'B2')):
        k, b = rO[t]
        wr += [f'ds_write_b128 v5, {rng(k, b+4*j, 4)} offset:{e*MERGE + 1024*j}' for j in range(12)]
        wr += [f'ds_write_b32 v2, v{vL[t]} offset:{e*MERGE + 12288}']
    mf = [pv_mfma('own', 3, t, ct) for t in range(2) for ct in range(3)]
    fill = []
    for g in range(6):
        fill.append(('at', g))
        if g < 3: fill.append(vhalf[g])
        fill += wr[5*g:5*g+5]
    weave(a, mf, fill)
    for x in wr[30:]: a(x)
    for x in half_softmax_ops(0, 'own'): a(x)
    a('s_waitcnt lgkmcnt(0)')
    probe(a, 'mg')
    a('s_barrier')
    weave(a, [pv_mfma('own', 0, 0, ct) for ct in range(3)], wv)
    a('s_nop 7')
    for x in lsum_ops('own', 2, 'h'): a(x)
    a('s_nop 0')
    for x in norm_cvt_ops('own', 2, PA): a(x)
    a('s_waitcnt lgkmcnt(0)')
    weave(a, proj_mfmas('own', PA), [('at', 9)] + fin_ops('own', 0) + [('at', 15)] + fin_ops('own', 1))
    a('s_nop 11')
    for x in fin_ops('own', 2): a(x)
    for x in store_ops(PB, sXo, 60): a(x)
    for x in store_ops2(PB, sXo, 60): a(x)
    stamp(a, 15)
    stamp_store(a)
    a('s_endpgm')
    slow_path(a, 'h')
    redo(a, 'own', 2, 'h')
    a.label('L_owner')
    a('s_waitcnt lgkmcnt(0)')
    for s in range(6): a(qk_mfma('own', 0, s))
    group1('o')
    gen_loop(a, False)
    stamp(a, 13); stamp(a, 14, True)
    a(f's_mul_i32 s60, s{sW}, {MERGE}')
    a(f's_add_u32 s60, s60, {MERGE0}')
    a(f'v_add_u32 v6, s60, v{vDMA}')
    a('v_lshlrev_b32 v7, 2, v1')
    a('v_add_u32 v7, s60, v7')
    a(f's_mov_b32 s58, 0x{LO:08x}')
    a('s_waitcnt lgkmcnt(0)')
    mf = [qk_mfma('B0', 1, s) for s in range(6)] + [pv_mfma('own', 3, t, ct) for t in range(2) for ct in range(3)]
    fill = half_softmax_ops(0, 'own')
    fill += [('at', 6), vhalf[0]] + wv[0:3] + [('at', 7), vhalf[1]] + wv[3:6] + [('at', 8), vhalf[2]] + wv[6:9]
    fill += [('at', 9)] + half_softmax_ops(1, 'B0')
    weave(a, mf, fill)
    a('s_waitcnt lgkmcnt(3)')
    mf = [pv_mfma('own', 0, 0, ct) for ct in range(3)] + [pv_mfma('B0', 1, 0, ct) for ct in range(3)]
    weave(a, mf, wv[9:])
    a('s_nop 5')
    for x in lsum_ops('own', 2, 'oo'): a(x)
    a('s_nop 0')
    for x in norm_cvt_ops('own', 2, PA): a(x)
    a('s_waitcnt lgkmcnt(0)')
    a('s_barrier')
    TT = [56, 60, 88, 92]
    b = rO['B0'][1]
    mg = ['ds_read_b32 v8, v7 offset:12288']
    for j in range(4):
        mg.append(f'ds_read_b128 v[{TT[j]}:{TT[j]+3}], v6 offset:{1024*j}')
    for j in range(12):
        t = TT[j % 4]
        mg.append(('at', j + 2))
        mg.append(f's_waitcnt lgkmcnt({min(3, 11-j)})')
        for i in range(4):
            mg.append(f'v_add_f32 v{b+4*j+i}, v{b+4*j+i}, v{t+i}')
        if j + 4 < 12:
            mg.append(('at', j + 3))
            mg.append(f'ds_read_b128 v[{t}:{t+3}], v6 offset:{1024*(j+4)}')
    mg.append(f'v_add_f32 v{vL["B0"]}, v{vL["B0"]}, v8')
    weave(a, proj_mfmas('own', PA), mg)
    for x in lsum_ops('B0', 2, 'ob'): a(x)
    a('s_nop 0')
    for x in norm_cvt_ops('B0', 2, PB): a(x)
    fill = fin_ops('own', 0) + fin_ops('own', 1) + fin_ops('own', 2) + store_ops(PA, sXo, 60)
    fill += [('at', 10)] + ['s_waitcnt lgkmcnt(0)'] + store_ops2(PA, sXo, 60, waits=False)
    fill += [('at', 12)] + fin_ops('B0', 0) + [('at', 15)] + fin_ops('B0', 1)
    weave(a, proj_mfmas('B0', PB), fill)
    a('s_nop 11')
    for x in fin_ops('B0', 2): a(x)
    for x in store_ops(PB, sXb, 60): a(x)
    for x in store_ops2(PB, sXb, 60): a(x)
    stamp(a, 15)
    stamp_store(a)
    a('s_endpgm')
    slow_path(a, 'o')
    redo(a, 'own', 2, 'oo')
    redo(a, 'B0', 2, 'ob')

def build(path):
    a = Asm()
    a.raw(f'.globl {NAME}')
    a.raw('.p2align 8')
    a.raw(f'.type {NAME},@function')
    a.label(NAME)
    a(f'''
    s_cmp_ge_u32 s2, {NSP+NCONS}
    s_cbranch_scc1 L_end
    ''')
    stamp(a, 0, True)
    stamp(a, 1)
    if OPT.get('probe'): a('s_memrealtime s[100:101]')
    a(f'''
    s_load_dwordx8 s[4:11], s[0:1], 0
    s_load_dwordx2 s[12:13], s[0:1], 32
    s_load_dwordx4 s[44:47], s[0:1], 40
    v_lshrrev_b32 v2, 6, v0
    v_and_b32 v1, 63, v0
    v_readfirstlane_b32 s{sW}, v2
    s_waitcnt lgkmcnt(0)
    s_mov_b32 s16, s4
    s_mov_b32 s17, s5
    s_mov_b32 s18, {X_BYTES}
    s_mov_b32 s19, 0x20000
    s_mov_b32 s24, s46
    s_mov_b32 s25, s47
    s_mov_b32 s26, {WS_BYTES}
    s_mov_b32 s27, 0x20000
    s_mov_b32 s48, s44
    s_mov_b32 s49, s45
    s_mov_b32 s50, 256
    s_mov_b32 s51, 0x20000
    s_cmp_lt_u32 s2, {NSP}
    s_cbranch_scc1 L_spare
    ''')
    gen_consumer(a)
    gen_spare(a)
    a.label('L_end')
    a('s_endpgm')
    out = HEADER
    out += f'; @launch grid=({NSP+NCONS},1,1) block=(256,1,1) lds={LDS_TOTAL}\n'
    out += '.amdgcn_target "amdgcn-amd-amdhsa--gfx950"\n.text\n'
    out += a.text()
    out += '.section .rodata,"a"\n.p2align 6\n'
    out += kd(NAME, 512, 256)
    open(path, 'w').write(out)

if __name__ == '__main__':
    for o in sys.argv[2:]:
        if '=' in o:
            k, v = o.split('=')
            OPT[k] = int(v) if v.isdigit() else v.replace('+', ' ')
        else:
            OPT[o] = True
    build(sys.argv[1] if len(sys.argv) > 1 else 'k6.s')
```

```python
import sys
from gen import Asm, f32bits, kd, HEADER, X_BYTES, KV_BYTES, CST
from gen2 import (vLB, vDMA, vL, vXO, vS, vM, rO, aX, aK, aV, BUF, MERGE, rng, qk_mfma, pv_mfma,
                  softmax_ops, schedule_stage, kread, vread)
import gen5
from gen5 import (DUMMY, NAME, NSP, NCONS, WVO_OFF, WQK_OFF, FLAG_OFF, WS_BYTES, OST, LDS_TOTAL, XST, WQ_LDS, WVO_LDS, MERGE0,
                  QX_LDS, MX_LDS, LK_LDS, NC_LDS, OPT, sW, sCNT, sT, sG, sDn, sDp, sTE, sTMP, sXo, sXb, sXB, sXS, sFO, sD0,
                  sK0, sFM, sSP, sU, sW12, vF, vZ, sN, vFO, vRB, vSW, stamp, stamp_store, dma, flag_load,
                  flag_cmp, spin_tail, nonce_spin, spin, gen_loop, slow_path)

def wvo_reg(f):
    return rng('v', vM['own'] + 4 * f, 4) if f < 16 else rng('a', 244 + 4 * (f - 16), 4)


def cost(ins):
    op = ins.split()[0]
    if op.startswith('v_exp') or op.startswith('v_rcp'): return 2
    return 1
def is_mem(ins):
    return ins.startswith('ds_') or ins.startswith('buffer_')
def is_salu(ins):
    return ins.startswith('s_')

def weave(a, mfmas, fill, cap=6):
    q = list(fill)
    for g, m in enumerate(mfmas):
        a(m)
        c = cap
        first = True
        prev_valu = False
        while q:
            it = q[0]
            if isinstance(it, tuple):
                if it[1] > g: break
                q.pop(0); continue
            k = cost(it)
            if is_salu(it) and first: k = 0
            if is_mem(it) and prev_valu: break
            if k > c: break
            a(q.pop(0)); c -= k; first = False
            prev_valu = prev_valu or it.startswith('v_')
    for it in q:
        if not isinstance(it, tuple): a(it)

def half_softmax_ops(sbuf, tile):
    S = vS[sbuf]; L = vL[tile]
    o = [f'v_exp_f32 v{S+i}, v{S+i}' for i in range(8)]
    o += [f'v_add_f32 v{L}, v{L}, v{S+i}' for i in range(8)]
    o += [f'v_cvt_pk_bf16_f32 v{S+j}, v{S+2*j}, v{S+2*j+1}' for j in range(4)]
    return o

LO = f32bits(2.0 ** -90)
HI = f32bits(2.0 ** 90)

def lsum_ops(tile, r, tag):
    L = vL[tile]
    return [f'v_mov_b32 v{r}, v{L}', 's_nop 1', f'v_permlane32_swap_b32 v{L}, v{r}', 's_nop 0',
            f'v_add_f32 v{r}, v{L}, v{r}',
            f'v_med3_f32 v{r+1}, v{r}, s58, v{vHI}',
            f'v_cmp_neq_f32 vcc, v{r+1}, v{r}',
            f's_cbranch_vccnz L_redo_{tag}', f'L_redone_{tag}:',
            f'v_rcp_f32 v{r}, v{r}']
vHI = 9

def redo(a, tile, r, tag):
    k, b = rO[tile]
    L = vL[tile]
    X = aX[tile]
    S = vS[2]; M = vS[3]
    sd = rng('v', S, 16)
    a.label(f'L_redo_{tag}')
    a('s_waitcnt vmcnt(0) lgkmcnt(0)')
    a('s_nop 15')
    a('v_mov_b32 v4, 0xff800000')
    a('s_mov_b32 s55, 0')
    def kload():
        a('s_add_u32 s57, s55, 4096')
        for s in range(6):
            a(f'buffer_load_dwordx4 {rng("a", aK+4*s, 4)}, v{vDMA}, s[24:27], s{55 if s < 4 else 57} offen offset:{1024*(s%4)}')
    def vload(n):
        a('s_add_u32 s57, s55, 6144')
        a('s_add_u32 s59, s55, 10240')
        for f in range(n):
            a(f'buffer_load_dwordx4 {rng("a", aV+4*f, 4)}, v{vDMA}, s[24:27], s{57 if f < 4 else 59} offen offset:{1024*(f%4)}')
    def qk(c):
        for s in range(6):
            a(f'v_mfma_f32_32x32x16_bf16 {sd}, {rng("a", aK+4*s, 4)}, {rng("a", X+4*s, 4)}, {c if s == 0 else sd}')
        a('s_nop 15')
    def mx(n):
        for i in range(0, n, 2):
            a(f'v_max3_f32 v4, v4, v{S+i}, v{S+i+1}')
    a.label(f'L_redo1_{tag}')
    kload(); a('s_waitcnt vmcnt(0)'); qk('0')
    a(f's_cmp_eq_u32 s55, {24*12288}')
    a(f's_cbranch_scc1 L_redo1e_{tag}')
    mx(16)
    a('s_add_u32 s55, s55, 12288')
    a(f's_branch L_redo1_{tag}')
    a.label(f'L_redo1e_{tag}')
    mx(8)
    a('v_mov_b32 v5, v4')
    a('s_nop 1')
    a('v_permlane32_swap_b32 v4, v5')
    a('s_nop 0')
    a('v_max_f32 v4, v4, v5')
    for i in range(16):
        a(f'v_sub_f32 v{M+i}, 0, v4')
    for i in range(48):
        a(f'v_mov_b32 v{b+i}, 0')
    a(f'v_mov_b32 v{L}, 0')
    a('s_mov_b32 s55, 0')
    def sm(n):
        for i in range(n): a(f'v_exp_f32 v{S+i}, v{S+i}')
        a('s_nop 0')
        for i in range(n): a(f'v_add_f32 v{L}, v{L}, v{S+i}')
        for p in range(n // 2):
            t, j = divmod(p, 4)
            a(f'v_cvt_pk_bf16_f32 v{S+8*t+j}, v{S+2*p}, v{S+2*p+1}')
        a('s_nop 1')
        for t in range(n // 8):
            for ct in range(3):
                a(pv_mfma(tile, 2, t, ct))
    a.label(f'L_redo2_{tag}')
    kload(); vload(6); a('s_waitcnt vmcnt(0)'); qk(rng('v', M, 16))
    a(f's_cmp_eq_u32 s55, {24*12288}')
    a(f's_cbranch_scc1 L_redo2e_{tag}')
    sm(16)
    a('s_add_u32 s55, s55, 12288')
    a(f's_branch L_redo2_{tag}')
    a.label(f'L_redo2e_{tag}')
    sm(8)
    a(f'v_mov_b32 v{r}, v{L}')
    a('s_nop 1')
    a(f'v_permlane32_swap_b32 v{L}, v{r}')
    a('s_nop 0')
    a(f'v_add_f32 v{r}, v{L}, v{r}')
    a('s_waitcnt lgkmcnt(0)')
    a('s_nop 15')
    a(f's_branch L_redone_{tag}')

def cvt_ops(tile, P):
    b = rO[tile][1]
    return [f'v_cvt_pk_bf16_f32 v{P+j}, v{b+2*j}, v{b+2*j+1}' for j in range(24)]

def proj_mfmas(tile, P):
    b = rO[tile][1]
    m = []
    for cot in range(3):
        d = rng('v', b + 16 * cot, 16)
        for s in range(6):
            m.append(f'v_mfma_f32_32x32x16_bf16 {d}, {wvo_reg(6*cot+s)}, {rng("v", P+4*s, 4)}, {"0" if s == 0 else d}')
    return m

def fin_ops(tile, cot, r, pk=False):
    o = rO[tile][1] + 16 * cot
    out = []
    for j in range(8):
        if pk:
            out.append(f'v_pk_mul_f32 v[{o+2*j}:{o+2*j+1}], v[{o+2*j}:{o+2*j+1}], v[{r}:{r+1}]')
        else:
            out.append(f'v_mul_f32 v{o+2*j}, v{r}, v{o+2*j}')
            out.append(f'v_mul_f32 v{o+2*j+1}, v{r}, v{o+2*j+1}')
        if not pk:
            out.append(f'v_cvt_pk_bf16_f32 v{o+j}, v{o+2*j}, v{o+2*j+1}')
    if pk:
        out += [f'v_cvt_pk_bf16_f32 v{o+j}, v{o+2*j}, v{o+2*j+1}' for j in range(8)]
    out += [f'ds_write_b64 v{vSW}, v[{o+2*i}:{o+2*i+1}] offset:{64*cot+16*i}' for i in range(4)]
    return out

def store_ops(R, soff, s2):
    o = ['s_waitcnt lgkmcnt(0)']
    o += [f'ds_read_b128 v[{R+4*j}:{R+4*j+3}], v{vRB[j%3]} offset:{(j//3)*16*208}' for j in range(6)]
    o += [f's_add_u32 s{s2}, s{soff}, 4096']
    return o
def store_ops2(R, soff, s2, waits=True):
    o = []
    for j in range(6):
        if waits: o.append(f's_waitcnt lgkmcnt({5-j})')
        o.append(f'buffer_store_dwordx4 v[{R+4*j}:{R+4*j+3}], v{vDMA}, s[20:23], s{soff if j < 4 else s2} offen offset:{1024*(j%4)} {OPT.get("osc", "")}')
    return o

def probe(a, where):
    if OPT.get('probe') != where: return
    lab = f'L_probe{len(a.lines)}'
    a.label(lab)
    a('s_memrealtime s[98:99]')
    a('s_waitcnt lgkmcnt(0)')
    a('s_sub_u32 s98, s98, s100')
    a(f's_cmp_lt_u32 s98, {OPT["D"]}')
    a(f's_cbranch_scc1 {lab}')

def gen_consumer(a):
    st = OPT['stsc']
    a(f'''
    s_sub_u32 s3, s2, {NSP}
    v_lshlrev_b32 v{vDMA}, 4, v1
    s_lshr_b32 s55, s3, 3
    s_and_b32 s56, s3, 7
    s_mul_i32 s{sXB}, s55, 344064
    s_mul_i32 s57, s56, 6144
    s_mov_b32 s{sXS}, 43008
    s_cmp_eq_u32 s56, 7
    s_cselect_b32 s57, {7*43008}, s57
    s_cselect_b32 s{sXS}, 6144, s{sXS}
    s_add_u32 s{sXB}, s{sXB}, s57
    s_mul_i32 s{sU}, s55, 7
    s_add_u32 s{sU}, s{sU}, s56
    s_mul_i32 s{sW12}, s{sW}, 12288
    v_mov_b32 v{vZ}, 0
    v_mov_b32 v2, {NC_LDS}
    s_mov_b32 s{sSP}, 0
    s_cmp_eq_u32 s{sW}, 3
    s_cbranch_scc1 L_x_w3
    s_mul_i32 s57, s{sW}, 3
    s_mul_i32 s58, s57, 6144
    s_mul_i32 s57, s57, s{sXS}
    s_add_u32 s57, s57, s{sXB}
    s_add_u32 s58, s58, {XST}
    s_mov_b32 m0, s58
    s_add_u32 s59, s57, 4096
    ''')
    for t in range(3):
        for p in range(4):
            a(f'buffer_load_dwordx4 v{vDMA}, s[16:19], s57 offen offset:{1024*p} lds')
        a(f's_add_u32 m0, s58, {6144*t + 4096}')
        a(f's_add_u32 s57, s57, s{sXS}')
        for p in range(2):
            a(f'buffer_load_dwordx4 v{vDMA}, s[16:19], s59 offen offset:{1024*p} lds')
        if t < 2:
            a(f's_add_u32 m0, s58, {6144*(t+1)}')
            a(f's_add_u32 s59, s59, s{sXS}')
        if t == 1:
            a(f's_cmp_eq_u32 s{sW}, 2')
            a('s_cbranch_scc1 L_x_done')
    a('s_branch L_x_done')
    a.label('L_x_w3')
    a(f'ds_write_b32 v2, v{vZ}')
    a(f'ds_write_b32 v2, v{vZ} offset:4')
    a('s_waitcnt lgkmcnt(0)')
    a.label('L_x_done')
    a('s_barrier')
    a(f'''
    v_and_b32 v3, 31, v1
    v_lshrrev_b32 v4, 5, v1
    v_mul_u32_u24 v{vXO}, 192, v3
    v_lshl_add_u32 v{vXO}, v4, 4, v{vXO}
    s_mul_i32 s{sXo}, s{sW}, s{sXS}
    s_add_u32 s{sXo}, s{sXo}, s{sXB}
    s_lshl_b32 s57, s{sXS}, 2
    s_add_u32 s{sXb}, s{sXo}, s57
    s_mov_b32 s20, s12
    s_mov_b32 s21, s13
    s_mov_b32 s22, {X_BYTES}
    s_mov_b32 s23, 0x20000
    s_mov_b32 s{sCNT}, 0
    s_add_u32 s{sT}, s{sW12}, {2*BUF}
    s_add_u32 s{sTE}, s{sW12}, {BUF}
    s_add_u32 s{sG[0]}, s{sW12}, {BUF}
    s_add_u32 s{sG[1]}, s{sW12}, {BUF+4096}
    s_add_u32 s{sG[2]}, s{sW12}, {BUF+8192}
    s_mov_b32 s{sDn}, {BUF}
    s_mov_b32 s{sDp}, {(-2*BUF) & 0xffffffff}
    s_lshl_b32 s{sFM}, s{sW}, 10
    s_add_u32 s{sFM}, s{sFM}, {FLAG_OFF + 192*128}
    ''')
    a.label('L_setup')
    if OPT.get('warm', 1):
        a(f'buffer_load_dword a240, v{vZ}, s[20:23], s{sXo} offen')
        a(f'buffer_load_dword a241, v{vZ}, s[20:23], s{sXb} offen')
    for i in range(4):
        a(f's_add_u32 s60, s{sW}, {1+i}')
        a('s_and_b32 s60, s60, 3')
        a('s_mul_i32 s60, s60, 12288')
        if i == 0:
            a(f's_mov_b32 s{sK0}, s60')
        if i == 3:
            a(f's_add_u32 s60, s60, {2*BUF}')
        a(f'v_add_u32 v{vLB[i]}, s60, v{vDMA}')
    a(f'''
    s_and_b32 s57, s{sW}, 1
    s_mul_i32 s57, s57, {OST}
    s_mov_b32 s58, {3*BUF}
    s_cmp_lt_u32 s{sW}, 2
    s_cselect_b32 s58, 30720, s58
    s_add_u32 s57, s57, s58
    v_mul_u32_u24 v{vSW}, 208, v3
    v_lshl_add_u32 v{vSW}, v4, 3, v{vSW}
    v_add_u32 v{vSW}, s57, v{vSW}
    ''')
    for j in range(3):
        a(f'v_add_u32 v5, {64*j}, v1')
        a('v_mul_u32_u24 v6, 171, v5')
        a('v_lshrrev_b32 v6, 11, v6')
        a('v_add_u32 v5, v5, v6')
        a(f'v_lshlrev_b32 v5, 4, v5')
        a(f'v_add_u32 v{vRB[j]}, s57, v5')
    a(f'''
    v_lshrrev_b32 v9, 4, v1
    v_and_b32 v10, 15, v1
    v_lshrrev_b32 v6, 2, v10
    v_lshl_add_u32 v6, v9, 3, v6
    v_mul_u32_u24 v5, 192, v6
    v_and_b32 v8, 3, v1
    v_lshl_add_u32 v5, v8, 3, v5
    s_lshl_b32 s57, s{sW}, 6
    s_add_u32 s57, s57, {XST}
    v_add_u32 v5, s57, v5
    v_cmp_eq_u32 vcc, v9, v10
    v_mov_b32 v6, 0x3f803f80
    v_lshlrev_b32 v8, 4, v8
    v_cndmask_b32 v{vS[3]}, 0, v6, vcc
    v_cndmask_b32 v{vS[3]+1}, 0, v6, vcc
    v_cndmask_b32 v{vS[3]+2}, 0, v6, vcc
    v_cndmask_b32 v{vS[3]+3}, 0, v6, vcc
    v_lshl_add_u32 v8, v4, 6, v8
    v_add_u32 v8, {LK_LDS}, v8
    v_and_b32 v3, 1, v9
    v_lshl_add_u32 v6, v3, 5, v10
    v_lshlrev_b32 v6, 4, v6
    v_lshrrev_b32 v7, 1, v9
    v_lshl_add_u32 v6, v7, 3, v6
    v_lshlrev_b32 v29, 4, v10
    v_lshl_add_u32 v29, v3, 6, v29
    v_lshl_add_u32 v29, v7, 3, v29
    s_lshl_b32 s57, s{sW}, 8
    s_add_u32 s57, s57, {LK_LDS}
    v_add_u32 v29, s57, v29
    v_lshlrev_b32 v7, 4, v10
    s_lshr_b32 s57, s{sU}, 3
    s_mul_i32 s57, s57, 12288
    s_and_b32 s58, s{sU}, 7
    s_lshl_b32 s59, s58, 6
    s_add_u32 s59, s59, s57
    s_lshl_b32 s60, s{sW}, 11
    s_add_u32 s59, s59, s60
    s_lshr_b32 s58, s58, 2
    s_mul_i32 s58, s58, 3072
    s_add_u32 s57, s57, s58
    s_add_u32 s57, s57, 6144
    s_and_b32 s58, s{sU}, 1
    s_lshl_b32 s58, s58, 9
    s_add_u32 s57, s57, s58
    s_and_b32 s58, s{sU}, 2
    s_lshl_b32 s58, s58, 2
    s_add_u32 s57, s57, s58
    s_lshl_b32 s60, s{sW}, 10
    s_add_u32 s57, s57, s60
    s_mul_i32 s58, s{sW}, 6144
    s_add_u32 s58, s58, {XST}
    v_add_u32 v30, s58, v{vXO}
    v_add_u32 v31, s58, v{vDMA}
    v_and_b32 v{vFO}, 7, v1
    v_lshlrev_b32 v{vFO}, 7, v{vFO}
    s_sub_u32 s{sFO}, s{sFM}, {192*128}
    v_mov_b32 v3, 1
    ''')
    def zero_o():
        for t in ('own', 'B0'):
            for i in range(48):
                a(f'v_mov_b32 v{rO[t][1]+i}, 0')
    for t in vL:
        a(f'v_mov_b32 v{vL[t]}, 0')
    def xfrags(n):
        for s in range(6):
            a(f'ds_read_b128 {rng("a", aX["B1"]+4*s, 4)}, v30 offset:{32*s}')
        if n > 1:
            for s in range(6):
                a(f'ds_read_b128 {rng("a", aX["B2"]+4*s, 4)}, v30 offset:{4*6144+32*s}')
    a(f's_cmp_eq_u32 s{sW}, 3')
    a('s_cbranch_scc1 L_w3_b2')
    zero_o()
    a(f'buffer_load_dwordx2 v[{vF}:{vF+1}], v{vZ}, s[48:51], 0 offen {OPT["ldsc"]}')
    stamp(a, 2)
    a('s_waitcnt vmcnt(3)')
    a('s_mov_b64 exec, 1')
    a('ds_add_u32 v2, v3')
    a('s_mov_b64 exec, -1')
    a.label('L_xw')
    a(f'ds_read_b32 v4, v2')
    a('s_waitcnt lgkmcnt(0)')
    a('v_cmp_ne_u32 vcc, 3, v4')
    a('s_cbranch_vccnz L_xw')
    stamp(a, 3)
    F = vM['own']
    def trr(row):
        for c in range(2):
            for half in range(2):
                d = F + (row * 2 + c) * 4 + 2 * half
                a(f'ds_read_b64_tr_b16 v[{d}:{d+1}], v5 offset:{row*6144 + half*768 + c*32}')
    IND = rng('v', vS[3], 4)
    D = vS[0]
    for row in range(3): trr(row)
    for row in range(8):
        nahead = min(2, 7 - row) if row + 3 > 7 else 2
        a(f's_waitcnt lgkmcnt({4*min(2, 7-row)})')
        for c in range(2):
            f = rng('v', F + (row * 2 + c) * 4, 4)
            d1 = rng('v', D + 8 * c, 4); d2 = rng('v', D + 8 * c + 4, 4)
            a(f'v_mfma_f32_16x16x32_bf16 {d1}, {f}, {IND}, {"0" if row == 0 else d1}')
            a(f'v_mfma_f32_16x16x32_bf16 {d2}, {IND}, {f}, {"0" if row == 0 else d2}')
        if row + 3 < 8: trr(row + 3)
    a('s_mov_b32 s60, 0x3c800000')
    a('v_cmp_gt_u32 vcc, 4, v10')
    xfrags(2)
    for r in range(16):
        a(f'v_mul_f32 v{D+r}, s60, v{D+r}')
    for r in range(8):
        a(f'v_cvt_pk_bf16_f32 v{D+16+r}, v{D+2*r}, v{D+2*r+1}')
    a('s_cmp_eq_u32 s56, 7')
    a('s_mov_b64 exec, vcc')
    a('s_cbranch_scc1 L_nostore')
    for c in range(2):
        a(f'buffer_store_dwordx2 v[{D+16+4*c}:{D+17+4*c}], v6, s[24:27], s59 offen offset:{1024*c} {st}')
    a('s_mov_b64 exec, 0xffff')
    for c in range(2):
        a(f'buffer_store_dwordx2 v[{D+18+4*c}:{D+19+4*c}], v7, s[24:27], s57 offen offset:{256*c} {st}')
    a('s_mov_b64 exec, vcc')
    a.label('L_nostore')
    for c in range(2):
        a(f'ds_write_b64 v29, v[{D+16+4*c}:{D+17+4*c}] offset:{128*c}')
    a('s_mov_b64 exec, -1')
    stamp(a, 4)
    a('s_cmp_eq_u32 s56, 7')
    a('s_cbranch_scc1 L_nw0')
    a('s_waitcnt vmcnt(4)')
    a('s_branch L_nw1')
    a.label('L_nw0')
    a('s_waitcnt vmcnt(0)')
    a.label('L_nw1')
    a(f'v_cmp_eq_u32 vcc, 0, v{vF+1}')
    a('s_cbranch_vccz L_nonce_ok')
    nonce_spin(a, 'L_nonce')
    a(f'v_readfirstlane_b32 s{sN}, v{vF}')
    a(f'v_readfirstlane_b32 s{sN+1}, v{vF+1}')
    a(f'''
    s_lshl_b32 s60, s{sU}, 7
    s_add_u32 s60, s60, {FLAG_OFF}
    s_waitcnt vmcnt(0)
    s_mov_b64 exec, 1
    ds_add_rtn_u32 v3, v2, v3 offset:4
    s_waitcnt lgkmcnt(0)
    v_cmp_eq_u32 vcc, 2, v3
    s_cmp_eq_u32 s56, 7
    s_cbranch_scc1 L_noflag
    s_cbranch_vccz L_noflag
    buffer_store_dwordx2 v[{vF}:{vF+1}], v{vZ}, s[24:27], s60 offen {st}
    ''')
    a.label('L_noflag')
    a('s_mov_b64 exec, -1')
    a('s_barrier')
    a('s_branch L_q')
    a.label('L_w3_b2')
    zero_o()
    for i in range(96):
        a(f'v_accvgpr_write_b32 a{i}, 0')
    stamp(a, 2)
    a('v_min_u32 v4, 8, v1')
    a('v_lshlrev_b32 v4, 7, v4')
    a(f's_mov_b32 s57, {FLAG_OFF + 224*128}')
    a.label('L_wq')
    a(f'buffer_load_dwordx2 v[6:7], v{vZ}, s[48:51], 0 offen {OPT["ldsc"]}')
    a(f'buffer_load_dwordx2 v[{vF}:{vF+1}], v4, s[24:27], s57 offen {OPT["ldsc"]}')
    a('s_waitcnt vmcnt(0)')
    a('v_cmp_eq_u32 s[58:59], 0, v7')
    a(f'v_cmp_ne_u64 vcc, v[6:7], v[{vF}:{vF+1}]')
    a('s_or_b64 vcc, vcc, s[58:59]')
    spin_tail(a, 'L_wq')
    a(f'v_readfirstlane_b32 s{sN}, v6')
    a(f'v_readfirstlane_b32 s{sN+1}, v7')
    stamp(a, 3)
    a(f's_mov_b32 s57, {WQK_OFF}')
    a(f's_mov_b32 s58, {WQ_LDS}')
    for q in range(5):
        a('s_mov_b32 m0, s58')
        a('s_add_u32 s58, s58, 4096')
        for p in range(4 if q < 4 else 2):
            a(f'buffer_load_dwordx4 v{vDMA}, s[24:27], s57 offen offset:{1024*p} lds')
        a('s_add_u32 s57, s57, 4096')
    stamp(a, 4, True)
    a('s_waitcnt vmcnt(0)')
    probe(a, 'b2')
    a('s_barrier')
    xfrags(1)
    a.label('L_q')
    stamp(a, 5)
    a(f'v_add_u32 v4, {WQ_LDS}, v{vDMA}')
    for f in range(18):
        a(f'ds_read_b128 {wvo_reg(f)}, v4 offset:{1024*f}')
    for s in range(6):
        a(f'ds_read_b128 {rng("a", aV+4*s, 4)}, v8 offset:{128*s}')
    a(f's_cmp_eq_u32 s{sW}, 3')
    a(f's_cselect_b32 s60, {4*6144}, 0')
    a('v_add_u32 v31, s60, v31')
    def qfin(ti, ct):
        S = vS[(2 * ct + ti) % 4]
        X = aX['own' if ti == 0 else 'B0'] + 8 * ct
        out = []
        for j in range(8):
            out.append(f'v_cvt_pk_bf16_f32 v{S+j}, v{S+2*j}, v{S+2*j+1}')
        for j in range(8):
            out.append(f'v_accvgpr_write_b32 a{X+j}, v{S+j}')
        if ti == 1:
            for k in range(2):
                out.append(f'ds_write_b128 v31, v[{S+4*k}:{S+4*k+3}] offset:{(2*ct+k)*1024}')
        return out
    def g0_dma():
        for q in range(3):
            a(f's_add_u32 s60, s{sW12}, {q*4096}')
            a('s_mov_b32 m0, s60')
            a('s_nop 0')
            for p in range(4):
                a(f'buffer_load_dwordx4 v{vDMA}, s[24:27], s60 offen offset:{1024*p} lds')
        a(f's_add_u32 s{sFO}, s{sFO}, 4096')
        a(flag_load())
    def checkpoint(k):
        a('s_cmp_eq_u32 s55, 1')
        a(f's_cbranch_scc1 L_cp{k}_e')
        a('s_waitcnt vmcnt(0)')
        a(flag_cmp())
        a(f's_cbranch_vccnz L_cp{k}_n')
        g0_dma()
        a('s_mov_b32 s55, 1')
        a(f's_branch L_cp{k}_e')
        a.label(f'L_cp{k}_n')
        a(flag_load())
        a.label(f'L_cp{k}_e')
    a('s_mov_b32 s55, 0')
    def publish():
        a(f'''
        s_cmp_eq_u32 s{sW}, 3
        s_cbranch_scc1 L_noflag
        s_lshl_b32 s60, s{sU}, 7
        s_add_u32 s60, s60, {FLAG_OFF}
        s_waitcnt vmcnt(0)
        s_mov_b64 exec, 1
        ds_add_rtn_u32 v3, v2, v3 offset:4
        s_waitcnt lgkmcnt(0)
        v_cmp_eq_u32 vcc, 2, v3
        s_cmp_eq_u32 s56, 7
        s_cbranch_scc1 L_noflag
        s_cbranch_vccz L_noflag
        buffer_store_dwordx2 v[{vF}:{vF+1}], v{vZ}, s[24:27], s60 offen {st}
        ''')
        a.label('L_noflag')
        a('s_mov_b64 exec, -1')
    blocks = [(ti, ct) for ct in range(3) for ti in range(2)]
    pend = []
    for n, (ti, ct) in enumerate(blocks):
        d = rng('v', vS[(2 * ct + ti) % 4], 16)
        X = aX['B1' if ti == 0 else 'B2']
        if n == 0: a('s_waitcnt lgkmcnt(15)')
        if n == 2: a('s_waitcnt lgkmcnt(6)')
        if n == 1: a(flag_load())
        if n == 4: checkpoint(n)
        for s in range(6):
            a(f'v_mfma_f32_32x32x16_bf16 {d}, {wvo_reg(6*ct+s)}, {rng("a", X+4*s, 4)}, {"0" if s == 0 else d}')
            if n >= 2 and s >= 1:
                for _ in range(4):
                    if pend: a(pend.pop(0))
        assert not pend
        if n >= 1:
            pend += qfin(*blocks[n - 1])
    a('s_nop 7')
    for x in pend: a(x)
    for x in qfin(*blocks[-1]): a(x)
    stamp(a, 6)
    checkpoint(6)
    a('s_waitcnt lgkmcnt(0)')
    for ti, t in enumerate(('own', 'B0')):
        d = rng('v', vS[ti], 16)
        for s in range(6):
            a(f'v_mfma_f32_32x32x16_bf16 {d}, {rng("a", aV+4*s, 4)}, {rng("a", aX[t]+4*s, 4)}, {"0" if s == 0 else d}')
    a('s_cmp_eq_u32 s55, 1')
    a('s_cbranch_scc1 L_g0_done')
    a('s_waitcnt vmcnt(0)')
    a(flag_cmp())
    a('s_cbranch_vccz L_w0_ok')
    spin(a, 'L_w0')
    g0_dma()
    a.label('L_g0_done')
    stamp(a, 7)
    a('s_nop 7')
    a(f's_lshl_b32 s60, s{sW}, 10')
    a(f's_add_u32 s60, s60, {MX_LDS}')
    a(f'v_add_u32 v3, s60, v{vDMA}')
    for ti, t in enumerate(('own', 'B0')):
        S = vS[ti]
        a(f'v_max3_f32 v2, v{S}, v{S+1}, v{S+2}')
        a(f'v_max_f32 v2, v2, v{S+3}')
        a(f'v_sub_f32 v{vM[t]}, 0, v2')
        for i in range(1, 16):
            a(f'v_mov_b32 v{vM[t]+i}, v{vM[t]}')
    a(f'ds_write_b128 v3, {rng("v", vM["B0"], 4)}')
    for i in range(24):
        a(f'v_accvgpr_write_b32 a{aV+i}, 0')
    for i in range(4):
        a(f'v_mov_b32 v{vS[3]+i}, 0')
        a(f'v_mov_b32 v{vS[3]+8+i}, 0')
    a(f'v_add_u32 v2, {XST}, v{vDMA}')
    a(f'v_mov_b32 v{vHI}, 0x{HI:08x}')
    a('s_waitcnt vmcnt(0) lgkmcnt(0)')
    probe(a, 'b3')
    a('s_barrier')
    stamp(a, 8)
    for s in range(6):
        a(kread(0, s))
    a(flag_cmp())
    a(f's_cmp_lg_u32 s{sW}, 3')
    a('s_cbranch_scc1 L_owner')

    def group1(tag):
        a(f's_cbranch_vccz L_w1{tag}_ok')
        spin(a, f'L_w1{tag}')
        for q in range(3):
            a(f's_add_u32 m0, s{sTE}, {q*4096}')
            a('s_nop 0')
            for p in range(4):
                a(dma(q, p))
            a(f's_add_u32 s{sG[q]}, s{sG[q]}, {BUF}')
        a(f's_add_u32 s{sFO}, s{sFO}, 4096')
        a('s_waitcnt lgkmcnt(0)')
        stamp(a, 11)
        stamp(a, 12, True)
        if OPT['stamps']: a('s_waitcnt lgkmcnt(0)')

    vhalf = [f'ds_read_b128 {rng("a", aV+4*ct, 4)}, v{vDMA} offset:{6144+1024*ct}' for ct in range(3)]
    wv = [f'ds_read_b128 {wvo_reg(f)}, v{vDMA} offset:{WVO_LDS + 1024*f}' for f in range(18)]
    PA = vS[0]
    PB = vS[2]

    for e, t in enumerate(('B0', 'B1', 'B2')):
        for s in range(6):
            a(f'ds_read_b128 {rng("a", aX[t]+4*s, 4)}, v2 offset:{e*6144 + 1024*s}')
        for k in range(4):
            a(f'ds_read_b128 {rng("v", vM[t]+4*k, 4)}, v2 offset:{24576 + 1024*e}')
        if e == 0:
            a('s_waitcnt lgkmcnt(10)')
            for s in range(6): a(qk_mfma('own', 0, s))
    group1('h')
    gen_loop(a, True)
    stamp(a, 13); stamp(a, 14, True)
    a(f'v_add_u32 v5, {MERGE0}, v{vDMA}')
    a('v_lshlrev_b32 v2, 2, v1')
    a(f'v_add_u32 v2, {MERGE0}, v2')
    a(f's_mov_b32 s58, 0x{LO:08x}')
    a('s_waitcnt lgkmcnt(0)')
    wr = []
    for e, t in enumerate(('B0', 'B1', 'B2')):
        k, b = rO[t]
        wr += [f'ds_write_b128 v5, {rng(k, b+4*j, 4)} offset:{e*MERGE + 1024*j}' for j in range(12)]
        wr += [f'ds_write_b32 v2, v{vL[t]} offset:{e*MERGE + 12288}']
    mf = [pv_mfma('own', 3, t, ct) for t in range(2) for ct in range(3)]
    fill = []
    for g in range(6):
        fill.append(('at', g))
        if g < 3: fill.append(vhalf[g])
        fill += wr[5*g:5*g+5]
    weave(a, mf, fill)
    if OPT.get('epi'): stamp(a, 2)
    for x in wr[30:]: a(x)
    for x in half_softmax_ops(0, 'own'): a(x)
    if OPT.get('epi'): stamp(a, 3)
    a('s_waitcnt lgkmcnt(0)')
    if OPT.get('epi'): stamp(a, 4)
    probe(a, 'mg')
    a('s_barrier')
    if OPT.get('epi'): stamp(a, 5)
    weave(a, [pv_mfma('own', 0, 0, ct) for ct in range(3)], wv)
    for x in lsum_ops('own', 2, 'h'): a(x)
    if OPT.get('epi'): stamp(a, 6)
    cv = cvt_ops('own', PA)
    a('s_nop 1')
    a('v_mov_b32 v3, v2')
    for x in cv[:8]: a(x)
    a('s_waitcnt lgkmcnt(0)')
    if OPT.get('epi'): stamp(a, 7)
    weave(a, proj_mfmas('own', PA), cv[8:] + [('at', 8)] + fin_ops('own', 0, 2) + [('at', 14)] + fin_ops('own', 1, 2))
    if OPT.get('epi'): stamp(a, 8)
    a('s_nop 7')
    for x in fin_ops('own', 2, 2, pk=True): a(x)
    for x in store_ops(PB, sXo, 60): a(x)
    for x in store_ops2(PB, sXo, 60): a(x)
    stamp(a, 15)
    stamp_store(a)
    a('s_endpgm')
    slow_path(a, 'h')
    redo(a, 'own', 2, 'h')
    a.label('L_owner')
    a('s_waitcnt lgkmcnt(0)')
    for s in range(6): a(qk_mfma('own', 0, s))
    group1('o')
    gen_loop(a, False)
    stamp(a, 13); stamp(a, 14, True)
    a(f's_mul_i32 s60, s{sW}, {MERGE}')
    a(f's_add_u32 s60, s60, {MERGE0}')
    a(f'v_add_u32 v6, s60, v{vDMA}')
    a('v_lshlrev_b32 v7, 2, v1')
    a('v_add_u32 v7, s60, v7')
    a(f's_mov_b32 s58, 0x{LO:08x}')
    a('s_waitcnt lgkmcnt(0)')
    mf = [qk_mfma('B0', 1, s) for s in range(6)] + [pv_mfma('own', 3, t, ct) for t in range(2) for ct in range(3)]
    hs = half_softmax_ops(0, 'own')
    fill = wv[0:4] + wv[8:10] + [('at', 1)] + wv[4:8] + wv[10:12] + [('at', 2)] + wv[12:18] + [('at', 3)] + hs[:9]
    fill += [('at', 6), vhalf[0]] + hs[9:14] + [('at', 7), vhalf[1]] + hs[14:19] + [('at', 8), vhalf[2]] + hs[19:]
    hb = half_softmax_ops(1, 'B0')
    fill += [('at', 9)] + hb[:10]
    weave(a, mf, fill)
    if OPT.get('epi'): stamp(a, 2)
    a('s_waitcnt lgkmcnt(0)')
    mf = [pv_mfma('own', 0, 0, ct) for ct in range(3)] + [pv_mfma('B0', 1, 0, ct) for ct in range(3)]
    ls = lsum_ops('own', 2, 'oo')
    weave(a, mf, hb[10:] + [('at', 3)] + ls[:7])
    if OPT.get('epi'): stamp(a, 3)
    for x in ls[7:]: a(x)
    cv = cvt_ops('own', PA[0] if isinstance(PA, tuple) else PA)
    for x in cv[:8]: a(x)
    a('s_waitcnt lgkmcnt(0)')
    weave(a, proj_mfmas('own', PA), cv[8:] + [('at', 8)] + fin_ops('own', 0, 2) + [('at', 14)] + fin_ops('own', 1, 2))
    if OPT.get('epi'): stamp(a, 4)
    a('s_barrier')
    if OPT.get('epi'): stamp(a, 5)
    b = rO['B0'][1]
    TT = [PA + 4 * j for j in range(6)] + [PB + 4 * j for j in range(6)]
    a('ds_read_b32 v8, v7 offset:12288')
    for j in range(12):
        a(f'ds_read_b128 v[{TT[j]}:{TT[j]+3}], v6 offset:{1024*j}')
    a('v_mov_b32 v3, v2')
    f2 = fin_ops('own', 2, 2, pk=True)
    for x in f2[:16]: a(x)
    a('s_waitcnt lgkmcnt(12)')
    a(f'v_add_f32 v{vL["B0"]}, v{vL["B0"]}, v8')
    for j in range(12):
        t = TT[j]
        a(f's_waitcnt lgkmcnt({11-j})')
        a(f'v_pk_add_f32 v[{b+4*j}:{b+4*j+1}], v[{b+4*j}:{b+4*j+1}], v[{t}:{t+1}]')
        a(f'v_pk_add_f32 v[{b+4*j+2}:{b+4*j+3}], v[{b+4*j+2}:{b+4*j+3}], v[{t+2}:{t+3}]')
    for x in f2[16:]: a(x)
    if OPT.get('epi'): stamp(a, 6)
    for x in lsum_ops('B0', 2, 'ob'): a(x)
    cv = cvt_ops('B0', PB)
    for x in cv[:8]: a(x)
    a('v_mov_b32 v3, v2')
    if OPT.get('epi'): stamp(a, 7)
    so = store_ops(PA, sXo, 60)
    st2 = store_ops2(PA, sXo, 60, waits=False)
    f0 = fin_ops('B0', 0, 2); f1 = fin_ops('B0', 1, 2)
    fill = cv[8:] + [('at', 3)] + so
    fill += [('at', 6), 's_waitcnt lgkmcnt(0)', st2[0]] + [('at', 7), st2[1]]
    for k in range(4):
        fill += [('at', 8 + k), st2[2 + k]] + f0[5*k:5*k+5]
    fill += [('at', 12)] + f0[20:] + [('at', 14)] + f1
    weave(a, proj_mfmas('B0', PB), fill)
    if OPT.get('epi'): stamp(a, 8)
    a('s_nop 7')
    for x in fin_ops('B0', 2, 2, pk=True): a(x)
    for x in store_ops(PB, sXb, 60): a(x)
    for x in store_ops2(PB, sXb, 60): a(x)
    stamp(a, 15)
    stamp_store(a)
    a('s_endpgm')
    slow_path(a, 'o')
    redo(a, 'own', 2, 'oo')
    redo(a, 'B0', 2, 'ob')

def gen_spare(a):
    st = OPT['stsc']
    a.label('L_spare')
    a(f'''
    s_cmp_gt_u32 s{sW}, 1
    s_cbranch_scc1 L_end
    s_cmp_gt_u32 s2, 27
    s_cbranch_scc1 L_end
    v_mov_b32 v60, 1
    s_cmp_eq_u32 s2, 27
    s_cbranch_scc1 L_sp_nonce
    s_mul_i32 s28, s2, 57
    s_lshr_b32 s28, s28, 9
    s_mul_i32 s28, s28, 9
    s_sub_u32 s28, s2, s28
    s_mov_b32 s56, s8
    s_mov_b32 s57, s9
    s_mov_b32 s58, 36864
    s_mov_b32 s59, 0x20000
    v_and_b32 v3, 31, v1
    v_lshrrev_b32 v4, 5, v1
    v_mul_u32_u24 v6, 384, v3
    v_lshl_add_u32 v6, v4, 4, v6
    s_mul_i32 s29, s28, 11
    s_lshr_b32 s29, s29, 5
    s_mul_i32 s30, s29, 3
    s_sub_u32 s30, s28, s30
    s_mul_i32 s33, s30, 6
    s_lshl_b32 s34, s29, 1
    s_add_u32 s33, s33, s34
    s_lshl_b32 s33, s33, 10
    s_cmp_eq_u32 s{sW}, 1
    s_cbranch_scc1 L_sp_vo
    s_mov_b32 s52, s6
    s_mov_b32 s53, s7
    s_mov_b32 s54, 18432
    s_mov_b32 s55, 0x20000
    v_mul_u32_u24 v5, 192, v3
    v_lshl_add_u32 v5, v4, 4, v5
    s_mul_i32 s31, s29, {32*192}
    s_mul_i32 s32, s30, {32*384}
    ''')
    for s in range(6):
        a(f'buffer_load_dwordx4 v[{8+4*s}:{11+4*s}], v5, s[52:55], s31 offen offset:{32*s}')
        a(f'buffer_load_dwordx4 v[{32+4*s}:{35+4*s}], v6, s[56:59], s32 offen offset:{32*s}')
    a(f'''
    v_lshlrev_b32 v7, 4, v3
    v_lshl_add_u32 v7, v4, 3, v7
    s_add_u32 s33, s33, {WQK_OFF}
    s_mov_b32 s35, 0x{f32bits(CST):08x}
    s_add_u32 s36, s28, 224
    ''')
    for s in range(6):
        a(f's_waitcnt vmcnt({10-2*s})')
        a(f'v_mfma_f32_32x32x16_bf16 v[64:79], v[{8+4*s}:{11+4*s}], v[{32+4*s}:{35+4*s}], {"0" if s == 0 else "v[64:79]"}')
    stamp(a, 2, True)
    a('s_nop 15')
    for r in range(16):
        a(f'v_mul_f32 v{64+r}, s35, v{64+r}')
    for r in range(8):
        a(f'v_cvt_pk_bf16_f32 v{80+r}, v{64+2*r}, v{65+2*r}')
    for i in range(4):
        a(f'buffer_store_dwordx2 v[{80+2*i}:{81+2*i}], v7, s[24:27], s33 offen offset:{(i>>1)*1024 + (i&1)*512} {st}')
    a('s_branch L_sp_flag')
    a.label('L_sp_vo')
    a(f'''
    s_cmp_gt_u32 s2, 8
    s_cbranch_scc1 L_end
    s_mov_b32 s20, s10
    s_mov_b32 s21, s11
    s_mov_b32 s22, 18432
    s_mov_b32 s23, 0x20000
    v_lshlrev_b32 v7, 4, v1
    v_lshrrev_b32 v56, 2, v1
    v_and_b32 v57, 3, v1
    v_mul_u32_u24 v56, 192, v56
    v_lshl_add_u32 v56, v57, 4, v56
    s_lshl_b32 s31, s30, 6
    s_mov_b32 s34, 0
    ''')
    for p in range(6):
        a('s_mov_b32 m0, s34')
        a('s_add_u32 s34, s34, 1024')
        a('buffer_load_dwordx4 v56, s[20:23], s31 offen lds')
        a(f's_add_u32 s31, s31, {16*192}')
    a(f's_mul_i32 s32, s29, {32*384}')
    for s in range(6):
        a(f'buffer_load_dwordx4 v[{8+4*s}:{11+4*s}], v6, s[56:59], s32 offen offset:{192+32*s}')
    a(f'''
    v_bfe_u32 v56, v1, 2, 2
    v_lshl_add_u32 v56, v4, 3, v56
    v_lshlrev_b32 v56, 6, v56
    v_bfe_u32 v58, v1, 4, 1
    v_lshl_add_u32 v56, v58, 5, v56
    v_lshl_add_u32 v56, v57, 3, v56
    s_add_u32 s33, s33, {WVO_OFF}
    s_mul_i32 s36, s30, 3
    s_add_u32 s36, s36, s29
    s_add_u32 s36, s36, 200
    s_cmp_eq_u32 s30, 2
    s_cselect_b32 s34, 2, 0
    s_add_u32 s36, s36, s34
    s_waitcnt vmcnt(6)
    ''')
    for s in range(6):
        for half in range(2):
            a(f'ds_read_b64_tr_b16 v[{32+4*s+2*half}:{33+4*s+2*half}], v56 offset:{s*1024 + half*256}')
    a('s_waitcnt vmcnt(0) lgkmcnt(0)')
    for s in range(6):
        a(f'v_mfma_f32_32x32x16_bf16 v[64:79], v[{8+4*s}:{11+4*s}], v[{32+4*s}:{35+4*s}], {"0" if s == 0 else "v[64:79]"}')
    a('s_nop 15')
    for r in range(8):
        a(f'v_cvt_pk_bf16_f32 v{80+r}, v{64+2*r}, v{65+2*r}')
    for k in range(2):
        a(f'buffer_store_dwordx4 v[{80+4*k}:{83+4*k}], v7, s[24:27], s33 offen offset:{1024*k} {st}')
    a.label('L_sp_flag')
    a(f'''
    v_mov_b32 v{vZ}, 0
    s_mov_b32 s{sSP}, 0
    s_lshl_b32 s36, s36, 7
    s_add_u32 s36, s36, {FLAG_OFF}
    ''')
    stamp(a, 3, True)
    nonce_spin(a, 'L_sp_n')
    stamp(a, 4, True)
    a(f'''
    s_mov_b64 exec, 1
    buffer_store_dwordx2 v[{vF}:{vF+1}], v{vZ}, s[24:27], s36 offen {st}
    ''')
    stamp_store(a)
    a('s_endpgm')
    a.label('L_sp_nonce')
    a(f'''
    s_cmp_lg_u32 s{sW}, 0
    s_cbranch_scc1 L_end
    s_memrealtime s[28:29]
    v_mov_b32 v4, 0
    s_waitcnt lgkmcnt(0)
    s_or_b32 s29, s29, 0x40000000
    v_mov_b32 v2, s28
    v_mov_b32 v3, s29
    s_mov_b64 exec, 1
    buffer_store_dwordx2 v[2:3], v4, s[48:51], 0 offen {st}
    s_mov_b32 exec_lo, 0x{DUMMY & 0xffffffff:08x}
    s_mov_b32 exec_hi, 0
    v_lshlrev_b32 v4, 7, v1
    s_mov_b32 s30, {FLAG_OFF + 192*128}
    buffer_store_dwordx2 v[2:3], v4, s[24:27], s30 offen {st}
    s_endpgm
    ''')

def build(path):
    a = Asm()
    a.raw(f'.globl {NAME}')
    a.raw('.p2align 8')
    a.raw(f'.type {NAME},@function')
    a.label(NAME)
    a(f'''
    s_cmp_ge_u32 s2, {NSP+NCONS}
    s_cbranch_scc1 L_end
    ''')
    stamp(a, 0, True)
    stamp(a, 1)
    if OPT.get('probe'): a('s_memrealtime s[100:101]')
    a(f'''
    s_load_dwordx8 s[4:11], s[0:1], 0
    s_load_dwordx2 s[12:13], s[0:1], 32
    s_load_dwordx4 s[44:47], s[0:1], 40
    v_lshrrev_b32 v2, 6, v0
    v_and_b32 v1, 63, v0
    v_readfirstlane_b32 s{sW}, v2
    s_waitcnt lgkmcnt(0)
    s_mov_b32 s16, s4
    s_mov_b32 s17, s5
    s_mov_b32 s18, {X_BYTES}
    s_mov_b32 s19, 0x20000
    s_mov_b32 s24, s46
    s_mov_b32 s25, s47
    s_mov_b32 s26, {WS_BYTES}
    s_mov_b32 s27, 0x20000
    s_mov_b32 s48, s44
    s_mov_b32 s49, s45
    s_mov_b32 s50, 256
    s_mov_b32 s51, 0x20000
    s_cmp_lt_u32 s2, {NSP}
    s_cbranch_scc1 L_spare
    ''')
    gen_consumer(a)
    gen_spare(a)
    a.label('L_end')
    a('s_endpgm')
    out = HEADER
    out += f'; @launch grid=({NSP+NCONS},1,1) block=(256,1,1) lds={LDS_TOTAL}\n'
    out += '.amdgcn_target "amdgcn-amd-amdhsa--gfx950"\n.text\n'
    out += a.text()
    out += '.section .rodata,"a"\n.p2align 6\n'
    out += kd(NAME, 512, 256)
    open(path, 'w').write(out)

if __name__ == '__main__':
    for o in sys.argv[2:]:
        if '=' in o:
            k, v = o.split('=')
            OPT[k] = int(v) if v.isdigit() else v.replace('+', ' ')
        else:
            OPT[o] = True
    build(sys.argv[1] if len(sys.argv) > 1 else 'k7.s')
```

```python
import sys
from gen import Asm, f32bits, kd, HEADER, X_BYTES, KV_BYTES, CST
from gen2 import (vLB, vDMA, vL, vXO, vS, vM, rO, aX, aK, aV, BUF, MERGE, rng, qk_mfma, pv_mfma,
                  softmax_ops, schedule_stage, kread, vread)
import gen5
from gen5 import (DUMMY, NAME, NSP, NCONS, WVO_OFF, WQK_OFF, FLAG_OFF, WS_BYTES, OST, LDS_TOTAL, XST, WQ_LDS, WVO_LDS, MERGE0,
                  QX_LDS, MX_LDS, LK_LDS, NC_LDS, OPT, sW, sCNT, sT, sG, sDn, sDp, sTE, sTMP, sXo, sXb, sXB, sXS, sFO, sD0,
                  sK0, sFM, sSP, sU, sW12, vF, vZ, sN, vFO, vRB, vSW, stamp, stamp_store, dma, flag_load,
                  flag_cmp, spin_tail, nonce_spin, spin, gen_loop, slow_path)

def wvo_reg(f):
    return rng('v', vM['own'] + 4 * f, 4) if f < 16 else rng('a', 244 + 4 * (f - 16), 4)


def cost(ins):
    op = ins.split()[0]
    if op.startswith('v_exp') or op.startswith('v_rcp'): return 2
    return 1
def is_mem(ins):
    return ins.startswith('ds_') or ins.startswith('buffer_')
def is_salu(ins):
    return ins.startswith('s_')

def weave(a, mfmas, fill, cap=6):
    q = list(fill)
    for g, m in enumerate(mfmas):
        a(m)
        c = cap
        first = True
        prev_valu = False
        while q:
            it = q[0]
            if isinstance(it, tuple):
                if it[1] > g: break
                q.pop(0); continue
            k = cost(it)
            if is_salu(it) and first: k = 0
            if is_mem(it) and prev_valu: break
            if k > c: break
            a(q.pop(0)); c -= k; first = False
            prev_valu = prev_valu or it.startswith('v_')
    for it in q:
        if not isinstance(it, tuple): a(it)

def half_softmax_ops(sbuf, tile):
    S = vS[sbuf]; L = vL[tile]
    o = [f'v_exp_f32 v{S+i}, v{S+i}' for i in range(8)]
    o += [f'v_add_f32 v{L}, v{L}, v{S+i}' for i in range(8)]
    o += [f'v_cvt_pk_bf16_f32 v{S+j}, v{S+2*j}, v{S+2*j+1}' for j in range(4)]
    return o

LO = f32bits(2.0 ** -90)
HI = f32bits(2.0 ** 90)

def lsum_ops(tile, r, tag):
    L = vL[tile]
    return [f'v_mov_b32 v{r}, v{L}', 's_nop 1', f'v_permlane32_swap_b32 v{L}, v{r}', 's_nop 0',
            f'v_add_f32 v{r}, v{L}, v{r}',
            f'v_med3_f32 v{r+1}, v{r}, s58, v{vHI}',
            f'v_cmp_neq_f32 vcc, v{r+1}, v{r}',
            f's_cbranch_vccnz L_redo_{tag}', f'L_redone_{tag}:',
            f'v_rcp_f32 v{r}, v{r}']
vHI = 9

def redo(a, tile, r, tag):
    k, b = rO[tile]
    L = vL[tile]
    X = aX[tile]
    S = vS[2]; M = vS[3]
    sd = rng('v', S, 16)
    a.label(f'L_redo_{tag}')
    a('s_waitcnt vmcnt(0) lgkmcnt(0)')
    a('s_nop 15')
    a('v_mov_b32 v4, 0xff800000')
    a('s_mov_b32 s55, 0')
    def kload():
        a('s_add_u32 s57, s55, 4096')
        for s in range(6):
            a(f'buffer_load_dwordx4 {rng("a", aK+4*s, 4)}, v{vDMA}, s[24:27], s{55 if s < 4 else 57} offen offset:{1024*(s%4)}')
    def vload(n):
        a('s_add_u32 s57, s55, 6144')
        a('s_add_u32 s59, s55, 10240')
        for f in range(n):
            a(f'buffer_load_dwordx4 {rng("a", aV+4*f, 4)}, v{vDMA}, s[24:27], s{57 if f < 4 else 59} offen offset:{1024*(f%4)}')
    def qk(c):
        for s in range(6):
            a(f'v_mfma_f32_32x32x16_bf16 {sd}, {rng("a", aK+4*s, 4)}, {rng("a", X+4*s, 4)}, {c if s == 0 else sd}')
        a('s_nop 15')
    def mx(n):
        for i in range(0, n, 2):
            a(f'v_max3_f32 v4, v4, v{S+i}, v{S+i+1}')
    a.label(f'L_redo1_{tag}')
    kload(); a('s_waitcnt vmcnt(0)'); qk('0')
    a(f's_cmp_eq_u32 s55, {24*12288}')
    a(f's_cbranch_scc1 L_redo1e_{tag}')
    mx(16)
    a('s_add_u32 s55, s55, 12288')
    a(f's_branch L_redo1_{tag}')
    a.label(f'L_redo1e_{tag}')
    mx(8)
    a('v_mov_b32 v5, v4')
    a('s_nop 1')
    a('v_permlane32_swap_b32 v4, v5')
    a('s_nop 0')
    a('v_max_f32 v4, v4, v5')
    for i in range(16):
        a(f'v_sub_f32 v{M+i}, 0, v4')
    for i in range(48):
        a(f'v_mov_b32 v{b+i}, 0')
    a(f'v_mov_b32 v{L}, 0')
    a('s_mov_b32 s55, 0')
    def sm(n):
        for i in range(n): a(f'v_exp_f32 v{S+i}, v{S+i}')
        a('s_nop 0')
        for i in range(n): a(f'v_add_f32 v{L}, v{L}, v{S+i}')
        for p in range(n // 2):
            t, j = divmod(p, 4)
            a(f'v_cvt_pk_bf16_f32 v{S+8*t+j}, v{S+2*p}, v{S+2*p+1}')
        a('s_nop 1')
        for t in range(n // 8):
            for ct in range(3):
                a(pv_mfma(tile, 2, t, ct))
    a.label(f'L_redo2_{tag}')
    kload(); vload(6); a('s_waitcnt vmcnt(0)'); qk(rng('v', M, 16))
    a(f's_cmp_eq_u32 s55, {24*12288}')
    a(f's_cbranch_scc1 L_redo2e_{tag}')
    sm(16)
    a('s_add_u32 s55, s55, 12288')
    a(f's_branch L_redo2_{tag}')
    a.label(f'L_redo2e_{tag}')
    sm(8)
    a(f'v_mov_b32 v{r}, v{L}')
    a('s_nop 1')
    a(f'v_permlane32_swap_b32 v{L}, v{r}')
    a('s_nop 0')
    a(f'v_add_f32 v{r}, v{L}, v{r}')
    a('s_waitcnt lgkmcnt(0)')
    a('s_nop 15')
    a(f's_branch L_redone_{tag}')

def cvt_ops(tile, P):
    b = rO[tile][1]
    return [f'v_cvt_pk_bf16_f32 v{P+j}, v{b+2*j}, v{b+2*j+1}' for j in range(24)]

def proj_mfmas(tile, P):
    b = rO[tile][1]
    m = []
    for cot in range(3):
        d = rng('v', b + 16 * cot, 16)
        for s in range(6):
            m.append(f'v_mfma_f32_32x32x16_bf16 {d}, {wvo_reg(6*cot+s)}, {rng("v", P+4*s, 4)}, {"0" if s == 0 else d}')
    return m

def fin_ops(tile, cot, r, pk=False):
    o = rO[tile][1] + 16 * cot
    out = []
    for j in range(8):
        if pk:
            out.append(f'v_pk_mul_f32 v[{o+2*j}:{o+2*j+1}], v[{o+2*j}:{o+2*j+1}], v[{r}:{r+1}]')
        else:
            out.append(f'v_mul_f32 v{o+2*j}, v{r}, v{o+2*j}')
            out.append(f'v_mul_f32 v{o+2*j+1}, v{r}, v{o+2*j+1}')
        if not pk:
            out.append(f'v_cvt_pk_bf16_f32 v{o+j}, v{o+2*j}, v{o+2*j+1}')
    if pk:
        out += [f'v_cvt_pk_bf16_f32 v{o+j}, v{o+2*j}, v{o+2*j+1}' for j in range(8)]
    out += [f'ds_write_b64 v{vSW}, v[{o+2*i}:{o+2*i+1}] offset:{64*cot+16*i}' for i in range(4)]
    return out

def store_ops(R, soff, s2):
    o = ['s_waitcnt lgkmcnt(0)']
    o += [f'ds_read_b128 v[{R+4*j}:{R+4*j+3}], v{vRB[j%3]} offset:{(j//3)*16*208}' for j in range(6)]
    o += [f's_add_u32 s{s2}, s{soff}, 4096']
    return o
def store_ops2(R, soff, s2, waits=True):
    o = []
    for j in range(6):
        if waits: o.append(f's_waitcnt lgkmcnt({5-j})')
        o.append(f'buffer_store_dwordx4 v[{R+4*j}:{R+4*j+3}], v{vDMA}, s[20:23], s{soff if j < 4 else s2} offen offset:{1024*(j%4)} {OPT.get("osc", "nt")}')
    return o

def probe(a, where):
    if OPT.get('probe') != where: return
    lab = f'L_probe{len(a.lines)}'
    a.label(lab)
    a('s_memrealtime s[98:99]')
    a('s_waitcnt lgkmcnt(0)')
    a('s_sub_u32 s98, s98, s100')
    a(f's_cmp_lt_u32 s98, {OPT["D"]}')
    a(f's_cbranch_scc1 {lab}')

def gen_consumer(a):
    st = OPT['stsc']
    a(f'''
    s_sub_u32 s3, s2, {NSP}
    v_lshlrev_b32 v{vDMA}, 4, v1
    s_lshr_b32 s55, s3, 3
    s_and_b32 s56, s3, 7
    s_mul_i32 s{sXB}, s55, 344064
    s_mul_i32 s57, s56, 6144
    s_mov_b32 s{sXS}, 43008
    s_cmp_eq_u32 s56, 7
    s_cselect_b32 s57, {7*43008}, s57
    s_cselect_b32 s{sXS}, 6144, s{sXS}
    s_add_u32 s{sXB}, s{sXB}, s57
    s_mul_i32 s{sU}, s55, 7
    s_add_u32 s{sU}, s{sU}, s56
    s_mul_i32 s{sW12}, s{sW}, 12288
    v_mov_b32 v{vZ}, 0
    v_mov_b32 v2, {NC_LDS}
    s_mov_b32 s{sSP}, 0
    s_cmp_eq_u32 s{sW}, 3
    s_cbranch_scc1 L_x_w3
    s_mul_i32 s57, s{sW}, 3
    s_mul_i32 s58, s57, 6144
    s_mul_i32 s57, s57, s{sXS}
    s_add_u32 s57, s57, s{sXB}
    s_add_u32 s58, s58, {XST}
    s_mov_b32 m0, s58
    s_add_u32 s59, s57, 4096
    ''')
    for t in range(3):
        for p in range(4):
            a(f'buffer_load_dwordx4 v{vDMA}, s[16:19], s57 offen offset:{1024*p} {OPT.get("xsc", "")} lds')
        a(f's_add_u32 m0, s58, {6144*t + 4096}')
        a(f's_add_u32 s57, s57, s{sXS}')
        for p in range(2):
            a(f'buffer_load_dwordx4 v{vDMA}, s[16:19], s59 offen offset:{1024*p} {OPT.get("xsc", "")} lds')
        if t < 2:
            a(f's_add_u32 m0, s58, {6144*(t+1)}')
            a(f's_add_u32 s59, s59, s{sXS}')
        if t == 1:
            a(f's_cmp_eq_u32 s{sW}, 2')
            a('s_cbranch_scc1 L_x_done')
    a('s_branch L_x_done')
    a.label('L_x_w3')
    a(f'ds_write_b32 v2, v{vZ}')
    a(f'ds_write_b32 v2, v{vZ} offset:4')
    a('s_waitcnt lgkmcnt(0)')
    a.label('L_x_done')
    a('s_barrier')
    a(f'''
    v_and_b32 v3, 31, v1
    v_lshrrev_b32 v4, 5, v1
    v_mul_u32_u24 v{vXO}, 192, v3
    v_lshl_add_u32 v{vXO}, v4, 4, v{vXO}
    s_mul_i32 s{sXo}, s{sW}, s{sXS}
    s_add_u32 s{sXo}, s{sXo}, s{sXB}
    s_lshl_b32 s57, s{sXS}, 2
    s_add_u32 s{sXb}, s{sXo}, s57
    s_mov_b32 s20, s12
    s_mov_b32 s21, s13
    s_mov_b32 s22, {X_BYTES}
    s_mov_b32 s23, 0x20000
    s_mov_b32 s{sCNT}, 0
    s_add_u32 s{sT}, s{sW12}, {2*BUF}
    s_add_u32 s{sTE}, s{sW12}, {BUF}
    s_add_u32 s{sG[0]}, s{sW12}, {BUF}
    s_add_u32 s{sG[1]}, s{sW12}, {BUF+4096}
    s_add_u32 s{sG[2]}, s{sW12}, {BUF+8192}
    s_mov_b32 s{sDn}, {BUF}
    s_mov_b32 s{sDp}, {(-2*BUF) & 0xffffffff}
    s_lshl_b32 s{sFM}, s{sW}, 10
    s_add_u32 s{sFM}, s{sFM}, {FLAG_OFF + 192*128}
    ''')
    a.label('L_setup')
    if OPT.get('warm', 1):
        a(f'buffer_load_dword a240, v{vZ}, s[20:23], s{sXo} offen')
        a(f'buffer_load_dword a241, v{vZ}, s[20:23], s{sXb} offen')
    for i in range(4):
        a(f's_add_u32 s60, s{sW}, {1+i}')
        a('s_and_b32 s60, s60, 3')
        a('s_mul_i32 s60, s60, 12288')
        if i == 0:
            a(f's_mov_b32 s{sK0}, s60')
        if i == 3:
            a(f's_add_u32 s60, s60, {2*BUF}')
        a(f'v_add_u32 v{vLB[i]}, s60, v{vDMA}')
    a(f'''
    s_and_b32 s57, s{sW}, 1
    s_mul_i32 s57, s57, {OST}
    s_mov_b32 s58, {3*BUF}
    s_cmp_lt_u32 s{sW}, 2
    s_cselect_b32 s58, 30720, s58
    s_add_u32 s57, s57, s58
    v_mul_u32_u24 v{vSW}, 208, v3
    v_lshl_add_u32 v{vSW}, v4, 3, v{vSW}
    v_add_u32 v{vSW}, s57, v{vSW}
    ''')
    for j in range(3):
        a(f'v_add_u32 v5, {64*j}, v1')
        a('v_mul_u32_u24 v6, 171, v5')
        a('v_lshrrev_b32 v6, 11, v6')
        a('v_add_u32 v5, v5, v6')
        a(f'v_lshlrev_b32 v5, 4, v5')
        a(f'v_add_u32 v{vRB[j]}, s57, v5')
    a(f'''
    v_lshrrev_b32 v9, 4, v1
    v_and_b32 v10, 15, v1
    v_lshrrev_b32 v6, 2, v10
    v_lshl_add_u32 v6, v9, 3, v6
    v_mul_u32_u24 v5, 192, v6
    v_and_b32 v8, 3, v1
    v_lshl_add_u32 v5, v8, 3, v5
    s_lshl_b32 s57, s{sW}, 6
    s_add_u32 s57, s57, {XST}
    v_add_u32 v5, s57, v5
    v_cmp_eq_u32 vcc, v9, v10
    v_mov_b32 v6, 0x3f803f80
    v_lshlrev_b32 v8, 4, v8
    v_cndmask_b32 v{vS[3]}, 0, v6, vcc
    v_cndmask_b32 v{vS[3]+1}, 0, v6, vcc
    v_cndmask_b32 v{vS[3]+2}, 0, v6, vcc
    v_cndmask_b32 v{vS[3]+3}, 0, v6, vcc
    v_lshl_add_u32 v8, v4, 6, v8
    v_add_u32 v8, {LK_LDS}, v8
    v_and_b32 v3, 1, v9
    v_lshl_add_u32 v6, v3, 5, v10
    v_lshlrev_b32 v6, 4, v6
    v_lshrrev_b32 v7, 1, v9
    v_lshl_add_u32 v6, v7, 3, v6
    v_lshlrev_b32 v29, 4, v10
    v_lshl_add_u32 v29, v3, 6, v29
    v_lshl_add_u32 v29, v7, 3, v29
    s_lshl_b32 s57, s{sW}, 8
    s_add_u32 s57, s57, {LK_LDS}
    v_add_u32 v29, s57, v29
    v_lshlrev_b32 v7, 4, v10
    s_lshr_b32 s57, s{sU}, 3
    s_mul_i32 s57, s57, 12288
    s_and_b32 s58, s{sU}, 7
    s_lshl_b32 s59, s58, 6
    s_add_u32 s59, s59, s57
    s_lshl_b32 s60, s{sW}, 11
    s_add_u32 s59, s59, s60
    s_lshr_b32 s58, s58, 2
    s_mul_i32 s58, s58, 3072
    s_add_u32 s57, s57, s58
    s_add_u32 s57, s57, 6144
    s_and_b32 s58, s{sU}, 1
    s_lshl_b32 s58, s58, 9
    s_add_u32 s57, s57, s58
    s_and_b32 s58, s{sU}, 2
    s_lshl_b32 s58, s58, 2
    s_add_u32 s57, s57, s58
    s_lshl_b32 s60, s{sW}, 10
    s_add_u32 s57, s57, s60
    s_mul_i32 s58, s{sW}, 6144
    s_add_u32 s58, s58, {XST}
    v_add_u32 v30, s58, v{vXO}
    v_add_u32 v31, s58, v{vDMA}
    v_and_b32 v{vFO}, 7, v1
    v_lshlrev_b32 v{vFO}, 7, v{vFO}
    s_sub_u32 s{sFO}, s{sFM}, {192*128}
    v_mov_b32 v3, 1
    ''')
    def zero_o():
        for t in ('own', 'B0'):
            for i in range(48):
                a(f'v_mov_b32 v{rO[t][1]+i}, 0')
    for t in vL:
        a(f'v_mov_b32 v{vL[t]}, 0')
    def xfrags(n):
        for s in range(6):
            a(f'ds_read_b128 {rng("a", aX["B1"]+4*s, 4)}, v30 offset:{32*s}')
        if n > 1:
            for s in range(6):
                a(f'ds_read_b128 {rng("a", aX["B2"]+4*s, 4)}, v30 offset:{4*6144+32*s}')
    a(f's_cmp_eq_u32 s{sW}, 3')
    a('s_cbranch_scc1 L_w3_b2')
    zero_o()
    a(f'buffer_load_dwordx2 v[{vF}:{vF+1}], v{vZ}, s[48:51], 0 offen {OPT["ldsc"]}')
    stamp(a, 2)
    a(f's_waitcnt vmcnt({3 if OPT.get("warm", 1) else 1})')
    a('s_mov_b64 exec, 1')
    a('ds_add_u32 v2, v3')
    a('s_mov_b64 exec, -1')
    a.label('L_xw')
    a(f'ds_read_b32 v4, v2')
    a('s_waitcnt lgkmcnt(0)')
    a('v_cmp_ne_u32 vcc, 3, v4')
    a('s_cbranch_vccnz L_xw')
    stamp(a, 3)
    F = vM['own']
    def trr(row):
        for c in range(2):
            for half in range(2):
                d = F + (row * 2 + c) * 4 + 2 * half
                a(f'ds_read_b64_tr_b16 v[{d}:{d+1}], v5 offset:{row*6144 + half*768 + c*32}')
    IND = rng('v', vS[3], 4)
    D = vS[0]
    for row in range(3): trr(row)
    for row in range(8):
        nahead = min(2, 7 - row) if row + 3 > 7 else 2
        a(f's_waitcnt lgkmcnt({4*min(2, 7-row)})')
        for c in range(2):
            f = rng('v', F + (row * 2 + c) * 4, 4)
            d1 = rng('v', D + 8 * c, 4); d2 = rng('v', D + 8 * c + 4, 4)
            a(f'v_mfma_f32_16x16x32_bf16 {d1}, {f}, {IND}, {"0" if row == 0 else d1}')
            a(f'v_mfma_f32_16x16x32_bf16 {d2}, {IND}, {f}, {"0" if row == 0 else d2}')
        if row + 3 < 8: trr(row + 3)
    a('s_mov_b32 s60, 0x3c800000')
    a('v_cmp_gt_u32 vcc, 4, v10')
    xfrags(2)
    for r in range(16):
        a(f'v_mul_f32 v{D+r}, s60, v{D+r}')
    for r in range(8):
        a(f'v_cvt_pk_bf16_f32 v{D+16+r}, v{D+2*r}, v{D+2*r+1}')
    a('s_cmp_eq_u32 s56, 7')
    a('s_mov_b64 exec, vcc')
    a('s_cbranch_scc1 L_nostore')
    for c in range(2):
        a(f'buffer_store_dwordx2 v[{D+16+4*c}:{D+17+4*c}], v6, s[24:27], s59 offen offset:{1024*c} {st}')
    a('s_mov_b64 exec, 0xffff')
    for c in range(2):
        a(f'buffer_store_dwordx2 v[{D+18+4*c}:{D+19+4*c}], v7, s[24:27], s57 offen offset:{256*c} {st}')
    a('s_mov_b64 exec, vcc')
    a.label('L_nostore')
    for c in range(2):
        a(f'ds_write_b64 v29, v[{D+16+4*c}:{D+17+4*c}] offset:{128*c}')
    a('s_mov_b64 exec, -1')
    stamp(a, 4)
    a('s_cmp_eq_u32 s56, 7')
    a('s_cbranch_scc1 L_nw0')
    a('s_waitcnt vmcnt(4)')
    a('s_branch L_nw1')
    a.label('L_nw0')
    a('s_waitcnt vmcnt(0)')
    a.label('L_nw1')
    a(f'v_cmp_eq_u32 vcc, 0, v{vF+1}')
    a('s_cbranch_vccz L_nonce_ok')
    nonce_spin(a, 'L_nonce')
    a(f'v_readfirstlane_b32 s{sN}, v{vF}')
    a(f'v_readfirstlane_b32 s{sN+1}, v{vF+1}')
    a(f'''
    s_lshl_b32 s60, s{sU}, 7
    s_add_u32 s60, s60, {FLAG_OFF}
    s_waitcnt vmcnt(0)
    s_mov_b64 exec, 1
    ds_add_rtn_u32 v3, v2, v3 offset:4
    s_waitcnt lgkmcnt(0)
    v_cmp_eq_u32 vcc, 2, v3
    s_cmp_eq_u32 s56, 7
    s_cbranch_scc1 L_noflag
    s_cbranch_vccz L_noflag
    buffer_store_dwordx2 v[{vF}:{vF+1}], v{vZ}, s[24:27], s60 offen {st}
    ''')
    a.label('L_noflag')
    a('s_mov_b64 exec, -1')
    a('s_barrier')
    a('s_branch L_q')
    a.label('L_w3_b2')
    zero_o()
    for i in range(96):
        a(f'v_accvgpr_write_b32 a{i}, 0')
    stamp(a, 2)
    a('v_min_u32 v4, 8, v1')
    a('v_lshlrev_b32 v4, 7, v4')
    a(f's_mov_b32 s57, {FLAG_OFF + 224*128}')
    a.label('L_wq')
    a(f'buffer_load_dwordx2 v[6:7], v{vZ}, s[48:51], 0 offen {OPT["ldsc"]}')
    a(f'buffer_load_dwordx2 v[{vF}:{vF+1}], v4, s[24:27], s57 offen {OPT["ldsc"]}')
    a('s_waitcnt vmcnt(0)')
    a('v_cmp_eq_u32 s[58:59], 0, v7')
    a(f'v_cmp_ne_u64 vcc, v[6:7], v[{vF}:{vF+1}]')
    a('s_or_b64 vcc, vcc, s[58:59]')
    spin_tail(a, 'L_wq')
    a(f'v_readfirstlane_b32 s{sN}, v6')
    a(f'v_readfirstlane_b32 s{sN+1}, v7')
    stamp(a, 3)
    a(f's_mov_b32 s57, {WQK_OFF}')
    a(f's_mov_b32 s58, {WQ_LDS}')
    for q in range(5):
        a('s_mov_b32 m0, s58')
        a('s_add_u32 s58, s58, 4096')
        for p in range(4 if q < 4 else 2):
            a(f'buffer_load_dwordx4 v{vDMA}, s[24:27], s57 offen offset:{1024*p} lds')
        a('s_add_u32 s57, s57, 4096')
    stamp(a, 4, True)
    a('s_waitcnt vmcnt(0)')
    probe(a, 'b2')
    a('s_barrier')
    xfrags(1)
    a.label('L_q')
    stamp(a, 5)
    a(f'v_add_u32 v4, {WQ_LDS}, v{vDMA}')
    for f in range(18):
        a(f'ds_read_b128 {wvo_reg(f)}, v4 offset:{1024*f}')
    for s in range(6):
        a(f'ds_read_b128 {rng("a", aV+4*s, 4)}, v8 offset:{128*s}')
    a(f's_cmp_eq_u32 s{sW}, 3')
    a(f's_cselect_b32 s60, {4*6144}, 0')
    a('v_add_u32 v31, s60, v31')
    def qfin(ti, ct):
        S = vS[(2 * ct + ti) % 4]
        X = aX['own' if ti == 0 else 'B0'] + 8 * ct
        out = []
        for j in range(8):
            out.append(f'v_cvt_pk_bf16_f32 v{S+j}, v{S+2*j}, v{S+2*j+1}')
        for j in range(8):
            out.append(f'v_accvgpr_write_b32 a{X+j}, v{S+j}')
        if ti == 1:
            for k in range(2):
                out.append(f'ds_write_b128 v31, v[{S+4*k}:{S+4*k+3}] offset:{(2*ct+k)*1024}')
        return out
    def g0_dma():
        for q in range(3):
            a(f's_add_u32 s60, s{sW12}, {q*4096}')
            a('s_mov_b32 m0, s60')
            a('s_nop 0')
            for p in range(4):
                a(f'buffer_load_dwordx4 v{vDMA}, s[24:27], s60 offen offset:{1024*p} lds')
        a(f's_add_u32 s{sFO}, s{sFO}, 4096')
        a(flag_load())
    def checkpoint(k):
        a('s_cmp_eq_u32 s55, 1')
        a(f's_cbranch_scc1 L_cp{k}_e')
        a('s_waitcnt vmcnt(0)')
        a(flag_cmp())
        a(f's_cbranch_vccnz L_cp{k}_n')
        g0_dma()
        a('s_mov_b32 s55, 1')
        a(f's_branch L_cp{k}_e')
        a.label(f'L_cp{k}_n')
        a(flag_load())
        a.label(f'L_cp{k}_e')
    a('s_mov_b32 s55, 0')
    def publish():
        a(f'''
        s_cmp_eq_u32 s{sW}, 3
        s_cbranch_scc1 L_noflag
        s_lshl_b32 s60, s{sU}, 7
        s_add_u32 s60, s60, {FLAG_OFF}
        s_waitcnt vmcnt(0)
        s_mov_b64 exec, 1
        ds_add_rtn_u32 v3, v2, v3 offset:4
        s_waitcnt lgkmcnt(0)
        v_cmp_eq_u32 vcc, 2, v3
        s_cmp_eq_u32 s56, 7
        s_cbranch_scc1 L_noflag
        s_cbranch_vccz L_noflag
        buffer_store_dwordx2 v[{vF}:{vF+1}], v{vZ}, s[24:27], s60 offen {st}
        ''')
        a.label('L_noflag')
        a('s_mov_b64 exec, -1')
    blocks = [(ti, ct) for ct in range(3) for ti in range(2)]
    pend = []
    for n, (ti, ct) in enumerate(blocks):
        d = rng('v', vS[(2 * ct + ti) % 4], 16)
        X = aX['B1' if ti == 0 else 'B2']
        if n == 0: a('s_waitcnt lgkmcnt(15)')
        if n == 2: a('s_waitcnt lgkmcnt(6)')
        if n == 1: a(flag_load())
        if n == 4: checkpoint(n)
        for s in range(6):
            a(f'v_mfma_f32_32x32x16_bf16 {d}, {wvo_reg(6*ct+s)}, {rng("a", X+4*s, 4)}, {"0" if s == 0 else d}')
            if n >= 2 and s >= 1:
                for _ in range(4):
                    if pend: a(pend.pop(0))
        assert not pend
        if n >= 1:
            pend += qfin(*blocks[n - 1])
    a('s_nop 7')
    for x in pend: a(x)
    for x in qfin(*blocks[-1]): a(x)
    stamp(a, 6)
    checkpoint(6)
    a('s_waitcnt lgkmcnt(0)')
    for ti, t in enumerate(('own', 'B0')):
        d = rng('v', vS[ti], 16)
        for s in range(6):
            a(f'v_mfma_f32_32x32x16_bf16 {d}, {rng("a", aV+4*s, 4)}, {rng("a", aX[t]+4*s, 4)}, {"0" if s == 0 else d}')
    a('s_cmp_eq_u32 s55, 1')
    a('s_cbranch_scc1 L_g0_done')
    a('s_waitcnt vmcnt(0)')
    a(flag_cmp())
    a('s_cbranch_vccz L_w0_ok')
    spin(a, 'L_w0')
    g0_dma()
    a.label('L_g0_done')
    stamp(a, 7)
    a('s_nop 7')
    a(f's_lshl_b32 s60, s{sW}, 10')
    a(f's_add_u32 s60, s60, {MX_LDS}')
    a(f'v_add_u32 v3, s60, v{vDMA}')
    for ti, t in enumerate(('own', 'B0')):
        S = vS[ti]
        a(f'v_max3_f32 v2, v{S}, v{S+1}, v{S+2}')
        a(f'v_max_f32 v2, v2, v{S+3}')
        a(f'v_sub_f32 v{vM[t]}, 0, v2')
        for i in range(1, 16):
            a(f'v_mov_b32 v{vM[t]+i}, v{vM[t]}')
    a(f'ds_write_b128 v3, {rng("v", vM["B0"], 4)}')
    for i in range(24):
        a(f'v_accvgpr_write_b32 a{aV+i}, 0')
    for i in range(4):
        a(f'v_mov_b32 v{vS[3]+i}, 0')
        a(f'v_mov_b32 v{vS[3]+8+i}, 0')
    a(f'v_add_u32 v2, {XST}, v{vDMA}')
    a(f'v_mov_b32 v{vHI}, 0x{HI:08x}')
    a('s_waitcnt vmcnt(0) lgkmcnt(0)')
    probe(a, 'b3')
    a('s_barrier')
    stamp(a, 8)
    for s in range(6):
        a(kread(0, s))
    a(flag_cmp())
    a(f's_cmp_lg_u32 s{sW}, 3')
    a('s_cbranch_scc1 L_owner')

    def group1(tag):
        a(f's_cbranch_vccz L_w1{tag}_ok')
        spin(a, f'L_w1{tag}')
        for q in range(3):
            a(f's_add_u32 m0, s{sTE}, {q*4096}')
            a('s_nop 0')
            for p in range(4):
                a(dma(q, p))
            a(f's_add_u32 s{sG[q]}, s{sG[q]}, {BUF}')
        a(f's_add_u32 s{sFO}, s{sFO}, 4096')
        a('s_waitcnt lgkmcnt(0)')
        stamp(a, 11)
        stamp(a, 12, True)
        if OPT['stamps']: a('s_waitcnt lgkmcnt(0)')

    vhalf = [f'ds_read_b128 {rng("a", aV+4*ct, 4)}, v{vDMA} offset:{6144+1024*ct}' for ct in range(3)]
    wv = [f'ds_read_b128 {wvo_reg(f)}, v{vDMA} offset:{WVO_LDS + 1024*f}' for f in range(18)]
    PA = vS[0]
    PB = vS[2]

    for e, t in enumerate(('B0', 'B1', 'B2')):
        for s in range(6):
            a(f'ds_read_b128 {rng("a", aX[t]+4*s, 4)}, v2 offset:{e*6144 + 1024*s}')
        for k in range(4):
            a(f'ds_read_b128 {rng("v", vM[t]+4*k, 4)}, v2 offset:{24576 + 1024*e}')
        if e == 0:
            a('s_waitcnt lgkmcnt(10)')
            for s in range(6): a(qk_mfma('own', 0, s))
    group1('h')
    gen_loop(a, True)
    stamp(a, 13); stamp(a, 14, True)
    a(f'v_add_u32 v5, {MERGE0}, v{vDMA}')
    a('v_lshlrev_b32 v2, 2, v1')
    a(f'v_add_u32 v2, {MERGE0}, v2')
    a(f's_mov_b32 s58, 0x{LO:08x}')
    a('s_waitcnt lgkmcnt(0)')
    wr = []
    for e, t in enumerate(('B0', 'B1', 'B2')):
        k, b = rO[t]
        wr += [f'ds_write_b128 v5, {rng(k, b+4*j, 4)} offset:{e*MERGE + 1024*j}' for j in range(12)]
        wr += [f'ds_write_b32 v2, v{vL[t]} offset:{e*MERGE + 12288}']
    mf = [pv_mfma('own', 3, t, ct) for t in range(2) for ct in range(3)]
    fill = []
    for g in range(6):
        fill.append(('at', g))
        if g < 3: fill.append(vhalf[g])
        fill += wr[5*g:5*g+5]
    weave(a, mf, fill)
    if OPT.get('epi'): stamp(a, 2)
    for x in wr[30:]: a(x)
    for x in half_softmax_ops(0, 'own'): a(x)
    if OPT.get('epi'): stamp(a, 3)
    a('s_waitcnt lgkmcnt(0)')
    if OPT.get('epi'): stamp(a, 4)
    probe(a, 'mg')
    a('s_barrier')
    if OPT.get('epi'): stamp(a, 5)
    weave(a, [pv_mfma('own', 0, 0, ct) for ct in range(3)], wv)
    for x in lsum_ops('own', 2, 'h'): a(x)
    if OPT.get('epi'): stamp(a, 6)
    cv = cvt_ops('own', PA)
    a('s_nop 1')
    a('v_mov_b32 v3, v2')
    for x in cv[:8]: a(x)
    a('s_waitcnt lgkmcnt(0)')
    if OPT.get('epi'): stamp(a, 7)
    weave(a, proj_mfmas('own', PA), cv[8:] + [('at', 8)] + fin_ops('own', 0, 2) + [('at', 14)] + fin_ops('own', 1, 2))
    if OPT.get('epi'): stamp(a, 8)
    a('s_nop 7')
    for x in fin_ops('own', 2, 2, pk=True): a(x)
    for x in store_ops(PB, sXo, 60): a(x)
    for x in store_ops2(PB, sXo, 60): a(x)
    stamp(a, 15)
    stamp_store(a)
    a('s_endpgm')
    slow_path(a, 'h')
    redo(a, 'own', 2, 'h')
    a.label('L_owner')
    a('s_waitcnt lgkmcnt(0)')
    for s in range(6): a(qk_mfma('own', 0, s))
    group1('o')
    gen_loop(a, False)
    stamp(a, 13); stamp(a, 14, True)
    a(f's_mul_i32 s60, s{sW}, {MERGE}')
    a(f's_add_u32 s60, s60, {MERGE0}')
    a(f'v_add_u32 v6, s60, v{vDMA}')
    a('v_lshlrev_b32 v7, 2, v1')
    a('v_add_u32 v7, s60, v7')
    a(f's_mov_b32 s58, 0x{LO:08x}')
    a('s_waitcnt lgkmcnt(0)')
    mf = [qk_mfma('B0', 1, s) for s in range(6)] + [pv_mfma('own', 3, t, ct) for t in range(2) for ct in range(3)]
    hs = half_softmax_ops(0, 'own')
    fill = wv[0:4] + wv[8:10] + [('at', 1)] + wv[4:8] + wv[10:12] + [('at', 2)] + wv[12:18] + [('at', 3)] + hs[:9]
    fill += [('at', 6), vhalf[0]] + hs[9:14] + [('at', 7), vhalf[1]] + hs[14:19] + [('at', 8), vhalf[2]] + hs[19:]
    hb = half_softmax_ops(1, 'B0')
    fill += [('at', 9)] + hb[:10]
    weave(a, mf, fill)
    if OPT.get('epi'): stamp(a, 2)
    a('s_waitcnt lgkmcnt(0)')
    mf = [pv_mfma('own', 0, 0, ct) for ct in range(3)] + [pv_mfma('B0', 1, 0, ct) for ct in range(3)]
    ls = lsum_ops('own', 2, 'oo')
    weave(a, mf, hb[10:] + [('at', 3)] + ls[:7])
    if OPT.get('epi'): stamp(a, 3)
    for x in ls[7:]: a(x)
    cv = cvt_ops('own', PA[0] if isinstance(PA, tuple) else PA)
    for x in cv[:8]: a(x)
    a('s_waitcnt lgkmcnt(0)')
    weave(a, proj_mfmas('own', PA), cv[8:] + [('at', 8)] + fin_ops('own', 0, 2) + [('at', 14)] + fin_ops('own', 1, 2))
    if OPT.get('epi'): stamp(a, 4)
    a('s_barrier')
    if OPT.get('epi'): stamp(a, 5)
    b = rO['B0'][1]
    TT = [PA + 4 * j for j in range(6)] + [PB + 4 * j for j in range(6)]
    a('ds_read_b32 v8, v7 offset:12288')
    for j in range(12):
        a(f'ds_read_b128 v[{TT[j]}:{TT[j]+3}], v6 offset:{1024*j}')
    a('v_mov_b32 v3, v2')
    f2 = fin_ops('own', 2, 2, pk=True)
    for x in f2[:16]: a(x)
    a('s_waitcnt lgkmcnt(12)')
    a(f'v_add_f32 v{vL["B0"]}, v{vL["B0"]}, v8')
    for j in range(12):
        t = TT[j]
        a(f's_waitcnt lgkmcnt({11-j})')
        a(f'v_pk_add_f32 v[{b+4*j}:{b+4*j+1}], v[{b+4*j}:{b+4*j+1}], v[{t}:{t+1}]')
        a(f'v_pk_add_f32 v[{b+4*j+2}:{b+4*j+3}], v[{b+4*j+2}:{b+4*j+3}], v[{t+2}:{t+3}]')
    for x in f2[16:]: a(x)
    if OPT.get('epi'): stamp(a, 6)
    for x in lsum_ops('B0', 2, 'ob'): a(x)
    cv = cvt_ops('B0', PB)
    for x in cv[:8]: a(x)
    a('v_mov_b32 v3, v2')
    if OPT.get('epi'): stamp(a, 7)
    so = store_ops(PA, sXo, 60)
    st2 = store_ops2(PA, sXo, 60, waits=False)
    f0 = fin_ops('B0', 0, 2); f1 = fin_ops('B0', 1, 2)
    fill = cv[8:] + [('at', 3)] + so
    fill += [('at', 6), 's_waitcnt lgkmcnt(0)', st2[0]] + [('at', 7), st2[1]]
    for k in range(4):
        fill += [('at', 8 + k), st2[2 + k]] + f0[5*k:5*k+5]
    fill += [('at', 12)] + f0[20:] + [('at', 14)] + f1
    weave(a, proj_mfmas('B0', PB), fill)
    if OPT.get('epi'): stamp(a, 8)
    a('s_nop 7')
    for x in fin_ops('B0', 2, 2, pk=True): a(x)
    for x in store_ops(PB, sXb, 60): a(x)
    for x in store_ops2(PB, sXb, 60): a(x)
    stamp(a, 15)
    stamp_store(a)
    a('s_endpgm')
    slow_path(a, 'o')
    redo(a, 'own', 2, 'oo')
    redo(a, 'B0', 2, 'ob')

def gen_spare(a):
    st = OPT['stsc']
    a.label('L_spare')
    a(f'''
    s_cmp_gt_u32 s{sW}, 1
    s_cbranch_scc1 L_end
    s_cmp_gt_u32 s2, 27
    s_cbranch_scc1 L_end
    v_mov_b32 v60, 1
    s_cmp_eq_u32 s2, 27
    s_cbranch_scc1 L_sp_nonce
    s_mul_i32 s28, s2, 57
    s_lshr_b32 s28, s28, 9
    s_mul_i32 s28, s28, 9
    s_sub_u32 s28, s2, s28
    s_mov_b32 s56, s8
    s_mov_b32 s57, s9
    s_mov_b32 s58, 36864
    s_mov_b32 s59, 0x20000
    v_and_b32 v3, 31, v1
    v_lshrrev_b32 v4, 5, v1
    v_mul_u32_u24 v6, 384, v3
    v_lshl_add_u32 v6, v4, 4, v6
    s_mul_i32 s29, s28, 11
    s_lshr_b32 s29, s29, 5
    s_mul_i32 s30, s29, 3
    s_sub_u32 s30, s28, s30
    s_mul_i32 s33, s30, 6
    s_lshl_b32 s34, s29, 1
    s_add_u32 s33, s33, s34
    s_lshl_b32 s33, s33, 10
    s_cmp_eq_u32 s{sW}, 1
    s_cbranch_scc1 L_sp_vo
    s_mov_b32 s52, s6
    s_mov_b32 s53, s7
    s_mov_b32 s54, 18432
    s_mov_b32 s55, 0x20000
    v_mul_u32_u24 v5, 192, v3
    v_lshl_add_u32 v5, v4, 4, v5
    s_mul_i32 s31, s29, {32*192}
    s_mul_i32 s32, s30, {32*384}
    ''')
    for s in range(6):
        a(f'buffer_load_dwordx4 v[{8+4*s}:{11+4*s}], v5, s[52:55], s31 offen offset:{32*s}')
        a(f'buffer_load_dwordx4 v[{32+4*s}:{35+4*s}], v6, s[56:59], s32 offen offset:{32*s}')
    a(f'''
    v_lshlrev_b32 v7, 4, v3
    v_lshl_add_u32 v7, v4, 3, v7
    s_add_u32 s33, s33, {WQK_OFF}
    s_mov_b32 s35, 0x{f32bits(CST):08x}
    s_add_u32 s36, s28, 224
    ''')
    for s in range(6):
        a(f's_waitcnt vmcnt({10-2*s})')
        a(f'v_mfma_f32_32x32x16_bf16 v[64:79], v[{8+4*s}:{11+4*s}], v[{32+4*s}:{35+4*s}], {"0" if s == 0 else "v[64:79]"}')
    stamp(a, 2, True)
    a('s_nop 15')
    for r in range(16):
        a(f'v_mul_f32 v{64+r}, s35, v{64+r}')
    for r in range(8):
        a(f'v_cvt_pk_bf16_f32 v{80+r}, v{64+2*r}, v{65+2*r}')
    for i in range(4):
        a(f'buffer_store_dwordx2 v[{80+2*i}:{81+2*i}], v7, s[24:27], s33 offen offset:{(i>>1)*1024 + (i&1)*512} {st}')
    a('s_branch L_sp_flag')
    a.label('L_sp_vo')
    a(f'''
    s_cmp_gt_u32 s2, 8
    s_cbranch_scc1 L_end
    s_mov_b32 s20, s10
    s_mov_b32 s21, s11
    s_mov_b32 s22, 18432
    s_mov_b32 s23, 0x20000
    v_lshlrev_b32 v7, 4, v1
    v_lshrrev_b32 v56, 2, v1
    v_and_b32 v57, 3, v1
    v_mul_u32_u24 v56, 192, v56
    v_lshl_add_u32 v56, v57, 4, v56
    s_lshl_b32 s31, s30, 6
    s_mov_b32 s34, 0
    ''')
    for p in range(6):
        a('s_mov_b32 m0, s34')
        a('s_add_u32 s34, s34, 1024')
        a('buffer_load_dwordx4 v56, s[20:23], s31 offen lds')
        a(f's_add_u32 s31, s31, {16*192}')
    a(f's_mul_i32 s32, s29, {32*384}')
    for s in range(6):
        a(f'buffer_load_dwordx4 v[{8+4*s}:{11+4*s}], v6, s[56:59], s32 offen offset:{192+32*s}')
    a(f'''
    v_bfe_u32 v56, v1, 2, 2
    v_lshl_add_u32 v56, v4, 3, v56
    v_lshlrev_b32 v56, 6, v56
    v_bfe_u32 v58, v1, 4, 1
    v_lshl_add_u32 v56, v58, 5, v56
    v_lshl_add_u32 v56, v57, 3, v56
    s_add_u32 s33, s33, {WVO_OFF}
    s_mul_i32 s36, s30, 3
    s_add_u32 s36, s36, s29
    s_add_u32 s36, s36, 200
    s_cmp_eq_u32 s30, 2
    s_cselect_b32 s34, 2, 0
    s_add_u32 s36, s36, s34
    s_waitcnt vmcnt(6)
    ''')
    for s in range(6):
        for half in range(2):
            a(f'ds_read_b64_tr_b16 v[{32+4*s+2*half}:{33+4*s+2*half}], v56 offset:{s*1024 + half*256}')
    a('s_waitcnt vmcnt(0) lgkmcnt(0)')
    for s in range(6):
        a(f'v_mfma_f32_32x32x16_bf16 v[64:79], v[{8+4*s}:{11+4*s}], v[{32+4*s}:{35+4*s}], {"0" if s == 0 else "v[64:79]"}')
    a('s_nop 15')
    for r in range(8):
        a(f'v_cvt_pk_bf16_f32 v{80+r}, v{64+2*r}, v{65+2*r}')
    for k in range(2):
        a(f'buffer_store_dwordx4 v[{80+4*k}:{83+4*k}], v7, s[24:27], s33 offen offset:{1024*k} {st}')
    a.label('L_sp_flag')
    a(f'''
    v_mov_b32 v{vZ}, 0
    s_mov_b32 s{sSP}, 0
    s_lshl_b32 s36, s36, 7
    s_add_u32 s36, s36, {FLAG_OFF}
    ''')
    stamp(a, 3, True)
    nonce_spin(a, 'L_sp_n')
    stamp(a, 4, True)
    a(f'''
    s_mov_b64 exec, 1
    buffer_store_dwordx2 v[{vF}:{vF+1}], v{vZ}, s[24:27], s36 offen {st}
    ''')
    stamp_store(a)
    a('s_endpgm')
    a.label('L_sp_nonce')
    a(f'''
    s_cmp_lg_u32 s{sW}, 0
    s_cbranch_scc1 L_end
    s_memrealtime s[28:29]
    v_mov_b32 v4, 0
    s_waitcnt lgkmcnt(0)
    s_or_b32 s29, s29, 0x40000000
    v_mov_b32 v2, s28
    v_mov_b32 v3, s29
    s_mov_b64 exec, 1
    buffer_store_dwordx2 v[2:3], v4, s[48:51], 0 offen {st}
    s_mov_b32 exec_lo, 0x{DUMMY & 0xffffffff:08x}
    s_mov_b32 exec_hi, 0
    v_lshlrev_b32 v4, 7, v1
    s_mov_b32 s30, {FLAG_OFF + 192*128}
    buffer_store_dwordx2 v[2:3], v4, s[24:27], s30 offen {st}
    s_endpgm
    ''')

def build(path):
    a = Asm()
    a.raw(f'.globl {NAME}')
    a.raw('.p2align 8')
    a.raw(f'.type {NAME},@function')
    a.label(NAME)
    a(f'''
    s_cmp_ge_u32 s2, {NSP+NCONS}
    s_cbranch_scc1 L_end
    ''')
    stamp(a, 0, True)
    stamp(a, 1)
    if OPT.get('probe'): a('s_memrealtime s[100:101]')
    a(f'''
    s_load_dwordx8 s[4:11], s[0:1], 0
    s_load_dwordx2 s[12:13], s[0:1], 32
    s_load_dwordx4 s[44:47], s[0:1], 40
    v_lshrrev_b32 v2, 6, v0
    v_and_b32 v1, 63, v0
    v_readfirstlane_b32 s{sW}, v2
    s_waitcnt lgkmcnt(0)
    s_mov_b32 s16, s4
    s_mov_b32 s17, s5
    s_mov_b32 s18, {X_BYTES}
    s_mov_b32 s19, 0x20000
    s_mov_b32 s24, s46
    s_mov_b32 s25, s47
    s_mov_b32 s26, {WS_BYTES}
    s_mov_b32 s27, 0x20000
    s_mov_b32 s48, s44
    s_mov_b32 s49, s45
    s_mov_b32 s50, 256
    s_mov_b32 s51, 0x20000
    s_cmp_lt_u32 s2, {NSP}
    s_cbranch_scc1 L_spare
    ''')
    gen_consumer(a)
    gen_spare(a)
    a.label('L_end')
    a('s_endpgm')
    out = HEADER
    out += f'; @launch grid=({NSP+NCONS},1,1) block=(256,1,1) lds={LDS_TOTAL}\n'
    out += '.amdgcn_target "amdgcn-amd-amdhsa--gfx950"\n.text\n'
    out += a.text()
    out += '.section .rodata,"a"\n.p2align 6\n'
    out += kd(NAME, 512, 256)
    open(path, 'w').write(out)

if __name__ == '__main__':
    for o in sys.argv[2:]:
        if '=' in o:
            k, v = o.split('=')
            OPT[k] = int(v) if v.isdigit() else v.replace('+', ' ')
        else:
            OPT[o] = True
    build(sys.argv[1] if len(sys.argv) > 1 else 'k7.s')
```

```python
import sys
from gen import Asm, f32bits, kd, HEADER, X_BYTES, KV_BYTES, CST
from gen2 import (vLB, vDMA, vL, vXO, vS, vM, rO, aX, aK, aV, BUF, MERGE, rng, qk_mfma, pv_mfma,
                  softmax_ops, schedule_stage, kread, vread)
import gen5
from gen5 import (DUMMY, NAME, NSP, NCONS, WVO_OFF, WQK_OFF, FLAG_OFF, WS_BYTES, OST, LDS_TOTAL, XST, WQ_LDS, WVO_LDS, MERGE0,
                  QX_LDS, MX_LDS, LK_LDS, NC_LDS, OPT, sW, sCNT, sT, sG, sDn, sDp, sTE, sTMP, sXo, sXb, sXB, sXS, sFO, sD0,
                  sK0, sFM, sSP, sU, sW12, vF, vZ, sN, vFO, vRB, vSW, stamp, stamp_store, dma, flag_load,
                  flag_cmp, spin_tail, nonce_spin, spin, gen_loop, slow_path)

def wvo_reg(f):
    return rng('v', vM['own'] + 4 * f, 4) if f < 16 else rng('a', 244 + 4 * (f - 16), 4)


def cost(ins):
    op = ins.split()[0]
    if op.startswith('v_exp') or op.startswith('v_rcp'): return 2
    return 1
def is_mem(ins):
    return ins.startswith('ds_') or ins.startswith('buffer_')
def is_salu(ins):
    return ins.startswith('s_')

def weave(a, mfmas, fill, cap=6):
    q = list(fill)
    for g, m in enumerate(mfmas):
        a(m)
        c = cap
        first = True
        prev_valu = False
        while q:
            it = q[0]
            if isinstance(it, tuple):
                if it[1] > g: break
                q.pop(0); continue
            k = cost(it)
            if is_salu(it) and first: k = 0
            if is_mem(it) and prev_valu: break
            if k > c: break
            a(q.pop(0)); c -= k; first = False
            prev_valu = prev_valu or it.startswith('v_')
    for it in q:
        if not isinstance(it, tuple): a(it)

def half_softmax_ops(sbuf, tile):
    S = vS[sbuf]; L = vL[tile]
    o = [f'v_exp_f32 v{S+i}, v{S+i}' for i in range(8)]
    o += [f'v_add_f32 v{L}, v{L}, v{S+i}' for i in range(8)]
    o += [f'v_cvt_pk_bf16_f32 v{S+j}, v{S+2*j}, v{S+2*j+1}' for j in range(4)]
    return o

LO = f32bits(2.0 ** -90)
HI = f32bits(2.0 ** 90)

def lsum_ops(tile, r, tag):
    L = vL[tile]
    return [f'v_mov_b32 v{r}, v{L}', 's_nop 1', f'v_permlane32_swap_b32 v{L}, v{r}', 's_nop 0',
            f'v_add_f32 v{r}, v{L}, v{r}',
            f'v_med3_f32 v{r+1}, v{r}, s58, v{vHI}',
            f'v_cmp_neq_f32 vcc, v{r+1}, v{r}',
            f's_cbranch_vccnz L_redo_{tag}', f'L_redone_{tag}:',
            f'v_rcp_f32 v{r}, v{r}']
vHI = 9

def redo(a, tile, r, tag):
    k, b = rO[tile]
    L = vL[tile]
    X = aX[tile]
    S = vS[2]; M = vS[3]
    sd = rng('v', S, 16)
    a.label(f'L_redo_{tag}')
    a('s_waitcnt vmcnt(0) lgkmcnt(0)')
    a('s_nop 15')
    a('v_mov_b32 v4, 0xff800000')
    a('s_mov_b32 s55, 0')
    def kload():
        a('s_add_u32 s57, s55, 4096')
        for s in range(6):
            a(f'buffer_load_dwordx4 {rng("a", aK+4*s, 4)}, v{vDMA}, s[24:27], s{55 if s < 4 else 57} offen offset:{1024*(s%4)}')
    def vload(n):
        a('s_add_u32 s57, s55, 6144')
        a('s_add_u32 s59, s55, 10240')
        for f in range(n):
            a(f'buffer_load_dwordx4 {rng("a", aV+4*f, 4)}, v{vDMA}, s[24:27], s{57 if f < 4 else 59} offen offset:{1024*(f%4)}')
    def qk(c):
        for s in range(6):
            a(f'v_mfma_f32_32x32x16_bf16 {sd}, {rng("a", aK+4*s, 4)}, {rng("a", X+4*s, 4)}, {c if s == 0 else sd}')
        a('s_nop 15')
    def mx(n):
        for i in range(0, n, 2):
            a(f'v_max3_f32 v4, v4, v{S+i}, v{S+i+1}')
    a.label(f'L_redo1_{tag}')
    kload(); a('s_waitcnt vmcnt(0)'); qk('0')
    a(f's_cmp_eq_u32 s55, {24*12288}')
    a(f's_cbranch_scc1 L_redo1e_{tag}')
    mx(16)
    a('s_add_u32 s55, s55, 12288')
    a(f's_branch L_redo1_{tag}')
    a.label(f'L_redo1e_{tag}')
    mx(8)
    a('v_mov_b32 v5, v4')
    a('s_nop 1')
    a('v_permlane32_swap_b32 v4, v5')
    a('s_nop 0')
    a('v_max_f32 v4, v4, v5')
    for i in range(16):
        a(f'v_sub_f32 v{M+i}, 0, v4')
    for i in range(48):
        a(f'v_mov_b32 v{b+i}, 0')
    a(f'v_mov_b32 v{L}, 0')
    a('s_mov_b32 s55, 0')
    def sm(n):
        for i in range(n): a(f'v_exp_f32 v{S+i}, v{S+i}')
        a('s_nop 0')
        for i in range(n): a(f'v_add_f32 v{L}, v{L}, v{S+i}')
        for p in range(n // 2):
            t, j = divmod(p, 4)
            a(f'v_cvt_pk_bf16_f32 v{S+8*t+j}, v{S+2*p}, v{S+2*p+1}')
        a('s_nop 1')
        for t in range(n // 8):
            for ct in range(3):
                a(pv_mfma(tile, 2, t, ct))
    a.label(f'L_redo2_{tag}')
    kload(); vload(6); a('s_waitcnt vmcnt(0)'); qk(rng('v', M, 16))
    a(f's_cmp_eq_u32 s55, {24*12288}')
    a(f's_cbranch_scc1 L_redo2e_{tag}')
    sm(16)
    a('s_add_u32 s55, s55, 12288')
    a(f's_branch L_redo2_{tag}')
    a.label(f'L_redo2e_{tag}')
    sm(8)
    a(f'v_mov_b32 v{r}, v{L}')
    a('s_nop 1')
    a(f'v_permlane32_swap_b32 v{L}, v{r}')
    a('s_nop 0')
    a(f'v_add_f32 v{r}, v{L}, v{r}')
    a('s_waitcnt lgkmcnt(0)')
    a('s_nop 15')
    a(f's_branch L_redone_{tag}')

def cvt_ops(tile, P):
    b = rO[tile][1]
    return [f'v_cvt_pk_bf16_f32 v{P+j}, v{b+2*j}, v{b+2*j+1}' for j in range(24)]

def proj_mfmas(tile, P):
    b = rO[tile][1]
    m = []
    for cot in range(3):
        d = rng('v', b + 16 * cot, 16)
        for s in range(6):
            m.append(f'v_mfma_f32_32x32x16_bf16 {d}, {wvo_reg(6*cot+s)}, {rng("v", P+4*s, 4)}, {"0" if s == 0 else d}')
    return m

def fin_ops(tile, cot, r, pk=False):
    o = rO[tile][1] + 16 * cot
    out = []
    for j in range(8):
        if pk:
            out.append(f'v_pk_mul_f32 v[{o+2*j}:{o+2*j+1}], v[{o+2*j}:{o+2*j+1}], v[{r}:{r+1}]')
        else:
            out.append(f'v_mul_f32 v{o+2*j}, v{r}, v{o+2*j}')
            out.append(f'v_mul_f32 v{o+2*j+1}, v{r}, v{o+2*j+1}')
        if not pk:
            out.append(f'v_cvt_pk_bf16_f32 v{o+j}, v{o+2*j}, v{o+2*j+1}')
    if pk:
        out += [f'v_cvt_pk_bf16_f32 v{o+j}, v{o+2*j}, v{o+2*j+1}' for j in range(8)]
    out += [f'ds_write_b64 v{vSW}, v[{o+2*i}:{o+2*i+1}] offset:{64*cot+16*i}' for i in range(4)]
    return out

def store_ops(R, soff, s2):
    o = ['s_waitcnt lgkmcnt(0)']
    o += [f'ds_read_b128 v[{R+4*j}:{R+4*j+3}], v{vRB[j%3]} offset:{(j//3)*16*208}' for j in range(6)]
    o += [f's_add_u32 s{s2}, s{soff}, 4096']
    return o
def store_ops2(R, soff, s2, waits=True):
    o = []
    for j in range(6):
        if waits: o.append(f's_waitcnt lgkmcnt({5-j})')
        o.append(f'buffer_store_dwordx4 v[{R+4*j}:{R+4*j+3}], v{vDMA}, s[20:23], s{soff if j < 4 else s2} offen offset:{1024*(j%4)} {OPT.get("osc", "nt")}')
    return o

def probe(a, where):
    if OPT.get('probe') != where: return
    lab = f'L_probe{len(a.lines)}'
    a.label(lab)
    a('s_memrealtime s[98:99]')
    a('s_waitcnt lgkmcnt(0)')
    a('s_sub_u32 s98, s98, s100')
    a(f's_cmp_lt_u32 s98, {OPT["D"]}')
    a(f's_cbranch_scc1 {lab}')

def gen_consumer(a):
    st = OPT['stsc']
    a(f'''
    s_sub_u32 s3, s2, {NSP}
    v_lshlrev_b32 v{vDMA}, 4, v1
    s_lshr_b32 s55, s3, 3
    s_and_b32 s56, s3, 7
    s_mul_i32 s{sXB}, s55, 344064
    s_mul_i32 s57, s56, 6144
    s_mov_b32 s{sXS}, 43008
    s_cmp_eq_u32 s56, 7
    s_cselect_b32 s57, {7*43008}, s57
    s_cselect_b32 s{sXS}, 6144, s{sXS}
    s_add_u32 s{sXB}, s{sXB}, s57
    s_mul_i32 s{sU}, s55, 7
    s_add_u32 s{sU}, s{sU}, s56
    s_mul_i32 s{sW12}, s{sW}, 12288
    v_mov_b32 v{vZ}, 0
    v_mov_b32 v2, {NC_LDS}
    s_mov_b32 s{sSP}, 0
    s_cmp_eq_u32 s{sW}, 3
    s_cbranch_scc1 L_x_w3
    s_mul_i32 s57, s{sW}, 3
    s_mul_i32 s58, s57, 6144
    s_mul_i32 s57, s57, s{sXS}
    s_add_u32 s57, s57, s{sXB}
    s_add_u32 s58, s58, {XST}
    s_mov_b32 m0, s58
    s_add_u32 s59, s57, 4096
    ''')
    for t in range(3):
        for p in range(4):
            a(f'buffer_load_dwordx4 v{vDMA}, s[16:19], s57 offen offset:{1024*p} {OPT.get("xsc", "nt")} lds')
        a(f's_add_u32 m0, s58, {6144*t + 4096}')
        a(f's_add_u32 s57, s57, s{sXS}')
        for p in range(2):
            a(f'buffer_load_dwordx4 v{vDMA}, s[16:19], s59 offen offset:{1024*p} {OPT.get("xsc", "nt")} lds')
        if t < 2:
            a(f's_add_u32 m0, s58, {6144*(t+1)}')
            a(f's_add_u32 s59, s59, s{sXS}')
        if t == 1:
            a(f's_cmp_eq_u32 s{sW}, 2')
            a('s_cbranch_scc1 L_x_done')
    a('s_branch L_x_done')
    a.label('L_x_w3')
    a(f'ds_write_b32 v2, v{vZ}')
    a(f'ds_write_b32 v2, v{vZ} offset:4')
    a(f'ds_write_b32 v2, v{vZ} offset:8')
    a('s_waitcnt lgkmcnt(0)')
    a.label('L_x_done')
    a('s_barrier')
    a(f'''
    v_and_b32 v3, 31, v1
    v_lshrrev_b32 v4, 5, v1
    v_mul_u32_u24 v{vXO}, 192, v3
    v_lshl_add_u32 v{vXO}, v4, 4, v{vXO}
    s_mul_i32 s{sXo}, s{sW}, s{sXS}
    s_add_u32 s{sXo}, s{sXo}, s{sXB}
    s_lshl_b32 s57, s{sXS}, 2
    s_add_u32 s{sXb}, s{sXo}, s57
    s_mov_b32 s20, s12
    s_mov_b32 s21, s13
    s_mov_b32 s22, {X_BYTES}
    s_mov_b32 s23, 0x20000
    s_mov_b32 s{sCNT}, 0
    s_add_u32 s{sT}, s{sW12}, {2*BUF}
    s_add_u32 s{sTE}, s{sW12}, {BUF}
    s_add_u32 s{sG[0]}, s{sW12}, {BUF}
    s_add_u32 s{sG[1]}, s{sW12}, {BUF+4096}
    s_add_u32 s{sG[2]}, s{sW12}, {BUF+8192}
    s_mov_b32 s{sDn}, {BUF}
    s_mov_b32 s{sDp}, {(-2*BUF) & 0xffffffff}
    s_lshl_b32 s{sFM}, s{sW}, 10
    s_add_u32 s{sFM}, s{sFM}, {FLAG_OFF + 192*128}
    ''')
    a.label('L_setup')
    if OPT.get('warm', 1):
        a(f'buffer_load_dword a240, v{vZ}, s[20:23], s{sXo} offen')
        a(f'buffer_load_dword a241, v{vZ}, s[20:23], s{sXb} offen')
    for i in range(4):
        a(f's_add_u32 s60, s{sW}, {1+i}')
        a('s_and_b32 s60, s60, 3')
        a('s_mul_i32 s60, s60, 12288')
        if i == 0:
            a(f's_mov_b32 s{sK0}, s60')
        if i == 3:
            a(f's_add_u32 s60, s60, {2*BUF}')
        a(f'v_add_u32 v{vLB[i]}, s60, v{vDMA}')
    a(f'''
    s_and_b32 s57, s{sW}, 1
    s_mul_i32 s57, s57, {OST}
    s_mov_b32 s58, {3*BUF}
    s_cmp_lt_u32 s{sW}, 2
    s_cselect_b32 s58, 30720, s58
    s_add_u32 s57, s57, s58
    v_mul_u32_u24 v{vSW}, 208, v3
    v_lshl_add_u32 v{vSW}, v4, 3, v{vSW}
    v_add_u32 v{vSW}, s57, v{vSW}
    ''')
    for j in range(3):
        a(f'v_add_u32 v5, {64*j}, v1')
        a('v_mul_u32_u24 v6, 171, v5')
        a('v_lshrrev_b32 v6, 11, v6')
        a('v_add_u32 v5, v5, v6')
        a(f'v_lshlrev_b32 v5, 4, v5')
        a(f'v_add_u32 v{vRB[j]}, s57, v5')
    a(f'''
    v_lshrrev_b32 v9, 4, v1
    v_and_b32 v10, 15, v1
    v_lshrrev_b32 v6, 2, v10
    v_lshl_add_u32 v6, v9, 3, v6
    v_mul_u32_u24 v5, 192, v6
    v_and_b32 v8, 3, v1
    v_lshl_add_u32 v5, v8, 3, v5
    s_lshl_b32 s57, s{sW}, 6
    s_add_u32 s57, s57, {XST}
    v_add_u32 v5, s57, v5
    v_cmp_eq_u32 vcc, v9, v10
    v_mov_b32 v6, 0x3f803f80
    v_lshlrev_b32 v8, 4, v8
    v_cndmask_b32 v{vS[3]}, 0, v6, vcc
    v_cndmask_b32 v{vS[3]+1}, 0, v6, vcc
    v_cndmask_b32 v{vS[3]+2}, 0, v6, vcc
    v_cndmask_b32 v{vS[3]+3}, 0, v6, vcc
    v_lshl_add_u32 v8, v4, 6, v8
    v_add_u32 v8, {LK_LDS}, v8
    v_and_b32 v3, 1, v9
    v_lshl_add_u32 v6, v3, 5, v10
    v_lshlrev_b32 v6, 4, v6
    v_lshrrev_b32 v7, 1, v9
    v_lshl_add_u32 v6, v7, 3, v6
    v_lshlrev_b32 v29, 4, v10
    v_lshl_add_u32 v29, v3, 6, v29
    v_lshl_add_u32 v29, v7, 3, v29
    s_lshl_b32 s57, s{sW}, 8
    s_add_u32 s57, s57, {LK_LDS}
    v_add_u32 v29, s57, v29
    v_lshlrev_b32 v7, 4, v10
    s_lshr_b32 s57, s{sU}, 3
    s_mul_i32 s57, s57, 12288
    s_and_b32 s58, s{sU}, 7
    s_lshl_b32 s59, s58, 6
    s_add_u32 s59, s59, s57
    s_lshl_b32 s60, s{sW}, 11
    s_add_u32 s59, s59, s60
    s_lshr_b32 s58, s58, 2
    s_mul_i32 s58, s58, 3072
    s_add_u32 s57, s57, s58
    s_add_u32 s57, s57, 6144
    s_and_b32 s58, s{sU}, 1
    s_lshl_b32 s58, s58, 9
    s_add_u32 s57, s57, s58
    s_and_b32 s58, s{sU}, 2
    s_lshl_b32 s58, s58, 2
    s_add_u32 s57, s57, s58
    s_lshl_b32 s60, s{sW}, 10
    s_add_u32 s57, s57, s60
    s_mul_i32 s58, s{sW}, 6144
    s_add_u32 s58, s58, {XST}
    v_add_u32 v30, s58, v{vXO}
    v_add_u32 v31, s58, v{vDMA}
    v_and_b32 v{vFO}, 7, v1
    v_lshlrev_b32 v{vFO}, 7, v{vFO}
    s_sub_u32 s{sFO}, s{sFM}, {192*128}
    v_mov_b32 v3, 1
    ''')
    def zero_o():
        for t in ('own', 'B0'):
            for i in range(48):
                a(f'v_mov_b32 v{rO[t][1]+i}, 0')
    for t in vL:
        a(f'v_mov_b32 v{vL[t]}, 0')
    def xfrags(n):
        for s in range(6):
            a(f'ds_read_b128 {rng("a", aX["B1"]+4*s, 4)}, v30 offset:{32*s}')
        if n > 1:
            for s in range(6):
                a(f'ds_read_b128 {rng("a", aX["B2"]+4*s, 4)}, v30 offset:{4*6144+32*s}')
    a(f's_cmp_eq_u32 s{sW}, 3')
    a('s_cbranch_scc1 L_w3_b2')
    zero_o()
    a(f'buffer_load_dwordx2 v[{vF}:{vF+1}], v{vZ}, s[48:51], 0 offen {OPT["ldsc"]}')
    stamp(a, 2)
    a(f's_waitcnt vmcnt({3 if OPT.get("warm", 1) else 1})')
    a('s_mov_b64 exec, 1')
    a('ds_add_u32 v2, v3')
    a('s_mov_b64 exec, -1')
    a.label('L_xw')
    a(f'ds_read_b32 v4, v2')
    a('s_waitcnt lgkmcnt(0)')
    a('v_cmp_ne_u32 vcc, 3, v4')
    a('s_cbranch_vccnz L_xw')
    stamp(a, 3)
    F = vM['own']
    def trr(row):
        for c in range(2):
            for half in range(2):
                d = F + (row * 2 + c) * 4 + 2 * half
                a(f'ds_read_b64_tr_b16 v[{d}:{d+1}], v5 offset:{row*6144 + half*768 + c*32}')
    IND = rng('v', vS[3], 4)
    D = vS[0]
    for row in range(3): trr(row)
    for row in range(8):
        nahead = min(2, 7 - row) if row + 3 > 7 else 2
        a(f's_waitcnt lgkmcnt({4*min(2, 7-row)})')
        for c in range(2):
            f = rng('v', F + (row * 2 + c) * 4, 4)
            d1 = rng('v', D + 8 * c, 4); d2 = rng('v', D + 8 * c + 4, 4)
            a(f'v_mfma_f32_16x16x32_bf16 {d1}, {f}, {IND}, {"0" if row == 0 else d1}')
            a(f'v_mfma_f32_16x16x32_bf16 {d2}, {IND}, {f}, {"0" if row == 0 else d2}')
        if row + 3 < 8: trr(row + 3)
    a('s_mov_b32 s60, 0x3c800000')
    a('v_cmp_gt_u32 vcc, 4, v10')
    xfrags(2)
    for r in range(16):
        a(f'v_mul_f32 v{D+r}, s60, v{D+r}')
    for r in range(8):
        a(f'v_cvt_pk_bf16_f32 v{D+16+r}, v{D+2*r}, v{D+2*r+1}')
    a('s_cmp_eq_u32 s56, 7')
    a('s_mov_b64 exec, vcc')
    a('s_cbranch_scc1 L_nostore')
    for c in range(2):
        a(f'buffer_store_dwordx2 v[{D+16+4*c}:{D+17+4*c}], v6, s[24:27], s59 offen offset:{1024*c} {st}')
    a('s_mov_b64 exec, 0xffff')
    for c in range(2):
        a(f'buffer_store_dwordx2 v[{D+18+4*c}:{D+19+4*c}], v7, s[24:27], s57 offen offset:{256*c} {st}')
    a('s_mov_b64 exec, vcc')
    a.label('L_nostore')
    for c in range(2):
        a(f'ds_write_b64 v29, v[{D+16+4*c}:{D+17+4*c}] offset:{128*c}')
    a('s_mov_b64 exec, -1')
    stamp(a, 4)
    a('s_cmp_eq_u32 s56, 7')
    a('s_cbranch_scc1 L_nw0')
    a('s_waitcnt vmcnt(4)')
    a('s_branch L_nw1')
    a.label('L_nw0')
    a('s_waitcnt vmcnt(0)')
    a.label('L_nw1')
    a(f'v_cmp_eq_u32 vcc, 0, v{vF+1}')
    a('s_cbranch_vccz L_nonce_ok')
    nonce_spin(a, 'L_nonce')
    a(f'v_readfirstlane_b32 s{sN}, v{vF}')
    a(f'v_readfirstlane_b32 s{sN+1}, v{vF+1}')
    def g0_dma():
        for q in range(3):
            a(f's_add_u32 s60, s{sW12}, {q*4096}')
            a('s_mov_b32 m0, s60')
            a('s_nop 0')
            for p in range(4):
                a(f'buffer_load_dwordx4 v{vDMA}, s[24:27], s60 offen offset:{1024*p} lds')
        a(f's_add_u32 s{sFO}, s{sFO}, 4096')
        a(flag_load())
    def checkpoint(k):
        a('s_cmp_eq_u32 s55, 1')
        a(f's_cbranch_scc1 L_cp{k}_{"n" if k == 2 else "e"}')
        a('s_waitcnt vmcnt(0)')
        a(flag_cmp())
        a(f's_cbranch_vccnz L_cp{k}_n')
        g0_dma()
        a('s_mov_b32 s55, 1')
        a(f's_branch L_cp{k}_e')
        a.label(f'L_cp{k}_n')
        a(flag_load())
        a.label(f'L_cp{k}_e')
    a(f'''
    s_lshl_b32 s60, s{sU}, 7
    s_add_u32 s60, s60, {FLAG_OFF}
    s_waitcnt vmcnt(0) lgkmcnt(0)
    s_mov_b64 exec, 1
    ds_add_rtn_u32 v3, v2, v3 offset:4
    s_waitcnt lgkmcnt(0)
    v_cmp_eq_u32 vcc, 2, v3
    s_cmp_eq_u32 s56, 7
    s_cbranch_scc1 L_noflag
    s_cbranch_vccz L_noflag
    buffer_store_dwordx2 v[{vF}:{vF+1}], v{vZ}, s[24:27], s60 offen {st}
    ''')
    a.label('L_noflag')
    a('s_mov_b64 exec, -1')
    a('s_branch L_pw0')
    a.label('L_w3_b2')
    zero_o()
    for i in range(96):
        a(f'v_accvgpr_write_b32 a{i}, 0')
    stamp(a, 2)
    a('v_min_u32 v4, 8, v1')
    a('v_lshlrev_b32 v4, 7, v4')
    a(f's_mov_b32 s57, {FLAG_OFF + 224*128}')
    a.label('L_wq')
    a(f'buffer_load_dwordx2 v[6:7], v{vZ}, s[48:51], 0 offen {OPT["ldsc"]}')
    a(f'buffer_load_dwordx2 v[{vF}:{vF+1}], v4, s[24:27], s57 offen {OPT["ldsc"]}')
    a('s_waitcnt vmcnt(0)')
    a('v_cmp_eq_u32 s[58:59], 0, v7')
    a(f'v_cmp_ne_u64 vcc, v[6:7], v[{vF}:{vF+1}]')
    a('s_or_b64 vcc, vcc, s[58:59]')
    spin_tail(a, 'L_wq')
    a(f'v_readfirstlane_b32 s{sN}, v6')
    a(f'v_readfirstlane_b32 s{sN+1}, v7')
    stamp(a, 3)
    a(f's_mov_b32 s57, {WQK_OFF}')
    a(f's_mov_b32 s58, {WQ_LDS}')
    for q in range(5):
        a('s_mov_b32 m0, s58')
        a('s_add_u32 s58, s58, 4096')
        for p in range(4 if q < 4 else 2):
            a(f'buffer_load_dwordx4 v{vDMA}, s[24:27], s57 offen offset:{1024*p} lds')
        a('s_add_u32 s57, s57, 4096')
    stamp(a, 4, True)
    a(f'v_add_u32 v31, {4*6144}, v31')
    a('s_waitcnt vmcnt(0)')
    probe(a, 'b2')
    a('ds_write_b32 v2, v3 offset:8')
    a.label('L_pw0')
    a('s_mov_b32 s55, 0')
    a(flag_load())
    a.label('L_pw')
    a('s_mov_b32 s57, 0')
    a.label('L_pw1')
    a('ds_read2_b32 v[4:5], v2 offset0:1 offset1:2')
    a('s_waitcnt lgkmcnt(0)')
    a('v_add_u32 v4, v4, v5')
    a('v_cmp_ne_u32 vcc, 4, v4')
    a('s_cbranch_vccz L_q')
    a('s_add_u32 s57, s57, 1')
    a(f's_cmp_lt_u32 s57, {OPT.get("npoll", 6)}')
    a('s_cbranch_scc1 L_pw1')
    checkpoint(0)
    a('s_branch L_pw')
    a.label('L_q')
    stamp(a, 5)
    a(f's_cmp_lg_u32 s{sW}, 3')
    a('s_cbranch_scc1 L_q2')
    xfrags(1)
    a.label('L_q2')
    a(f'v_add_u32 v4, {WQ_LDS}, v{vDMA}')
    for f in range(18):
        a(f'ds_read_b128 {wvo_reg(f)}, v4 offset:{1024*f}')
    for s in range(6):
        a(f'ds_read_b128 {rng("a", aV+4*s, 4)}, v8 offset:{128*s}')
    blocks = [(ti, ct) for ti in range(2) for ct in range(3)]
    def qfin(n):
        ti, ct = blocks[n]
        S = vS[n % 4]
        X = aX['own' if ti == 0 else 'B0'] + 8 * ct
        out = []
        for j in range(8):
            out.append(f'v_cvt_pk_bf16_f32 v{S+j}, v{S+2*j}, v{S+2*j+1}')
        for j in range(8):
            out.append(f'v_accvgpr_write_b32 a{X+j}, v{S+j}')
        if ti == 1:
            for k in range(2):
                out.append(f'ds_write_b128 v31, v[{S+4*k}:{S+4*k+3}] offset:{(2*ct+k)*1024}')
        return out
    def blk_mf(n):
        ti, ct = blocks[n]
        d = rng('v', vS[n % 4], 16)
        X = aX['B1' if ti == 0 else 'B2']
        return [f'v_mfma_f32_32x32x16_bf16 {d}, {wvo_reg(6*ct+s)}, {rng("a", X+4*s, 4)}, {"0" if s == 0 else d}' for s in range(6)]
    def lqk(t, sb):
        d = rng('v', vS[sb], 16)
        return [f'v_mfma_f32_32x32x16_bf16 {d}, {rng("a", aV+4*s, 4)}, {rng("a", aX[t]+4*s, 4)}, {"0" if s == 0 else d}' for s in range(6)]
    def mops(t, sb):
        S = vS[sb]
        return [f'v_max3_f32 v5, v{S}, v{S+1}, v{S+2}', f'v_max_f32 v5, v5, v{S+3}'] + [f'v_sub_f32 v{vM[t]+i}, 0, v5' for i in range(16)]
    m0_ = blk_mf(0); m1_ = blk_mf(1); m2_ = blk_mf(2)
    m0_[0] = 's_waitcnt lgkmcnt(15)\n' + m0_[0]
    m1_[0] = 's_waitcnt lgkmcnt(12)\n' + m1_[0]
    m2_[0] = 's_waitcnt lgkmcnt(6)\n' + m2_[0]
    weave(a, m0_ + m1_ + m2_, [('at', 8)] + qfin(0) + [('at', 14)] + qfin(1))
    checkpoint(1)
    l0 = lqk('own', 2)
    l0[0] = 's_waitcnt lgkmcnt(4)\n' + l0[0]
    weave(a, blk_mf(3) + blk_mf(4) + blk_mf(5) + l0,
          [('at', 2)] + qfin(2) + [('at', 8)] + qfin(3) + [('at', 14)] + qfin(4) + [('at', 20)] + qfin(5))
    stamp(a, 6)
    checkpoint(2)
    a(f's_lshl_b32 s60, s{sW}, 10')
    a(f's_add_u32 s60, s60, {MX_LDS}')
    a(f'v_add_u32 v3, s60, v{vDMA}')
    weave(a, lqk('B0', 3), [('at', 2)] + mops('own', 2) + [f'v_add_u32 v2, {XST}, v{vDMA}', f'v_mov_b32 v{vHI}, 0x{HI:08x}'])
    a('s_cmp_eq_u32 s55, 1')
    a('s_cbranch_scc1 L_g0_done')
    a('s_waitcnt vmcnt(0)')
    a(flag_cmp())
    a('s_cbranch_vccz L_w0_ok')
    spin(a, 'L_w0')
    g0_dma()
    a.label('L_g0_done')
    stamp(a, 7)
    for i in range(24):
        a(f'v_accvgpr_write_b32 a{aV+i}, 0')
    for x in mops('B0', 3): a(x)
    a(f'ds_write_b128 v3, {rng("v", vM["B0"], 4)}')
    for i in range(4):
        a(f'v_mov_b32 v{vS[3]+i}, 0')
        a(f'v_mov_b32 v{vS[3]+8+i}, 0')
    a('s_waitcnt vmcnt(0) lgkmcnt(0)')
    probe(a, 'b3')
    a('s_barrier')
    stamp(a, 8)
    for s in range(6):
        a(kread(0, s))
    a(flag_cmp())
    a(f's_cmp_lg_u32 s{sW}, 3')
    a('s_cbranch_scc1 L_owner')

    def first_qk_group1(tag, extra, nwait):
        a(f's_cbranch_vccz L_w1{tag}_ok')
        spin(a, f'L_w1{tag}')
        a(f's_mov_b32 m0, s{sTE}')
        a(f's_waitcnt lgkmcnt({nwait})')
        fill = []
        for q in range(3):
            fill += [('at', 2 * q), dma(q, 0), dma(q, 1)] + extra[8*q:8*q+4]
            fill += [('at', 2 * q + 1), dma(q, 2), dma(q, 3)] + extra[8*q+4:8*q+8]
            fill += [f's_add_u32 m0, s{sTE}, {(q+1)*4096}', f's_add_u32 s{sG[q]}, s{sG[q]}, {BUF}']
        weave(a, [qk_mfma('own', 0, s) for s in range(6)], fill, cap=8)
        a(f's_add_u32 s{sFO}, s{sFO}, 4096')
        a('s_waitcnt lgkmcnt(0)')
        a('s_nop 3')
        stamp(a, 11)
        stamp(a, 12, True)
        if OPT['stamps']: a('s_waitcnt lgkmcnt(0)')

    vhalf = [f'ds_read_b128 {rng("a", aV+4*ct, 4)}, v{vDMA} offset:{6144+1024*ct}' for ct in range(3)]
    wv = [f'ds_read_b128 {wvo_reg(f)}, v{vDMA} offset:{WVO_LDS + 1024*f}' for f in range(18)]
    PA = vS[0]
    PB = vS[2]

    ex = []
    for e, t in enumerate(('B0', 'B1', 'B2')):
        ex += [f'ds_read_b128 {rng("a", aX[t]+4*s, 4)}, v2 offset:{e*6144 + 1024*s}' for s in range(6)]
        ex += [f'ds_read_b128 {rng("v", vM[t]+4*k, 4)}, v2 offset:{24576 + 1024*e}' for k in range(4)]
    for x in ex[:6]: a(x)
    first_qk_group1('h', ex[6:], 6)
    gen_loop(a, True)
    stamp(a, 13); stamp(a, 14, True)
    a(f'v_add_u32 v5, {MERGE0}, v{vDMA}')
    a('v_lshlrev_b32 v2, 2, v1')
    a(f'v_add_u32 v2, {MERGE0}, v2')
    a(f's_mov_b32 s58, 0x{LO:08x}')
    a('s_waitcnt lgkmcnt(0)')
    wr = []
    for e, t in enumerate(('B0', 'B1', 'B2')):
        k, b = rO[t]
        wr += [f'ds_write_b128 v5, {rng(k, b+4*j, 4)} offset:{e*MERGE + 1024*j}' for j in range(12)]
        wr += [f'ds_write_b32 v2, v{vL[t]} offset:{e*MERGE + 12288}']
    mf = [pv_mfma('own', 3, t, ct) for t in range(2) for ct in range(3)]
    fill = []
    for g in range(6):
        fill.append(('at', g))
        if g < 3: fill.append(vhalf[g])
        fill += wr[5*g:5*g+5]
    weave(a, mf, fill)
    if OPT.get('epi'): stamp(a, 2)
    for x in wr[30:]: a(x)
    for x in half_softmax_ops(0, 'own'): a(x)
    if OPT.get('epi'): stamp(a, 3)
    a('s_waitcnt lgkmcnt(0)')
    if OPT.get('epi'): stamp(a, 4)
    probe(a, 'mg')
    a('s_barrier')
    if OPT.get('epi'): stamp(a, 5)
    weave(a, [pv_mfma('own', 0, 0, ct) for ct in range(3)], wv)
    for x in lsum_ops('own', 2, 'h'): a(x)
    if OPT.get('epi'): stamp(a, 6)
    cv = cvt_ops('own', PA)
    a('s_nop 1')
    a('v_mov_b32 v3, v2')
    for x in cv[:8]: a(x)
    a('s_waitcnt lgkmcnt(0)')
    if OPT.get('epi'): stamp(a, 7)
    weave(a, proj_mfmas('own', PA), cv[8:] + [('at', 8)] + fin_ops('own', 0, 2) + [('at', 14)] + fin_ops('own', 1, 2))
    if OPT.get('epi'): stamp(a, 8)
    a('s_nop 7')
    for x in fin_ops('own', 2, 2, pk=True): a(x)
    for x in store_ops(PB, sXo, 60): a(x)
    for x in store_ops2(PB, sXo, 60): a(x)
    stamp(a, 15)
    stamp_store(a)
    a('s_endpgm')
    slow_path(a, 'h')
    redo(a, 'own', 2, 'h')
    a.label('L_owner')
    first_qk_group1('o', [], 0)
    gen_loop(a, False)
    stamp(a, 13); stamp(a, 14, True)
    a(f's_mul_i32 s60, s{sW}, {MERGE}')
    a(f's_add_u32 s60, s60, {MERGE0}')
    a(f'v_add_u32 v6, s60, v{vDMA}')
    a('v_lshlrev_b32 v7, 2, v1')
    a('v_add_u32 v7, s60, v7')
    a(f's_mov_b32 s58, 0x{LO:08x}')
    a('s_waitcnt lgkmcnt(0)')
    mf = [qk_mfma('B0', 1, s) for s in range(6)] + [pv_mfma('own', 3, t, ct) for t in range(2) for ct in range(3)]
    hs = half_softmax_ops(0, 'own')
    fill = wv[0:4] + wv[8:10] + [('at', 1)] + wv[4:8] + wv[10:12] + [('at', 2)] + wv[12:18] + [('at', 3)] + hs[:9]
    fill += [('at', 6), vhalf[0]] + hs[9:14] + [('at', 7), vhalf[1]] + hs[14:19] + [('at', 8), vhalf[2]] + hs[19:]
    hb = half_softmax_ops(1, 'B0')
    fill += [('at', 9)] + hb[:10]
    weave(a, mf, fill)
    if OPT.get('epi'): stamp(a, 2)
    a('s_waitcnt lgkmcnt(0)')
    mf = [pv_mfma('own', 0, 0, ct) for ct in range(3)] + [pv_mfma('B0', 1, 0, ct) for ct in range(3)]
    ls = lsum_ops('own', 2, 'oo')
    weave(a, mf, hb[10:] + [('at', 3)] + ls[:7])
    if OPT.get('epi'): stamp(a, 3)
    for x in ls[7:]: a(x)
    cv = cvt_ops('own', PA[0] if isinstance(PA, tuple) else PA)
    for x in cv[:8]: a(x)
    a('s_waitcnt lgkmcnt(0)')
    weave(a, proj_mfmas('own', PA), cv[8:] + [('at', 8)] + fin_ops('own', 0, 2) + [('at', 14)] + fin_ops('own', 1, 2))
    if OPT.get('epi'): stamp(a, 4)
    a('s_barrier')
    if OPT.get('epi'): stamp(a, 5)
    b = rO['B0'][1]
    TT = [PA + 4 * j for j in range(6)] + [PB + 4 * j for j in range(6)]
    a('ds_read_b32 v8, v7 offset:12288')
    for j in range(12):
        a(f'ds_read_b128 v[{TT[j]}:{TT[j]+3}], v6 offset:{1024*j}')
    a('v_mov_b32 v3, v2')
    f2 = fin_ops('own', 2, 2, pk=True)
    for x in f2[:16]: a(x)
    a('s_waitcnt lgkmcnt(12)')
    a(f'v_add_f32 v{vL["B0"]}, v{vL["B0"]}, v8')
    for j in range(12):
        t = TT[j]
        a(f's_waitcnt lgkmcnt({11-j})')
        a(f'v_pk_add_f32 v[{b+4*j}:{b+4*j+1}], v[{b+4*j}:{b+4*j+1}], v[{t}:{t+1}]')
        a(f'v_pk_add_f32 v[{b+4*j+2}:{b+4*j+3}], v[{b+4*j+2}:{b+4*j+3}], v[{t+2}:{t+3}]')
    for x in f2[16:]: a(x)
    if OPT.get('epi'): stamp(a, 6)
    for x in lsum_ops('B0', 2, 'ob'): a(x)
    cv = cvt_ops('B0', PB)
    for x in cv[:8]: a(x)
    a('v_mov_b32 v3, v2')
    if OPT.get('epi'): stamp(a, 7)
    so = store_ops(PA, sXo, 60)
    st2 = store_ops2(PA, sXo, 60, waits=False)
    f0 = fin_ops('B0', 0, 2); f1 = fin_ops('B0', 1, 2)
    fill = cv[8:] + [('at', 3)] + so
    fill += [('at', 6), 's_waitcnt lgkmcnt(0)', st2[0]] + [('at', 7), st2[1]]
    for k in range(4):
        fill += [('at', 8 + k), st2[2 + k]] + f0[5*k:5*k+5]
    fill += [('at', 12)] + f0[20:] + [('at', 14)] + f1
    weave(a, proj_mfmas('B0', PB), fill)
    if OPT.get('epi'): stamp(a, 8)
    a('s_nop 7')
    for x in fin_ops('B0', 2, 2, pk=True): a(x)
    for x in store_ops(PB, sXb, 60): a(x)
    for x in store_ops2(PB, sXb, 60): a(x)
    stamp(a, 15)
    stamp_store(a)
    a('s_endpgm')
    slow_path(a, 'o')
    redo(a, 'own', 2, 'oo')
    redo(a, 'B0', 2, 'ob')

def gen_spare(a):
    st = OPT['stsc']
    a.label('L_spare')
    a(f'''
    s_cmp_gt_u32 s{sW}, 1
    s_cbranch_scc1 L_end
    s_cmp_gt_u32 s2, 27
    s_cbranch_scc1 L_end
    v_mov_b32 v60, 1
    s_cmp_eq_u32 s2, 27
    s_cbranch_scc1 L_sp_nonce
    s_mul_i32 s28, s2, 57
    s_lshr_b32 s28, s28, 9
    s_mul_i32 s28, s28, 9
    s_sub_u32 s28, s2, s28
    s_mov_b32 s56, s8
    s_mov_b32 s57, s9
    s_mov_b32 s58, 36864
    s_mov_b32 s59, 0x20000
    v_and_b32 v3, 31, v1
    v_lshrrev_b32 v4, 5, v1
    v_mul_u32_u24 v6, 384, v3
    v_lshl_add_u32 v6, v4, 4, v6
    s_mul_i32 s29, s28, 11
    s_lshr_b32 s29, s29, 5
    s_mul_i32 s30, s29, 3
    s_sub_u32 s30, s28, s30
    s_mul_i32 s33, s30, 6
    s_lshl_b32 s34, s29, 1
    s_add_u32 s33, s33, s34
    s_lshl_b32 s33, s33, 10
    s_cmp_eq_u32 s{sW}, 1
    s_cbranch_scc1 L_sp_vo
    s_mov_b32 s52, s6
    s_mov_b32 s53, s7
    s_mov_b32 s54, 18432
    s_mov_b32 s55, 0x20000
    v_mul_u32_u24 v5, 192, v3
    v_lshl_add_u32 v5, v4, 4, v5
    s_mul_i32 s31, s29, {32*192}
    s_mul_i32 s32, s30, {32*384}
    ''')
    for s in range(6):
        a(f'buffer_load_dwordx4 v[{8+4*s}:{11+4*s}], v5, s[52:55], s31 offen offset:{32*s} {OPT.get("wsc", "")}')
        a(f'buffer_load_dwordx4 v[{32+4*s}:{35+4*s}], v6, s[56:59], s32 offen offset:{32*s} {OPT.get("wsc", "")}')
    a(f'''
    v_lshlrev_b32 v7, 4, v3
    v_lshl_add_u32 v7, v4, 3, v7
    s_add_u32 s33, s33, {WQK_OFF}
    s_mov_b32 s35, 0x{f32bits(CST):08x}
    s_add_u32 s36, s28, 224
    ''')
    for s in range(6):
        a(f's_waitcnt vmcnt({10-2*s})')
        a(f'v_mfma_f32_32x32x16_bf16 v[64:79], v[{8+4*s}:{11+4*s}], v[{32+4*s}:{35+4*s}], {"0" if s == 0 else "v[64:79]"}')
    stamp(a, 2, True)
    a('s_nop 15')
    for r in range(16):
        a(f'v_mul_f32 v{64+r}, s35, v{64+r}')
    for r in range(8):
        a(f'v_cvt_pk_bf16_f32 v{80+r}, v{64+2*r}, v{65+2*r}')
    for i in range(4):
        a(f'buffer_store_dwordx2 v[{80+2*i}:{81+2*i}], v7, s[24:27], s33 offen offset:{(i>>1)*1024 + (i&1)*512} {st}')
    a('s_branch L_sp_flag')
    a.label('L_sp_vo')
    a(f'''
    s_cmp_gt_u32 s2, 8
    s_cbranch_scc1 L_end
    s_mov_b32 s20, s10
    s_mov_b32 s21, s11
    s_mov_b32 s22, 18432
    s_mov_b32 s23, 0x20000
    v_lshlrev_b32 v7, 4, v1
    v_lshrrev_b32 v56, 2, v1
    v_and_b32 v57, 3, v1
    v_mul_u32_u24 v56, 192, v56
    v_lshl_add_u32 v56, v57, 4, v56
    s_lshl_b32 s31, s30, 6
    s_mov_b32 s34, 0
    ''')
    for p in range(6):
        a('s_mov_b32 m0, s34')
        a('s_add_u32 s34, s34, 1024')
        a('buffer_load_dwordx4 v56, s[20:23], s31 offen lds')
        a(f's_add_u32 s31, s31, {16*192}')
    a(f's_mul_i32 s32, s29, {32*384}')
    for s in range(6):
        a(f'buffer_load_dwordx4 v[{8+4*s}:{11+4*s}], v6, s[56:59], s32 offen offset:{192+32*s}')
    a(f'''
    v_bfe_u32 v56, v1, 2, 2
    v_lshl_add_u32 v56, v4, 3, v56
    v_lshlrev_b32 v56, 6, v56
    v_bfe_u32 v58, v1, 4, 1
    v_lshl_add_u32 v56, v58, 5, v56
    v_lshl_add_u32 v56, v57, 3, v56
    s_add_u32 s33, s33, {WVO_OFF}
    s_mul_i32 s36, s30, 3
    s_add_u32 s36, s36, s29
    s_add_u32 s36, s36, 200
    s_cmp_eq_u32 s30, 2
    s_cselect_b32 s34, 2, 0
    s_add_u32 s36, s36, s34
    s_waitcnt vmcnt(6)
    ''')
    for s in range(6):
        for half in range(2):
            a(f'ds_read_b64_tr_b16 v[{32+4*s+2*half}:{33+4*s+2*half}], v56 offset:{s*1024 + half*256}')
    a('s_waitcnt vmcnt(0) lgkmcnt(0)')
    for s in range(6):
        a(f'v_mfma_f32_32x32x16_bf16 v[64:79], v[{8+4*s}:{11+4*s}], v[{32+4*s}:{35+4*s}], {"0" if s == 0 else "v[64:79]"}')
    a('s_nop 15')
    for r in range(8):
        a(f'v_cvt_pk_bf16_f32 v{80+r}, v{64+2*r}, v{65+2*r}')
    for k in range(2):
        a(f'buffer_store_dwordx4 v[{80+4*k}:{83+4*k}], v7, s[24:27], s33 offen offset:{1024*k} {st}')
    a.label('L_sp_flag')
    a(f'''
    v_mov_b32 v{vZ}, 0
    s_mov_b32 s{sSP}, 0
    s_lshl_b32 s36, s36, 7
    s_add_u32 s36, s36, {FLAG_OFF}
    ''')
    stamp(a, 3, True)
    nonce_spin(a, 'L_sp_n')
    stamp(a, 4, True)
    a(f'''
    s_mov_b64 exec, 1
    buffer_store_dwordx2 v[{vF}:{vF+1}], v{vZ}, s[24:27], s36 offen {st}
    ''')
    stamp_store(a)
    a('s_endpgm')
    a.label('L_sp_nonce')
    a(f'''
    s_cmp_lg_u32 s{sW}, 0
    s_cbranch_scc1 L_end
    s_memrealtime s[28:29]
    v_mov_b32 v4, 0
    s_waitcnt lgkmcnt(0)
    s_or_b32 s29, s29, 0x40000000
    v_mov_b32 v2, s28
    v_mov_b32 v3, s29
    s_mov_b64 exec, 1
    buffer_store_dwordx2 v[2:3], v4, s[48:51], 0 offen {st}
    s_mov_b32 exec_lo, 0x{DUMMY & 0xffffffff:08x}
    s_mov_b32 exec_hi, 0
    v_lshlrev_b32 v4, 7, v1
    s_mov_b32 s30, {FLAG_OFF + 192*128}
    buffer_store_dwordx2 v[2:3], v4, s[24:27], s30 offen {st}
    s_endpgm
    ''')

def build(path):
    a = Asm()
    a.raw(f'.globl {NAME}')
    a.raw('.p2align 8')
    a.raw(f'.type {NAME},@function')
    a.label(NAME)
    a(f'''
    s_cmp_ge_u32 s2, {NSP+NCONS}
    s_cbranch_scc1 L_end
    ''')
    stamp(a, 0, True)
    stamp(a, 1)
    if OPT.get('probe'): a('s_memrealtime s[100:101]')
    a(f'''
    s_load_dwordx8 s[4:11], s[0:1], 0
    s_load_dwordx2 s[12:13], s[0:1], 32
    s_load_dwordx4 s[44:47], s[0:1], 40
    v_lshrrev_b32 v2, 6, v0
    v_and_b32 v1, 63, v0
    v_readfirstlane_b32 s{sW}, v2
    s_waitcnt lgkmcnt(0)
    s_mov_b32 s16, s4
    s_mov_b32 s17, s5
    s_mov_b32 s18, {X_BYTES}
    s_mov_b32 s19, 0x20000
    s_mov_b32 s24, s46
    s_mov_b32 s25, s47
    s_mov_b32 s26, {WS_BYTES}
    s_mov_b32 s27, 0x20000
    s_mov_b32 s48, s44
    s_mov_b32 s49, s45
    s_mov_b32 s50, 256
    s_mov_b32 s51, 0x20000
    s_cmp_lt_u32 s2, {NSP}
    s_cbranch_scc1 L_spare
    ''')
    gen_consumer(a)
    gen_spare(a)
    a.label('L_end')
    a('s_endpgm')
    out = HEADER
    out += f'; @launch grid=({NSP+NCONS},1,1) block=(256,1,1) lds={LDS_TOTAL}\n'
    out += '.amdgcn_target "amdgcn-amd-amdhsa--gfx950"\n.text\n'
    out += a.text()
    out += '.section .rodata,"a"\n.p2align 6\n'
    out += kd(NAME, 512, 256)
    open(path, 'w').write(out)

if __name__ == '__main__':
    for o in sys.argv[2:]:
        if '=' in o:
            k, v = o.split('=')
            OPT[k] = int(v) if v.isdigit() else v.replace('+', ' ')
        else:
            OPT[o] = True
    build(sys.argv[1] if len(sys.argv) > 1 else 'k9.s')
```

```python
import sys
from gen import Asm, f32bits, kd, HEADER, X_BYTES, KV_BYTES, CST
from gen2 import (vLB, vDMA, vL, vXO, vS, vM, rO, aX, aK, aV, BUF, MERGE, rng, qk_mfma, pv_mfma,
                  softmax_ops, schedule_stage, kread, vread)
import gen5
from gen5 import (DUMMY, NAME, NSP, NCONS, WVO_OFF, WQK_OFF, FLAG_OFF, WS_BYTES, OST, LDS_TOTAL, XST, WQ_LDS, WVO_LDS, MERGE0,
                  QX_LDS, MX_LDS, LK_LDS, NC_LDS, OPT, sW, sCNT, sT, sG, sDn, sDp, sTE, sTMP, sXo, sXb, sXB, sXS, sFO, sD0,
                  sK0, sFM, sSP, sU, sW12, vF, vZ, sN, vFO, vRB, vSW, stamp, stamp_store, dma, flag_load,
                  flag_cmp, spin_tail, nonce_spin, spin, gen_loop, slow_path)

def wvo_reg(f):
    return rng('v', vM['own'] + 4 * f, 4) if f < 16 else rng('a', 244 + 4 * (f - 16), 4)


def cost(ins):
    op = ins.split()[0]
    if op.startswith('v_exp') or op.startswith('v_rcp'): return 2
    return 1
def is_mem(ins):
    return ins.startswith('ds_') or ins.startswith('buffer_')
def is_salu(ins):
    return ins.startswith('s_')

def weave(a, mfmas, fill, cap=6):
    q = list(fill)
    for g, m in enumerate(mfmas):
        a(m)
        c = cap
        first = True
        prev_valu = False
        while q:
            it = q[0]
            if isinstance(it, tuple):
                if it[1] > g: break
                q.pop(0); continue
            k = cost(it)
            if is_salu(it) and first: k = 0
            if is_mem(it) and prev_valu: break
            if k > c: break
            a(q.pop(0)); c -= k; first = False
            prev_valu = prev_valu or it.startswith('v_')
    for it in q:
        if not isinstance(it, tuple): a(it)

def half_softmax_ops(sbuf, tile):
    S = vS[sbuf]; L = vL[tile]
    o = [f'v_exp_f32 v{S+i}, v{S+i}' for i in range(8)]
    o += [f'v_add_f32 v{L}, v{L}, v{S+i}' for i in range(8)]
    o += [f'v_cvt_pk_bf16_f32 v{S+j}, v{S+2*j}, v{S+2*j+1}' for j in range(4)]
    return o

LO = f32bits(2.0 ** -90)
HI = f32bits(2.0 ** 90)

def lsum_ops(tile, r, tag):
    L = vL[tile]
    return [f'v_mov_b32 v{r}, v{L}', 's_nop 1', f'v_permlane32_swap_b32 v{L}, v{r}', 's_nop 0',
            f'v_add_f32 v{r}, v{L}, v{r}',
            f'v_med3_f32 v{r+1}, v{r}, s58, v{vHI}',
            f'v_cmp_neq_f32 vcc, v{r+1}, v{r}',
            f's_cbranch_vccnz L_redo_{tag}', f'L_redone_{tag}:',
            f'v_rcp_f32 v{r}, v{r}']
vHI = 9

def redo(a, tile, r, tag):
    k, b = rO[tile]
    L = vL[tile]
    X = aX[tile]
    S = vS[2]; M = vS[3]
    sd = rng('v', S, 16)
    a.label(f'L_redo_{tag}')
    a('s_waitcnt vmcnt(0) lgkmcnt(0)')
    a('s_nop 15')
    a('v_mov_b32 v4, 0xff800000')
    a('s_mov_b32 s55, 0')
    def kload():
        a('s_add_u32 s57, s55, 4096')
        for s in range(6):
            a(f'buffer_load_dwordx4 {rng("a", aK+4*s, 4)}, v{vDMA}, s[24:27], s{55 if s < 4 else 57} offen offset:{1024*(s%4)}')
    def vload(n):
        a('s_add_u32 s57, s55, 6144')
        a('s_add_u32 s59, s55, 10240')
        for f in range(n):
            a(f'buffer_load_dwordx4 {rng("a", aV+4*f, 4)}, v{vDMA}, s[24:27], s{57 if f < 4 else 59} offen offset:{1024*(f%4)}')
    def qk(c):
        for s in range(6):
            a(f'v_mfma_f32_32x32x16_bf16 {sd}, {rng("a", aK+4*s, 4)}, {rng("a", X+4*s, 4)}, {c if s == 0 else sd}')
        a('s_nop 15')
    def mx(n):
        for i in range(0, n, 2):
            a(f'v_max3_f32 v4, v4, v{S+i}, v{S+i+1}')
    a.label(f'L_redo1_{tag}')
    kload(); a('s_waitcnt vmcnt(0)'); qk('0')
    a(f's_cmp_eq_u32 s55, {24*12288}')
    a(f's_cbranch_scc1 L_redo1e_{tag}')
    mx(16)
    a('s_add_u32 s55, s55, 12288')
    a(f's_branch L_redo1_{tag}')
    a.label(f'L_redo1e_{tag}')
    mx(8)
    a('v_mov_b32 v5, v4')
    a('s_nop 1')
    a('v_permlane32_swap_b32 v4, v5')
    a('s_nop 0')
    a('v_max_f32 v4, v4, v5')
    for i in range(16):
        a(f'v_sub_f32 v{M+i}, 0, v4')
    for i in range(48):
        a(f'v_mov_b32 v{b+i}, 0')
    a(f'v_mov_b32 v{L}, 0')
    a('s_mov_b32 s55, 0')
    def sm(n):
        for i in range(n): a(f'v_exp_f32 v{S+i}, v{S+i}')
        a('s_nop 0')
        for i in range(n): a(f'v_add_f32 v{L}, v{L}, v{S+i}')
        for p in range(n // 2):
            t, j = divmod(p, 4)
            a(f'v_cvt_pk_bf16_f32 v{S+8*t+j}, v{S+2*p}, v{S+2*p+1}')
        a('s_nop 1')
        for t in range(n // 8):
            for ct in range(3):
                a(pv_mfma(tile, 2, t, ct))
    a.label(f'L_redo2_{tag}')
    kload(); vload(6); a('s_waitcnt vmcnt(0)'); qk(rng('v', M, 16))
    a(f's_cmp_eq_u32 s55, {24*12288}')
    a(f's_cbranch_scc1 L_redo2e_{tag}')
    sm(16)
    a('s_add_u32 s55, s55, 12288')
    a(f's_branch L_redo2_{tag}')
    a.label(f'L_redo2e_{tag}')
    sm(8)
    a(f'v_mov_b32 v{r}, v{L}')
    a('s_nop 1')
    a(f'v_permlane32_swap_b32 v{L}, v{r}')
    a('s_nop 0')
    a(f'v_add_f32 v{r}, v{L}, v{r}')
    a('s_waitcnt lgkmcnt(0)')
    a('s_nop 15')
    a(f's_branch L_redone_{tag}')

def cvt_ops(tile, P):
    b = rO[tile][1]
    return [f'v_cvt_pk_bf16_f32 v{P+j}, v{b+2*j}, v{b+2*j+1}' for j in range(24)]

def proj_mfmas(tile, P):
    b = rO[tile][1]
    m = []
    for cot in range(3):
        d = rng('v', b + 16 * cot, 16)
        for s in range(6):
            m.append(f'v_mfma_f32_32x32x16_bf16 {d}, {wvo_reg(6*cot+s)}, {rng("v", P+4*s, 4)}, {"0" if s == 0 else d}')
    return m

def fin_ops(tile, cot, r, pk=False):
    o = rO[tile][1] + 16 * cot
    out = []
    for j in range(8):
        if pk:
            out.append(f'v_pk_mul_f32 v[{o+2*j}:{o+2*j+1}], v[{o+2*j}:{o+2*j+1}], v[{r}:{r+1}]')
        else:
            out.append(f'v_mul_f32 v{o+2*j}, v{r}, v{o+2*j}')
            out.append(f'v_mul_f32 v{o+2*j+1}, v{r}, v{o+2*j+1}')
        if not pk:
            out.append(f'v_cvt_pk_bf16_f32 v{o+j}, v{o+2*j}, v{o+2*j+1}')
    if pk:
        out += [f'v_cvt_pk_bf16_f32 v{o+j}, v{o+2*j}, v{o+2*j+1}' for j in range(8)]
    out += [f'ds_write_b64 v{vSW}, v[{o+2*i}:{o+2*i+1}] offset:{64*cot+16*i}' for i in range(4)]
    return out

def store_ops(R, soff, s2):
    o = ['s_waitcnt lgkmcnt(0)']
    o += [f'ds_read_b128 v[{R+4*j}:{R+4*j+3}], v{vRB[j%3]} offset:{(j//3)*16*208}' for j in range(6)]
    o += [f's_add_u32 s{s2}, s{soff}, 4096']
    return o
def store_ops2(R, soff, s2, waits=True):
    o = []
    for j in range(6):
        if waits: o.append(f's_waitcnt lgkmcnt({5-j})')
        o.append(f'buffer_store_dwordx4 v[{R+4*j}:{R+4*j+3}], v{vDMA}, s[20:23], s{soff if j < 4 else s2} offen offset:{1024*(j%4)} {OPT.get("osc", "nt")}')
    return o

def probe(a, where):
    if OPT.get('probe') != where: return
    lab = f'L_probe{len(a.lines)}'
    a.label(lab)
    a('s_memrealtime s[98:99]')
    a('s_waitcnt lgkmcnt(0)')
    a('s_sub_u32 s98, s98, s100')
    a(f's_cmp_lt_u32 s98, {OPT["D"]}')
    a(f's_cbranch_scc1 {lab}')

def code_prefetch(a, tag):
    a('s_getpc_b64 s[58:59]')
    a.label(f'L_pc_{tag}')
    a(f's_sub_u32 s58, s58, L_pc_{tag}-{NAME}')
    a('s_subb_u32 s59, s59, 0')
    a('v_lshlrev_b32 v6, 7, v1')
    for k in range(3):
        a(f'v_min_u32 v7, L_end-{NAME}, v6')
        a('v_mov_b32 v5, s59')
        a('v_add_co_u32 v4, vcc, s58, v7')
        a('v_addc_co_u32 v5, vcc, 0, v5, vcc')
        a(f'global_load_dword a{252+k}, v[4:5], off')
        if k < 2:
            a('v_add_u32 v6, 0x2000, v6')

def gen_consumer(a):
    st = OPT['stsc']
    a(f'''
    s_sub_u32 s3, s2, {NSP}
    v_lshlrev_b32 v{vDMA}, 4, v1
    s_lshr_b32 s55, s3, 3
    s_and_b32 s56, s3, 7
    s_mul_i32 s{sXB}, s55, 344064
    s_mul_i32 s57, s56, 6144
    s_mov_b32 s{sXS}, 43008
    s_cmp_eq_u32 s56, 7
    s_cselect_b32 s57, {7*43008}, s57
    s_cselect_b32 s{sXS}, 6144, s{sXS}
    s_add_u32 s{sXB}, s{sXB}, s57
    s_mul_i32 s{sU}, s55, 7
    s_add_u32 s{sU}, s{sU}, s56
    s_mul_i32 s{sW12}, s{sW}, 12288
    v_mov_b32 v{vZ}, 0
    v_mov_b32 v2, {NC_LDS}
    s_mov_b32 s{sSP}, 0
    s_cmp_eq_u32 s{sW}, 3
    s_cbranch_scc1 L_x_w3
    s_mul_i32 s57, s{sW}, 3
    s_mul_i32 s58, s57, 6144
    s_mul_i32 s57, s57, s{sXS}
    s_add_u32 s57, s57, s{sXB}
    s_add_u32 s58, s58, {XST}
    s_mov_b32 m0, s58
    s_add_u32 s59, s57, 4096
    ''')
    for t in range(3):
        for p in range(4):
            a(f'buffer_load_dwordx4 v{vDMA}, s[16:19], s57 offen offset:{1024*p} {OPT.get("xsc", "nt")} lds')
        a(f's_add_u32 m0, s58, {6144*t + 4096}')
        a(f's_add_u32 s57, s57, s{sXS}')
        for p in range(2):
            a(f'buffer_load_dwordx4 v{vDMA}, s[16:19], s59 offen offset:{1024*p} {OPT.get("xsc", "nt")} lds')
        if t < 2:
            a(f's_add_u32 m0, s58, {6144*(t+1)}')
            a(f's_add_u32 s59, s59, s{sXS}')
        if t == 1:
            a(f's_cmp_eq_u32 s{sW}, 2')
            a('s_cbranch_scc1 L_x_done')
    a('s_branch L_x_done')
    a.label('L_x_w3')
    if OPT.get('ipf', 1):
        code_prefetch(a, 'c')
    a(f'ds_write_b32 v2, v{vZ}')
    a(f'ds_write_b32 v2, v{vZ} offset:4')
    a(f'ds_write_b32 v2, v{vZ} offset:8')
    a('s_waitcnt lgkmcnt(0)')
    a.label('L_x_done')
    a('s_barrier')
    a(f'''
    v_and_b32 v3, 31, v1
    v_lshrrev_b32 v4, 5, v1
    v_mul_u32_u24 v{vXO}, 192, v3
    v_lshl_add_u32 v{vXO}, v4, 4, v{vXO}
    s_mul_i32 s{sXo}, s{sW}, s{sXS}
    s_add_u32 s{sXo}, s{sXo}, s{sXB}
    s_lshl_b32 s57, s{sXS}, 2
    s_add_u32 s{sXb}, s{sXo}, s57
    s_mov_b32 s20, s12
    s_mov_b32 s21, s13
    s_mov_b32 s22, {X_BYTES}
    s_mov_b32 s23, 0x20000
    s_mov_b32 s{sCNT}, 0
    s_add_u32 s{sT}, s{sW12}, {2*BUF}
    s_add_u32 s{sTE}, s{sW12}, {BUF}
    s_add_u32 s{sG[0]}, s{sW12}, {BUF}
    s_add_u32 s{sG[1]}, s{sW12}, {BUF+4096}
    s_add_u32 s{sG[2]}, s{sW12}, {BUF+8192}
    s_mov_b32 s{sDn}, {BUF}
    s_mov_b32 s{sDp}, {(-2*BUF) & 0xffffffff}
    s_lshl_b32 s{sFM}, s{sW}, 10
    s_add_u32 s{sFM}, s{sFM}, {FLAG_OFF + 192*128}
    ''')
    a.label('L_setup')
    if OPT.get('warm', 1):
        a(f'buffer_load_dword a240, v{vZ}, s[20:23], s{sXo} offen')
        a(f'buffer_load_dword a241, v{vZ}, s[20:23], s{sXb} offen')
    for i in range(4):
        a(f's_add_u32 s60, s{sW}, {1+i}')
        a('s_and_b32 s60, s60, 3')
        a('s_mul_i32 s60, s60, 12288')
        if i == 0:
            a(f's_mov_b32 s{sK0}, s60')
        if i == 3:
            a(f's_add_u32 s60, s60, {2*BUF}')
        a(f'v_add_u32 v{vLB[i]}, s60, v{vDMA}')
    a(f'''
    s_and_b32 s57, s{sW}, 1
    s_mul_i32 s57, s57, {OST}
    s_mov_b32 s58, {3*BUF}
    s_cmp_lt_u32 s{sW}, 2
    s_cselect_b32 s58, 30720, s58
    s_add_u32 s57, s57, s58
    v_mul_u32_u24 v{vSW}, 208, v3
    v_lshl_add_u32 v{vSW}, v4, 3, v{vSW}
    v_add_u32 v{vSW}, s57, v{vSW}
    ''')
    for j in range(3):
        a(f'v_add_u32 v5, {64*j}, v1')
        a('v_mul_u32_u24 v6, 171, v5')
        a('v_lshrrev_b32 v6, 11, v6')
        a('v_add_u32 v5, v5, v6')
        a(f'v_lshlrev_b32 v5, 4, v5')
        a(f'v_add_u32 v{vRB[j]}, s57, v5')
    a(f'''
    v_lshrrev_b32 v9, 4, v1
    v_and_b32 v10, 15, v1
    v_lshrrev_b32 v6, 2, v10
    v_lshl_add_u32 v6, v9, 3, v6
    v_mul_u32_u24 v5, 192, v6
    v_and_b32 v8, 3, v1
    v_lshl_add_u32 v5, v8, 3, v5
    s_lshl_b32 s57, s{sW}, 6
    s_add_u32 s57, s57, {XST}
    v_add_u32 v5, s57, v5
    v_cmp_eq_u32 vcc, v9, v10
    v_mov_b32 v6, 0x3f803f80
    v_lshlrev_b32 v8, 4, v8
    v_cndmask_b32 v{vS[3]}, 0, v6, vcc
    v_cndmask_b32 v{vS[3]+1}, 0, v6, vcc
    v_cndmask_b32 v{vS[3]+2}, 0, v6, vcc
    v_cndmask_b32 v{vS[3]+3}, 0, v6, vcc
    v_lshl_add_u32 v8, v4, 6, v8
    v_add_u32 v8, {LK_LDS}, v8
    v_and_b32 v3, 1, v9
    v_lshl_add_u32 v6, v3, 5, v10
    v_lshlrev_b32 v6, 4, v6
    v_lshrrev_b32 v7, 1, v9
    v_lshl_add_u32 v6, v7, 3, v6
    v_lshlrev_b32 v29, 4, v10
    v_lshl_add_u32 v29, v3, 6, v29
    v_lshl_add_u32 v29, v7, 3, v29
    s_lshl_b32 s57, s{sW}, 8
    s_add_u32 s57, s57, {LK_LDS}
    v_add_u32 v29, s57, v29
    v_lshlrev_b32 v7, 4, v10
    s_lshr_b32 s57, s{sU}, 3
    s_mul_i32 s57, s57, 12288
    s_and_b32 s58, s{sU}, 7
    s_lshl_b32 s59, s58, 6
    s_add_u32 s59, s59, s57
    s_lshl_b32 s60, s{sW}, 11
    s_add_u32 s59, s59, s60
    s_lshr_b32 s58, s58, 2
    s_mul_i32 s58, s58, 3072
    s_add_u32 s57, s57, s58
    s_add_u32 s57, s57, 6144
    s_and_b32 s58, s{sU}, 1
    s_lshl_b32 s58, s58, 9
    s_add_u32 s57, s57, s58
    s_and_b32 s58, s{sU}, 2
    s_lshl_b32 s58, s58, 2
    s_add_u32 s57, s57, s58
    s_lshl_b32 s60, s{sW}, 10
    s_add_u32 s57, s57, s60
    s_mul_i32 s58, s{sW}, 6144
    s_add_u32 s58, s58, {XST}
    v_add_u32 v30, s58, v{vXO}
    v_add_u32 v31, s58, v{vDMA}
    v_and_b32 v{vFO}, 7, v1
    v_lshlrev_b32 v{vFO}, 7, v{vFO}
    s_sub_u32 s{sFO}, s{sFM}, {192*128}
    v_mov_b32 v3, 1
    ''')
    def zero_o():
        for t in ('own', 'B0'):
            for i in range(48):
                a(f'v_mov_b32 v{rO[t][1]+i}, 0')
    for t in vL:
        a(f'v_mov_b32 v{vL[t]}, 0')
    def xfrags(n):
        for s in range(6):
            a(f'ds_read_b128 {rng("a", aX["B1"]+4*s, 4)}, v30 offset:{32*s}')
        if n > 1:
            for s in range(6):
                a(f'ds_read_b128 {rng("a", aX["B2"]+4*s, 4)}, v30 offset:{4*6144+32*s}')
    a(f's_cmp_eq_u32 s{sW}, 3')
    a('s_cbranch_scc1 L_w3_b2')
    zero_o()
    a(f'buffer_load_dwordx2 v[{vF}:{vF+1}], v{vZ}, s[48:51], 0 offen {OPT["ldsc"]}')
    stamp(a, 2)
    a(f's_waitcnt vmcnt({3 if OPT.get("warm", 1) else 1})')
    a('s_mov_b64 exec, 1')
    a('ds_add_u32 v2, v3')
    a('s_mov_b64 exec, -1')
    a.label('L_xw')
    a(f'ds_read_b32 v4, v2')
    a('s_waitcnt lgkmcnt(0)')
    a('v_cmp_ne_u32 vcc, 3, v4')
    a('s_cbranch_vccnz L_xw')
    stamp(a, 3)
    F = vM['own']
    def trr(row):
        for c in range(2):
            for half in range(2):
                d = F + (row * 2 + c) * 4 + 2 * half
                a(f'ds_read_b64_tr_b16 v[{d}:{d+1}], v5 offset:{row*6144 + half*768 + c*32}')
    IND = rng('v', vS[3], 4)
    D = vS[0]
    for row in range(3): trr(row)
    for row in range(8):
        nahead = min(2, 7 - row) if row + 3 > 7 else 2
        a(f's_waitcnt lgkmcnt({4*min(2, 7-row)})')
        for c in range(2):
            f = rng('v', F + (row * 2 + c) * 4, 4)
            d1 = rng('v', D + 8 * c, 4); d2 = rng('v', D + 8 * c + 4, 4)
            a(f'v_mfma_f32_16x16x32_bf16 {d1}, {f}, {IND}, {"0" if row == 0 else d1}')
            a(f'v_mfma_f32_16x16x32_bf16 {d2}, {IND}, {f}, {"0" if row == 0 else d2}')
        if row + 3 < 8: trr(row + 3)
    a('s_mov_b32 s60, 0x3c800000')
    a('v_cmp_gt_u32 vcc, 4, v10')
    xfrags(2)
    for r in range(16):
        a(f'v_mul_f32 v{D+r}, s60, v{D+r}')
    for r in range(8):
        a(f'v_cvt_pk_bf16_f32 v{D+16+r}, v{D+2*r}, v{D+2*r+1}')
    a('s_cmp_eq_u32 s56, 7')
    a('s_mov_b64 exec, vcc')
    a('s_cbranch_scc1 L_nostore')
    for c in range(2):
        a(f'buffer_store_dwordx2 v[{D+16+4*c}:{D+17+4*c}], v6, s[24:27], s59 offen offset:{1024*c} {st}')
    a('s_mov_b64 exec, 0xffff')
    for c in range(2):
        a(f'buffer_store_dwordx2 v[{D+18+4*c}:{D+19+4*c}], v7, s[24:27], s57 offen offset:{256*c} {st}')
    a('s_mov_b64 exec, vcc')
    a.label('L_nostore')
    for c in range(2):
        a(f'ds_write_b64 v29, v[{D+16+4*c}:{D+17+4*c}] offset:{128*c}')
    a('s_mov_b64 exec, -1')
    stamp(a, 4)
    a('s_cmp_eq_u32 s56, 7')
    a('s_cbranch_scc1 L_nw0')
    a('s_waitcnt vmcnt(4)')
    a('s_branch L_nw1')
    a.label('L_nw0')
    a('s_waitcnt vmcnt(0)')
    a.label('L_nw1')
    a(f'v_cmp_eq_u32 vcc, 0, v{vF+1}')
    a('s_cbranch_vccz L_nonce_ok')
    nonce_spin(a, 'L_nonce')
    a(f'v_readfirstlane_b32 s{sN}, v{vF}')
    a(f'v_readfirstlane_b32 s{sN+1}, v{vF+1}')
    def g0_dma():
        for q in range(3):
            a(f's_add_u32 s60, s{sW12}, {q*4096}')
            a('s_mov_b32 m0, s60')
            a('s_nop 0')
            for p in range(4):
                a(f'buffer_load_dwordx4 v{vDMA}, s[24:27], s60 offen offset:{1024*p} lds')
        a(f's_add_u32 s{sFO}, s{sFO}, 4096')
        a(flag_load())
    def checkpoint(k):
        a('s_cmp_eq_u32 s55, 1')
        a(f's_cbranch_scc1 L_cp{k}_{"n" if k == 2 else "e"}')
        a('s_waitcnt vmcnt(0)')
        a(flag_cmp())
        a(f's_cbranch_vccnz L_cp{k}_n')
        g0_dma()
        a('s_mov_b32 s55, 1')
        a(f's_branch L_cp{k}_e')
        a.label(f'L_cp{k}_n')
        a(flag_load())
        a.label(f'L_cp{k}_e')
    a(f'''
    s_lshl_b32 s60, s{sU}, 7
    s_add_u32 s60, s60, {FLAG_OFF}
    s_waitcnt vmcnt(0) lgkmcnt(0)
    s_mov_b64 exec, 1
    ds_add_rtn_u32 v3, v2, v3 offset:4
    s_waitcnt lgkmcnt(0)
    v_cmp_eq_u32 vcc, 2, v3
    s_cmp_eq_u32 s56, 7
    s_cbranch_scc1 L_noflag
    s_cbranch_vccz L_noflag
    buffer_store_dwordx2 v[{vF}:{vF+1}], v{vZ}, s[24:27], s60 offen {st}
    ''')
    a.label('L_noflag')
    a('s_mov_b64 exec, -1')
    a('s_branch L_pw0')
    a.label('L_w3_b2')
    zero_o()
    for i in range(96):
        a(f'v_accvgpr_write_b32 a{i}, 0')
    stamp(a, 2)
    a('v_min_u32 v4, 8, v1')
    a('v_lshlrev_b32 v4, 7, v4')
    a(f's_mov_b32 s57, {FLAG_OFF + 224*128}')
    a.label('L_wq')
    a(f'buffer_load_dwordx2 v[6:7], v{vZ}, s[48:51], 0 offen {OPT["ldsc"]}')
    a(f'buffer_load_dwordx2 v[{vF}:{vF+1}], v4, s[24:27], s57 offen {OPT["ldsc"]}')
    a('s_waitcnt vmcnt(0)')
    a('v_cmp_eq_u32 s[58:59], 0, v7')
    a(f'v_cmp_ne_u64 vcc, v[6:7], v[{vF}:{vF+1}]')
    a('s_or_b64 vcc, vcc, s[58:59]')
    spin_tail(a, 'L_wq')
    a(f'v_readfirstlane_b32 s{sN}, v6')
    a(f'v_readfirstlane_b32 s{sN+1}, v7')
    stamp(a, 3)
    a(f's_mov_b32 s57, {WQK_OFF}')
    a(f's_mov_b32 s58, {WQ_LDS}')
    for q in range(5):
        a('s_mov_b32 m0, s58')
        a('s_add_u32 s58, s58, 4096')
        for p in range(4 if q < 4 else 2):
            a(f'buffer_load_dwordx4 v{vDMA}, s[24:27], s57 offen offset:{1024*p} lds')
        a('s_add_u32 s57, s57, 4096')
    stamp(a, 4, True)
    a(f'v_add_u32 v31, {4*6144}, v31')
    a('s_waitcnt vmcnt(0)')
    probe(a, 'b2')
    a('ds_write_b32 v2, v3 offset:8')
    a.label('L_pw0')
    a('s_mov_b32 s55, 0')
    a(flag_load())
    a.label('L_pw')
    a('s_mov_b32 s57, 0')
    a.label('L_pw1')
    a('ds_read2_b32 v[4:5], v2 offset0:1 offset1:2')
    a('s_waitcnt lgkmcnt(0)')
    a('v_add_u32 v4, v4, v5')
    a('v_cmp_ne_u32 vcc, 4, v4')
    a('s_cbranch_vccz L_q')
    a('s_add_u32 s57, s57, 1')
    a(f's_cmp_lt_u32 s57, {OPT.get("npoll", 6)}')
    a('s_cbranch_scc1 L_pw1')
    checkpoint(0)
    a('s_branch L_pw')
    a.label('L_q')
    stamp(a, 5)
    a(f's_cmp_lg_u32 s{sW}, 3')
    a('s_cbranch_scc1 L_q2')
    xfrags(1)
    a.label('L_q2')
    a(f'v_add_u32 v4, {WQ_LDS}, v{vDMA}')
    for f in range(18):
        a(f'ds_read_b128 {wvo_reg(f)}, v4 offset:{1024*f}')
    for s in range(6):
        a(f'ds_read_b128 {rng("a", aV+4*s, 4)}, v8 offset:{128*s}')
    blocks = [(ti, ct) for ti in range(2) for ct in range(3)]
    def qfin(n):
        ti, ct = blocks[n]
        S = vS[n % 4]
        X = aX['own' if ti == 0 else 'B0'] + 8 * ct
        out = []
        for j in range(8):
            out.append(f'v_cvt_pk_bf16_f32 v{S+j}, v{S+2*j}, v{S+2*j+1}')
        for j in range(8):
            out.append(f'v_accvgpr_write_b32 a{X+j}, v{S+j}')
        if ti == 1:
            for k in range(2):
                out.append(f'ds_write_b128 v31, v[{S+4*k}:{S+4*k+3}] offset:{(2*ct+k)*1024}')
        return out
    def blk_mf(n):
        ti, ct = blocks[n]
        d = rng('v', vS[n % 4], 16)
        X = aX['B1' if ti == 0 else 'B2']
        return [f'v_mfma_f32_32x32x16_bf16 {d}, {wvo_reg(6*ct+s)}, {rng("a", X+4*s, 4)}, {"0" if s == 0 else d}' for s in range(6)]
    def lqk(t, sb):
        d = rng('v', vS[sb], 16)
        return [f'v_mfma_f32_32x32x16_bf16 {d}, {rng("a", aV+4*s, 4)}, {rng("a", aX[t]+4*s, 4)}, {"0" if s == 0 else d}' for s in range(6)]
    def mops(t, sb):
        S = vS[sb]
        return [f'v_max3_f32 v5, v{S}, v{S+1}, v{S+2}', f'v_max_f32 v5, v5, v{S+3}'] + [f'v_sub_f32 v{vM[t]+i}, 0, v5' for i in range(16)]
    m0_ = blk_mf(0); m1_ = blk_mf(1); m2_ = blk_mf(2)
    m0_[0] = 's_waitcnt lgkmcnt(15)\n' + m0_[0]
    m1_[0] = 's_waitcnt lgkmcnt(12)\n' + m1_[0]
    m2_[0] = 's_waitcnt lgkmcnt(6)\n' + m2_[0]
    weave(a, m0_ + m1_ + m2_, [('at', 8)] + qfin(0) + [('at', 14)] + qfin(1))
    checkpoint(1)
    l0 = lqk('own', 2)
    l0[0] = 's_waitcnt lgkmcnt(4)\n' + l0[0]
    weave(a, blk_mf(3) + blk_mf(4) + blk_mf(5) + l0,
          [('at', 2)] + qfin(2) + [('at', 8)] + qfin(3) + [('at', 14)] + qfin(4) + [('at', 20)] + qfin(5))
    stamp(a, 6)
    checkpoint(2)
    a(f's_lshl_b32 s60, s{sW}, 10')
    a(f's_add_u32 s60, s60, {MX_LDS}')
    a(f'v_add_u32 v3, s60, v{vDMA}')
    weave(a, lqk('B0', 3), [('at', 2)] + mops('own', 2) + [f'v_add_u32 v2, {XST}, v{vDMA}', f'v_mov_b32 v{vHI}, 0x{HI:08x}'])
    a('s_cmp_eq_u32 s55, 1')
    a('s_cbranch_scc1 L_g0_done')
    a('s_waitcnt vmcnt(0)')
    a(flag_cmp())
    a('s_cbranch_vccz L_w0_ok')
    spin(a, 'L_w0')
    g0_dma()
    a.label('L_g0_done')
    stamp(a, 7)
    for i in range(24):
        a(f'v_accvgpr_write_b32 a{aV+i}, 0')
    for x in mops('B0', 3): a(x)
    a(f'ds_write_b128 v3, {rng("v", vM["B0"], 4)}')
    for i in range(4):
        a(f'v_mov_b32 v{vS[3]+i}, 0')
        a(f'v_mov_b32 v{vS[3]+8+i}, 0')
    a('s_waitcnt vmcnt(0) lgkmcnt(0)')
    probe(a, 'b3')
    a('s_barrier')
    stamp(a, 8)
    for s in range(6):
        a(kread(0, s))
    a(flag_cmp())
    a(f's_cmp_lg_u32 s{sW}, 3')
    a('s_cbranch_scc1 L_owner')

    def first_qk_group1(tag, extra, nwait):
        a(f's_cbranch_vccz L_w1{tag}_ok')
        spin(a, f'L_w1{tag}')
        a(f's_mov_b32 m0, s{sTE}')
        a(f's_waitcnt lgkmcnt({nwait})')
        fill = []
        for q in range(3):
            fill += [('at', 2 * q), dma(q, 0), dma(q, 1)] + extra[8*q:8*q+4]
            fill += [('at', 2 * q + 1), dma(q, 2), dma(q, 3)] + extra[8*q+4:8*q+8]
            fill += [f's_add_u32 m0, s{sTE}, {(q+1)*4096}', f's_add_u32 s{sG[q]}, s{sG[q]}, {BUF}']
        weave(a, [qk_mfma('own', 0, s) for s in range(6)], fill, cap=8)
        a(f's_add_u32 s{sFO}, s{sFO}, 4096')
        a('s_waitcnt lgkmcnt(0)')
        a('s_nop 3')
        stamp(a, 11)
        stamp(a, 12, True)
        if OPT['stamps']: a('s_waitcnt lgkmcnt(0)')

    vhalf = [f'ds_read_b128 {rng("a", aV+4*ct, 4)}, v{vDMA} offset:{6144+1024*ct}' for ct in range(3)]
    wv = [f'ds_read_b128 {wvo_reg(f)}, v{vDMA} offset:{WVO_LDS + 1024*f}' for f in range(18)]
    PA = vS[0]
    PB = vS[2]

    ex = []
    for e, t in enumerate(('B0', 'B1', 'B2')):
        ex += [f'ds_read_b128 {rng("a", aX[t]+4*s, 4)}, v2 offset:{e*6144 + 1024*s}' for s in range(6)]
        ex += [f'ds_read_b128 {rng("v", vM[t]+4*k, 4)}, v2 offset:{24576 + 1024*e}' for k in range(4)]
    for x in ex[:6]: a(x)
    first_qk_group1('h', ex[6:], 6)
    gen_loop(a, True)
    stamp(a, 13); stamp(a, 14, True)
    a(f'v_add_u32 v5, {MERGE0}, v{vDMA}')
    a('v_lshlrev_b32 v2, 2, v1')
    a(f'v_add_u32 v2, {MERGE0}, v2')
    a(f's_mov_b32 s58, 0x{LO:08x}')
    a('s_waitcnt lgkmcnt(0)')
    wr = []
    for e, t in enumerate(('B0', 'B1', 'B2')):
        k, b = rO[t]
        wr += [f'ds_write_b128 v5, {rng(k, b+4*j, 4)} offset:{e*MERGE + 1024*j}' for j in range(12)]
        wr += [f'ds_write_b32 v2, v{vL[t]} offset:{e*MERGE + 12288}']
    mf = [pv_mfma('own', 3, t, ct) for t in range(2) for ct in range(3)]
    fill = []
    for g in range(6):
        fill.append(('at', g))
        if g < 3: fill.append(vhalf[g])
        fill += wr[5*g:5*g+5]
    weave(a, mf, fill)
    if OPT.get('epi'): stamp(a, 2)
    for x in wr[30:]: a(x)
    for x in half_softmax_ops(0, 'own'): a(x)
    if OPT.get('epi'): stamp(a, 3)
    a('s_waitcnt lgkmcnt(0)')
    if OPT.get('epi'): stamp(a, 4)
    probe(a, 'mg')
    a('s_barrier')
    if OPT.get('epi'): stamp(a, 5)
    weave(a, [pv_mfma('own', 0, 0, ct) for ct in range(3)], wv)
    for x in lsum_ops('own', 2, 'h'): a(x)
    if OPT.get('epi'): stamp(a, 6)
    cv = cvt_ops('own', PA)
    a('s_nop 1')
    a('v_mov_b32 v3, v2')
    for x in cv[:8]: a(x)
    a('s_waitcnt lgkmcnt(0)')
    if OPT.get('epi'): stamp(a, 7)
    weave(a, proj_mfmas('own', PA), cv[8:] + [('at', 8)] + fin_ops('own', 0, 2) + [('at', 14)] + fin_ops('own', 1, 2))
    if OPT.get('epi'): stamp(a, 8)
    a('s_nop 7')
    for x in fin_ops('own', 2, 2, pk=True): a(x)
    for x in store_ops(PB, sXo, 60): a(x)
    for x in store_ops2(PB, sXo, 60): a(x)
    stamp(a, 15)
    stamp_store(a)
    a('s_endpgm')
    slow_path(a, 'h')
    redo(a, 'own', 2, 'h')
    a.label('L_owner')
    first_qk_group1('o', [], 0)
    gen_loop(a, False)
    stamp(a, 13); stamp(a, 14, True)
    a(f's_mul_i32 s60, s{sW}, {MERGE}')
    a(f's_add_u32 s60, s60, {MERGE0}')
    a(f'v_add_u32 v6, s60, v{vDMA}')
    a('v_lshlrev_b32 v7, 2, v1')
    a('v_add_u32 v7, s60, v7')
    a(f's_mov_b32 s58, 0x{LO:08x}')
    a('s_waitcnt lgkmcnt(0)')
    mf = [qk_mfma('B0', 1, s) for s in range(6)] + [pv_mfma('own', 3, t, ct) for t in range(2) for ct in range(3)]
    hs = half_softmax_ops(0, 'own')
    fill = wv[0:4] + wv[8:10] + [('at', 1)] + wv[4:8] + wv[10:12] + [('at', 2)] + wv[12:18] + [('at', 3)] + hs[:9]
    fill += [('at', 6), vhalf[0]] + hs[9:14] + [('at', 7), vhalf[1]] + hs[14:19] + [('at', 8), vhalf[2]] + hs[19:]
    hb = half_softmax_ops(1, 'B0')
    fill += [('at', 9)] + hb[:10]
    weave(a, mf, fill)
    if OPT.get('epi'): stamp(a, 2)
    a('s_waitcnt lgkmcnt(0)')
    mf = [pv_mfma('own', 0, 0, ct) for ct in range(3)] + [pv_mfma('B0', 1, 0, ct) for ct in range(3)]
    ls = lsum_ops('own', 2, 'oo')
    weave(a, mf, hb[10:] + [('at', 3)] + ls[:7])
    if OPT.get('epi'): stamp(a, 3)
    for x in ls[7:]: a(x)
    cv = cvt_ops('own', PA[0] if isinstance(PA, tuple) else PA)
    for x in cv[:8]: a(x)
    a('s_waitcnt lgkmcnt(0)')
    weave(a, proj_mfmas('own', PA), cv[8:] + [('at', 8)] + fin_ops('own', 0, 2) + [('at', 14)] + fin_ops('own', 1, 2))
    if OPT.get('epi'): stamp(a, 4)
    a('s_barrier')
    if OPT.get('epi'): stamp(a, 5)
    b = rO['B0'][1]
    TT = [PA + 4 * j for j in range(6)] + [PB + 4 * j for j in range(6)]
    a('ds_read_b32 v8, v7 offset:12288')
    for j in range(12):
        a(f'ds_read_b128 v[{TT[j]}:{TT[j]+3}], v6 offset:{1024*j}')
    a('v_mov_b32 v3, v2')
    f2 = fin_ops('own', 2, 2, pk=True)
    for x in f2[:16]: a(x)
    a('s_waitcnt lgkmcnt(12)')
    a(f'v_add_f32 v{vL["B0"]}, v{vL["B0"]}, v8')
    for j in range(12):
        t = TT[j]
        a(f's_waitcnt lgkmcnt({11-j})')
        a(f'v_pk_add_f32 v[{b+4*j}:{b+4*j+1}], v[{b+4*j}:{b+4*j+1}], v[{t}:{t+1}]')
        a(f'v_pk_add_f32 v[{b+4*j+2}:{b+4*j+3}], v[{b+4*j+2}:{b+4*j+3}], v[{t+2}:{t+3}]')
    for x in f2[16:]: a(x)
    if OPT.get('epi'): stamp(a, 6)
    for x in lsum_ops('B0', 2, 'ob'): a(x)
    cv = cvt_ops('B0', PB)
    for x in cv[:8]: a(x)
    a('v_mov_b32 v3, v2')
    if OPT.get('epi'): stamp(a, 7)
    so = store_ops(PA, sXo, 60)
    st2 = store_ops2(PA, sXo, 60, waits=False)
    f0 = fin_ops('B0', 0, 2); f1 = fin_ops('B0', 1, 2)
    fill = cv[8:] + [('at', 3)] + so
    fill += [('at', 6), 's_waitcnt lgkmcnt(0)', st2[0]] + [('at', 7), st2[1]]
    for k in range(4):
        fill += [('at', 8 + k), st2[2 + k]] + f0[5*k:5*k+5]
    fill += [('at', 12)] + f0[20:] + [('at', 14)] + f1
    weave(a, proj_mfmas('B0', PB), fill)
    if OPT.get('epi'): stamp(a, 8)
    a('s_nop 7')
    for x in fin_ops('B0', 2, 2, pk=True): a(x)
    for x in store_ops(PB, sXb, 60): a(x)
    for x in store_ops2(PB, sXb, 60): a(x)
    stamp(a, 15)
    stamp_store(a)
    a('s_endpgm')
    slow_path(a, 'o')
    redo(a, 'own', 2, 'oo')
    redo(a, 'B0', 2, 'ob')

def gen_spare(a):
    st = OPT['stsc']
    a.label('L_spare')
    a(f'''
    s_cmp_gt_u32 s{sW}, 1
    s_cbranch_scc1 L_end
    s_cmp_gt_u32 s2, 27
    s_cbranch_scc1 L_end
    v_mov_b32 v60, 1
    s_cmp_eq_u32 s2, 27
    s_cbranch_scc1 L_sp_nonce
    s_mul_i32 s28, s2, 57
    s_lshr_b32 s28, s28, 9
    s_mul_i32 s28, s28, 9
    s_sub_u32 s28, s2, s28
    s_mov_b32 s56, s8
    s_mov_b32 s57, s9
    s_mov_b32 s58, 36864
    s_mov_b32 s59, 0x20000
    v_and_b32 v3, 31, v1
    v_lshrrev_b32 v4, 5, v1
    v_mul_u32_u24 v6, 384, v3
    v_lshl_add_u32 v6, v4, 4, v6
    s_mul_i32 s29, s28, 11
    s_lshr_b32 s29, s29, 5
    s_mul_i32 s30, s29, 3
    s_sub_u32 s30, s28, s30
    s_mul_i32 s33, s30, 6
    s_lshl_b32 s34, s29, 1
    s_add_u32 s33, s33, s34
    s_lshl_b32 s33, s33, 10
    s_cmp_eq_u32 s{sW}, 1
    s_cbranch_scc1 L_sp_vo
    s_mov_b32 s52, s6
    s_mov_b32 s53, s7
    s_mov_b32 s54, 18432
    s_mov_b32 s55, 0x20000
    v_mul_u32_u24 v5, 192, v3
    v_lshl_add_u32 v5, v4, 4, v5
    s_mul_i32 s31, s29, {32*192}
    s_mul_i32 s32, s30, {32*384}
    ''')
    for s in range(6):
        a(f'buffer_load_dwordx4 v[{8+4*s}:{11+4*s}], v5, s[52:55], s31 offen offset:{32*s} {OPT.get("wsc", "")}')
        a(f'buffer_load_dwordx4 v[{32+4*s}:{35+4*s}], v6, s[56:59], s32 offen offset:{32*s} {OPT.get("wsc", "")}')
    a(f'''
    v_lshlrev_b32 v7, 4, v3
    v_lshl_add_u32 v7, v4, 3, v7
    s_add_u32 s33, s33, {WQK_OFF}
    s_mov_b32 s35, 0x{f32bits(CST):08x}
    s_add_u32 s36, s28, 224
    ''')
    for s in range(6):
        a(f's_waitcnt vmcnt({10-2*s})')
        a(f'v_mfma_f32_32x32x16_bf16 v[64:79], v[{8+4*s}:{11+4*s}], v[{32+4*s}:{35+4*s}], {"0" if s == 0 else "v[64:79]"}')
    stamp(a, 2, True)
    a('s_nop 15')
    for r in range(16):
        a(f'v_mul_f32 v{64+r}, s35, v{64+r}')
    for r in range(8):
        a(f'v_cvt_pk_bf16_f32 v{80+r}, v{64+2*r}, v{65+2*r}')
    for i in range(4):
        a(f'buffer_store_dwordx2 v[{80+2*i}:{81+2*i}], v7, s[24:27], s33 offen offset:{(i>>1)*1024 + (i&1)*512} {st}')
    a('s_branch L_sp_flag')
    a.label('L_sp_vo')
    a(f'''
    s_cmp_gt_u32 s2, 8
    s_cbranch_scc1 L_end
    s_mov_b32 s20, s10
    s_mov_b32 s21, s11
    s_mov_b32 s22, 18432
    s_mov_b32 s23, 0x20000
    v_lshlrev_b32 v7, 4, v1
    v_lshrrev_b32 v56, 2, v1
    v_and_b32 v57, 3, v1
    v_mul_u32_u24 v56, 192, v56
    v_lshl_add_u32 v56, v57, 4, v56
    s_lshl_b32 s31, s30, 6
    s_mov_b32 s34, 0
    ''')
    for p in range(6):
        a('s_mov_b32 m0, s34')
        a('s_add_u32 s34, s34, 1024')
        a('buffer_load_dwordx4 v56, s[20:23], s31 offen lds')
        a(f's_add_u32 s31, s31, {16*192}')
    a(f's_mul_i32 s32, s29, {32*384}')
    for s in range(6):
        a(f'buffer_load_dwordx4 v[{8+4*s}:{11+4*s}], v6, s[56:59], s32 offen offset:{192+32*s}')
    a(f'''
    v_bfe_u32 v56, v1, 2, 2
    v_lshl_add_u32 v56, v4, 3, v56
    v_lshlrev_b32 v56, 6, v56
    v_bfe_u32 v58, v1, 4, 1
    v_lshl_add_u32 v56, v58, 5, v56
    v_lshl_add_u32 v56, v57, 3, v56
    s_add_u32 s33, s33, {WVO_OFF}
    s_mul_i32 s36, s30, 3
    s_add_u32 s36, s36, s29
    s_add_u32 s36, s36, 200
    s_cmp_eq_u32 s30, 2
    s_cselect_b32 s34, 2, 0
    s_add_u32 s36, s36, s34
    s_waitcnt vmcnt(6)
    ''')
    for s in range(6):
        for half in range(2):
            a(f'ds_read_b64_tr_b16 v[{32+4*s+2*half}:{33+4*s+2*half}], v56 offset:{s*1024 + half*256}')
    a('s_waitcnt vmcnt(0) lgkmcnt(0)')
    for s in range(6):
        a(f'v_mfma_f32_32x32x16_bf16 v[64:79], v[{8+4*s}:{11+4*s}], v[{32+4*s}:{35+4*s}], {"0" if s == 0 else "v[64:79]"}')
    a('s_nop 15')
    for r in range(8):
        a(f'v_cvt_pk_bf16_f32 v{80+r}, v{64+2*r}, v{65+2*r}')
    for k in range(2):
        a(f'buffer_store_dwordx4 v[{80+4*k}:{83+4*k}], v7, s[24:27], s33 offen offset:{1024*k} {st}')
    a.label('L_sp_flag')
    a(f'''
    v_mov_b32 v{vZ}, 0
    s_mov_b32 s{sSP}, 0
    s_lshl_b32 s36, s36, 7
    s_add_u32 s36, s36, {FLAG_OFF}
    ''')
    stamp(a, 3, True)
    nonce_spin(a, 'L_sp_n')
    stamp(a, 4, True)
    a(f'''
    s_mov_b64 exec, 1
    buffer_store_dwordx2 v[{vF}:{vF+1}], v{vZ}, s[24:27], s36 offen {st}
    ''')
    stamp_store(a)
    a('s_endpgm')
    a.label('L_sp_nonce')
    a(f'''
    s_cmp_lg_u32 s{sW}, 0
    s_cbranch_scc1 L_end
    s_memrealtime s[28:29]
    v_mov_b32 v4, 0
    s_waitcnt lgkmcnt(0)
    s_or_b32 s29, s29, 0x40000000
    v_mov_b32 v2, s28
    v_mov_b32 v3, s29
    s_mov_b64 exec, 1
    buffer_store_dwordx2 v[2:3], v4, s[48:51], 0 offen {st}
    s_mov_b32 exec_lo, 0x{DUMMY & 0xffffffff:08x}
    s_mov_b32 exec_hi, 0
    v_lshlrev_b32 v4, 7, v1
    s_mov_b32 s30, {FLAG_OFF + 192*128}
    buffer_store_dwordx2 v[2:3], v4, s[24:27], s30 offen {st}
    s_endpgm
    ''')

def build(path):
    a = Asm()
    a.raw(f'.globl {NAME}')
    a.raw('.p2align 8')
    a.raw(f'.type {NAME},@function')
    a.label(NAME)
    a(f'''
    s_cmp_ge_u32 s2, {NSP+NCONS}
    s_cbranch_scc1 L_end
    ''')
    stamp(a, 0, True)
    stamp(a, 1)
    if OPT.get('probe'): a('s_memrealtime s[100:101]')
    a(f'''
    s_load_dwordx8 s[4:11], s[0:1], 0
    s_load_dwordx2 s[12:13], s[0:1], 32
    s_load_dwordx4 s[44:47], s[0:1], 40
    v_lshrrev_b32 v2, 6, v0
    v_and_b32 v1, 63, v0
    v_readfirstlane_b32 s{sW}, v2
    s_waitcnt lgkmcnt(0)
    s_mov_b32 s16, s4
    s_mov_b32 s17, s5
    s_mov_b32 s18, {X_BYTES}
    s_mov_b32 s19, 0x20000
    s_mov_b32 s24, s46
    s_mov_b32 s25, s47
    s_mov_b32 s26, {WS_BYTES}
    s_mov_b32 s27, 0x20000
    s_mov_b32 s48, s44
    s_mov_b32 s49, s45
    s_mov_b32 s50, 256
    s_mov_b32 s51, 0x20000
    s_cmp_lt_u32 s2, {NSP}
    s_cbranch_scc1 L_spare
    ''')
    gen_consumer(a)
    gen_spare(a)
    a.label('L_end')
    a('s_endpgm')
    out = HEADER
    out += f'; @launch grid=({NSP+NCONS},1,1) block=(256,1,1) lds={LDS_TOTAL}\n'
    out += '.amdgcn_target "amdgcn-amd-amdhsa--gfx950"\n.text\n'
    out += a.text()
    out += '.section .rodata,"a"\n.p2align 6\n'
    out += kd(NAME, 512, 256)
    open(path, 'w').write(out)

if __name__ == '__main__':
    for o in sys.argv[2:]:
        if '=' in o:
            k, v = o.split('=')
            OPT[k] = int(v) if v.isdigit() else v.replace('+', ' ')
        else:
            OPT[o] = True
    build(sys.argv[1] if len(sys.argv) > 1 else 'k9.s')
```

```python
import sys
from gen import Asm, f32bits, kd, HEADER, X_BYTES, KV_BYTES, CST
from gen2 import (vLB, vDMA, vL, vXO, vS, vM, rO, aX, aK, aV, BUF, MERGE, rng, qk_mfma, pv_mfma,
                  softmax_ops, schedule_stage, kread, vread)
import gen5
from gen5 import (DUMMY, NAME, NSP, NCONS, WVO_OFF, WQK_OFF, FLAG_OFF, WS_BYTES, OST, LDS_TOTAL, XST, WQ_LDS, WVO_LDS, MERGE0,
                  QX_LDS, MX_LDS, LK_LDS, NC_LDS, OPT, sW, sCNT, sT, sG, sDn, sDp, sTE, sTMP, sXo, sXb, sXB, sXS, sFO, sD0,
                  sK0, sFM, sSP, sU, sW12, vF, vZ, sN, vFO, vRB, vSW, stamp, stamp_store, dma, flag_load,
                  flag_cmp, spin_tail, nonce_spin, spin, gen_loop, slow_path)

def wvo_reg(f):
    return rng('v', vM['own'] + 4 * f, 4) if f < 16 else rng('a', 244 + 4 * (f - 16), 4)


def cost(ins):
    op = ins.split()[0]
    if op.startswith('v_exp') or op.startswith('v_rcp'): return 2
    return 1
def is_mem(ins):
    return ins.startswith('ds_') or ins.startswith('buffer_')
def is_salu(ins):
    return ins.startswith('s_')

def weave(a, mfmas, fill, cap=6):
    q = list(fill)
    for g, m in enumerate(mfmas):
        a(m)
        c = cap
        first = True
        prev_valu = False
        while q:
            it = q[0]
            if isinstance(it, tuple):
                if it[1] > g: break
                q.pop(0); continue
            k = cost(it)
            if is_salu(it) and first: k = 0
            if is_mem(it) and prev_valu: break
            if k > c: break
            a(q.pop(0)); c -= k; first = False
            prev_valu = prev_valu or it.startswith('v_')
    for it in q:
        if not isinstance(it, tuple): a(it)

def half_softmax_ops(sbuf, tile):
    S = vS[sbuf]; L = vL[tile]
    o = [f'v_exp_f32 v{S+i}, v{S+i}' for i in range(8)]
    o += [f'v_add_f32 v{L}, v{L}, v{S+i}' for i in range(8)]
    o += [f'v_cvt_pk_bf16_f32 v{S+j}, v{S+2*j}, v{S+2*j+1}' for j in range(4)]
    return o

LO = f32bits(2.0 ** -90)
HI = f32bits(2.0 ** 90)

def lsum_ops(tile, r, tag):
    L = vL[tile]
    return [f'v_mov_b32 v{r}, v{L}', 's_nop 1', f'v_permlane32_swap_b32 v{L}, v{r}', 's_nop 0',
            f'v_add_f32 v{r}, v{L}, v{r}',
            f'v_med3_f32 v{r+1}, v{r}, s58, v{vHI}',
            f'v_cmp_neq_f32 vcc, v{r+1}, v{r}',
            f's_cbranch_vccnz L_redo_{tag}', f'L_redone_{tag}:',
            f'v_rcp_f32 v{r}, v{r}']
vHI = 9

def redo(a, tile, r, tag):
    k, b = rO[tile]
    L = vL[tile]
    X = aX[tile]
    S = vS[2]; M = vS[3]
    sd = rng('v', S, 16)
    a.label(f'L_redo_{tag}')
    a('s_waitcnt vmcnt(0) lgkmcnt(0)')
    a('s_nop 15')
    a('v_mov_b32 v4, 0xff800000')
    a('s_mov_b32 s55, 0')
    def kload():
        a('s_add_u32 s57, s55, 4096')
        for s in range(6):
            a(f'buffer_load_dwordx4 {rng("a", aK+4*s, 4)}, v{vDMA}, s[24:27], s{55 if s < 4 else 57} offen offset:{1024*(s%4)}')
    def vload(n):
        a('s_add_u32 s57, s55, 6144')
        a('s_add_u32 s59, s55, 10240')
        for f in range(n):
            a(f'buffer_load_dwordx4 {rng("a", aV+4*f, 4)}, v{vDMA}, s[24:27], s{57 if f < 4 else 59} offen offset:{1024*(f%4)}')
    def qk(c):
        for s in range(6):
            a(f'v_mfma_f32_32x32x16_bf16 {sd}, {rng("a", aK+4*s, 4)}, {rng("a", X+4*s, 4)}, {c if s == 0 else sd}')
        a('s_nop 15')
    def mx(n):
        for i in range(0, n, 2):
            a(f'v_max3_f32 v4, v4, v{S+i}, v{S+i+1}')
    a.label(f'L_redo1_{tag}')
    kload(); a('s_waitcnt vmcnt(0)'); qk('0')
    a(f's_cmp_eq_u32 s55, {24*12288}')
    a(f's_cbranch_scc1 L_redo1e_{tag}')
    mx(16)
    a('s_add_u32 s55, s55, 12288')
    a(f's_branch L_redo1_{tag}')
    a.label(f'L_redo1e_{tag}')
    mx(8)
    a('v_mov_b32 v5, v4')
    a('s_nop 1')
    a('v_permlane32_swap_b32 v4, v5')
    a('s_nop 0')
    a('v_max_f32 v4, v4, v5')
    for i in range(16):
        a(f'v_sub_f32 v{M+i}, 0, v4')
    for i in range(48):
        a(f'v_mov_b32 v{b+i}, 0')
    a(f'v_mov_b32 v{L}, 0')
    a('s_mov_b32 s55, 0')
    def sm(n):
        for i in range(n): a(f'v_exp_f32 v{S+i}, v{S+i}')
        a('s_nop 0')
        for i in range(n): a(f'v_add_f32 v{L}, v{L}, v{S+i}')
        for p in range(n // 2):
            t, j = divmod(p, 4)
            a(f'v_cvt_pk_bf16_f32 v{S+8*t+j}, v{S+2*p}, v{S+2*p+1}')
        a('s_nop 1')
        for t in range(n // 8):
            for ct in range(3):
                a(pv_mfma(tile, 2, t, ct))
    a.label(f'L_redo2_{tag}')
    kload(); vload(6); a('s_waitcnt vmcnt(0)'); qk(rng('v', M, 16))
    a(f's_cmp_eq_u32 s55, {24*12288}')
    a(f's_cbranch_scc1 L_redo2e_{tag}')
    sm(16)
    a('s_add_u32 s55, s55, 12288')
    a(f's_branch L_redo2_{tag}')
    a.label(f'L_redo2e_{tag}')
    sm(8)
    a(f'v_mov_b32 v{r}, v{L}')
    a('s_nop 1')
    a(f'v_permlane32_swap_b32 v{L}, v{r}')
    a('s_nop 0')
    a(f'v_add_f32 v{r}, v{L}, v{r}')
    a('s_waitcnt lgkmcnt(0)')
    a('s_nop 15')
    a(f's_branch L_redone_{tag}')

def cvt_ops(tile, P):
    b = rO[tile][1]
    return [f'v_cvt_pk_bf16_f32 v{P+j}, v{b+2*j}, v{b+2*j+1}' for j in range(24)]

def proj_mfmas(tile, P):
    b = rO[tile][1]
    m = []
    for cot in range(3):
        d = rng('v', b + 16 * cot, 16)
        for s in range(6):
            m.append(f'v_mfma_f32_32x32x16_bf16 {d}, {wvo_reg(6*cot+s)}, {rng("v", P+4*s, 4)}, {"0" if s == 0 else d}')
    return m

def fin_ops(tile, cot, r, pk=False):
    o = rO[tile][1] + 16 * cot
    out = []
    for j in range(8):
        if pk:
            out.append(f'v_pk_mul_f32 v[{o+2*j}:{o+2*j+1}], v[{o+2*j}:{o+2*j+1}], v[{r}:{r+1}]')
        else:
            out.append(f'v_mul_f32 v{o+2*j}, v{r}, v{o+2*j}')
            out.append(f'v_mul_f32 v{o+2*j+1}, v{r}, v{o+2*j+1}')
        if not pk:
            out.append(f'v_cvt_pk_bf16_f32 v{o+j}, v{o+2*j}, v{o+2*j+1}')
    if pk:
        out += [f'v_cvt_pk_bf16_f32 v{o+j}, v{o+2*j}, v{o+2*j+1}' for j in range(8)]
    out += [f'ds_write_b64 v{vSW}, v[{o+2*i}:{o+2*i+1}] offset:{64*cot+16*i}' for i in range(4)]
    return out

def store_ops(R, soff, s2):
    o = ['s_waitcnt lgkmcnt(0)']
    o += [f'ds_read_b128 v[{R+4*j}:{R+4*j+3}], v{vRB[j%3]} offset:{(j//3)*16*208}' for j in range(6)]
    o += [f's_add_u32 s{s2}, s{soff}, 4096']
    return o
def store_ops2(R, soff, s2, waits=True):
    o = []
    for j in range(6):
        if waits: o.append(f's_waitcnt lgkmcnt({5-j})')
        o.append(f'buffer_store_dwordx4 v[{R+4*j}:{R+4*j+3}], v{vDMA}, s[20:23], s{soff if j < 4 else s2} offen offset:{1024*(j%4)} {OPT.get("osc", "nt")}')
    return o

def probe(a, where):
    if OPT.get('probe') != where: return
    lab = f'L_probe{len(a.lines)}'
    a.label(lab)
    a('s_memrealtime s[98:99]')
    a('s_waitcnt lgkmcnt(0)')
    a('s_sub_u32 s98, s98, s100')
    a(f's_cmp_lt_u32 s98, {OPT["D"]}')
    a(f's_cbranch_scc1 {lab}')

def code_prefetch(a, tag):
    a('s_getpc_b64 s[58:59]')
    a.label(f'L_pc_{tag}')
    a(f's_sub_u32 s58, s58, L_pc_{tag}-{NAME}')
    a('s_subb_u32 s59, s59, 0')
    a('v_lshlrev_b32 v6, 7, v1')
    for k in range(3):
        a(f'v_min_u32 v7, L_end-{NAME}, v6')
        a('v_mov_b32 v5, s59')
        a('v_add_co_u32 v4, vcc, s58, v7')
        a('v_addc_co_u32 v5, vcc, 0, v5, vcc')
        a(f'global_load_dword a{252+k}, v[4:5], off')
        if k < 2:
            a('v_add_u32 v6, 0x2000, v6')

def gen_consumer(a):
    st = OPT['stsc']
    a(f'''
    s_sub_u32 s3, s2, {NSP}
    v_lshlrev_b32 v{vDMA}, 4, v1
    s_lshr_b32 s55, s3, 3
    s_and_b32 s56, s3, 7
    s_mul_i32 s{sXB}, s55, 344064
    s_mul_i32 s57, s56, 6144
    s_mov_b32 s{sXS}, 43008
    s_cmp_eq_u32 s56, 7
    s_cselect_b32 s57, {7*43008}, s57
    s_cselect_b32 s{sXS}, 6144, s{sXS}
    s_add_u32 s{sXB}, s{sXB}, s57
    s_mul_i32 s{sU}, s55, 7
    s_add_u32 s{sU}, s{sU}, s56
    s_mul_i32 s{sW12}, s{sW}, 12288
    v_mov_b32 v{vZ}, 0
    v_mov_b32 v2, {NC_LDS}
    s_mov_b32 s{sSP}, 0
    s_cmp_eq_u32 s{sW}, 3
    s_cbranch_scc1 L_x_w3
    s_mul_i32 s57, s{sW}, 3
    s_mul_i32 s58, s57, 6144
    s_mul_i32 s57, s57, s{sXS}
    s_add_u32 s57, s57, s{sXB}
    s_add_u32 s58, s58, {XST}
    s_mov_b32 m0, s58
    s_add_u32 s59, s57, 4096
    ''')
    for t in range(3):
        for p in range(4):
            a(f'buffer_load_dwordx4 v{vDMA}, s[16:19], s57 offen offset:{1024*p} {OPT.get("xsc", "nt")} lds')
        a(f's_add_u32 m0, s58, {6144*t + 4096}')
        a(f's_add_u32 s57, s57, s{sXS}')
        for p in range(2):
            a(f'buffer_load_dwordx4 v{vDMA}, s[16:19], s59 offen offset:{1024*p} {OPT.get("xsc", "nt")} lds')
        if t < 2:
            a(f's_add_u32 m0, s58, {6144*(t+1)}')
            a(f's_add_u32 s59, s59, s{sXS}')
        if t == 1:
            a(f's_cmp_eq_u32 s{sW}, 2')
            a('s_cbranch_scc1 L_x_done')
    a('s_branch L_x_done')
    a.label('L_x_w3')
    if OPT.get('ipf', 1):
        code_prefetch(a, 'c')
    a(f'ds_write_b32 v2, v{vZ}')
    a(f'ds_write_b32 v2, v{vZ} offset:4')
    a(f'ds_write_b32 v2, v{vZ} offset:8')
    a(f'ds_write_b32 v2, v{vZ} offset:12')
    a('s_waitcnt lgkmcnt(0)')
    a.label('L_x_done')
    if OPT.get('layout', 'C') == 'C':
        a('s_branch L_cons2')
        gen_spare(a)
        a.label('L_cons2')
    a('s_barrier')
    a(f'''
    v_and_b32 v3, 31, v1
    v_lshrrev_b32 v4, 5, v1
    v_mul_u32_u24 v{vXO}, 192, v3
    v_lshl_add_u32 v{vXO}, v4, 4, v{vXO}
    s_mul_i32 s{sXo}, s{sW}, s{sXS}
    s_add_u32 s{sXo}, s{sXo}, s{sXB}
    s_lshl_b32 s57, s{sXS}, 2
    s_add_u32 s{sXb}, s{sXo}, s57
    s_mov_b32 s20, s12
    s_mov_b32 s21, s13
    s_mov_b32 s22, {X_BYTES}
    s_mov_b32 s23, 0x20000
    s_mov_b32 s{sCNT}, 0
    s_add_u32 s{sT}, s{sW12}, {2*BUF}
    s_add_u32 s{sTE}, s{sW12}, {BUF}
    s_add_u32 s{sG[0]}, s{sW12}, {BUF}
    s_add_u32 s{sG[1]}, s{sW12}, {BUF+4096}
    s_add_u32 s{sG[2]}, s{sW12}, {BUF+8192}
    s_mov_b32 s{sDn}, {BUF}
    s_mov_b32 s{sDp}, {(-2*BUF) & 0xffffffff}
    s_lshl_b32 s{sFM}, s{sW}, 10
    s_add_u32 s{sFM}, s{sFM}, {FLAG_OFF + 192*128}
    ''')
    a.label('L_setup')
    if OPT.get('warm', 1):
        a(f'buffer_load_dword a240, v{vZ}, s[20:23], s{sXo} offen')
        a(f'buffer_load_dword a241, v{vZ}, s[20:23], s{sXb} offen')
    for i in range(4):
        a(f's_add_u32 s60, s{sW}, {1+i}')
        a('s_and_b32 s60, s60, 3')
        a('s_mul_i32 s60, s60, 12288')
        if i == 0:
            a(f's_mov_b32 s{sK0}, s60')
        if i == 3:
            a(f's_add_u32 s60, s60, {2*BUF}')
        a(f'v_add_u32 v{vLB[i]}, s60, v{vDMA}')
    a(f'''
    s_and_b32 s57, s{sW}, 1
    s_mul_i32 s57, s57, {OST}
    s_mov_b32 s58, {3*BUF}
    s_cmp_lt_u32 s{sW}, 2
    s_cselect_b32 s58, 30720, s58
    s_add_u32 s57, s57, s58
    v_mul_u32_u24 v{vSW}, 208, v3
    v_lshl_add_u32 v{vSW}, v4, 3, v{vSW}
    v_add_u32 v{vSW}, s57, v{vSW}
    ''')
    for j in range(3):
        a(f'v_add_u32 v5, {64*j}, v1')
        a('v_mul_u32_u24 v6, 171, v5')
        a('v_lshrrev_b32 v6, 11, v6')
        a('v_add_u32 v5, v5, v6')
        a(f'v_lshlrev_b32 v5, 4, v5')
        a(f'v_add_u32 v{vRB[j]}, s57, v5')
    a(f'''
    v_lshrrev_b32 v9, 4, v1
    v_and_b32 v10, 15, v1
    v_lshrrev_b32 v6, 2, v10
    v_lshl_add_u32 v6, v9, 3, v6
    v_mul_u32_u24 v5, 192, v6
    v_and_b32 v8, 3, v1
    v_lshl_add_u32 v5, v8, 3, v5
    s_lshl_b32 s57, s{sW}, 6
    s_add_u32 s57, s57, {XST}
    v_add_u32 v5, s57, v5
    v_cmp_eq_u32 vcc, v9, v10
    v_mov_b32 v6, 0x3f803f80
    v_lshlrev_b32 v8, 4, v8
    v_cndmask_b32 v{vS[3]}, 0, v6, vcc
    v_cndmask_b32 v{vS[3]+1}, 0, v6, vcc
    v_cndmask_b32 v{vS[3]+2}, 0, v6, vcc
    v_cndmask_b32 v{vS[3]+3}, 0, v6, vcc
    v_lshl_add_u32 v8, v4, 6, v8
    v_add_u32 v8, {LK_LDS}, v8
    v_and_b32 v3, 1, v9
    v_lshl_add_u32 v6, v3, 5, v10
    v_lshlrev_b32 v6, 4, v6
    v_lshrrev_b32 v7, 1, v9
    v_lshl_add_u32 v6, v7, 3, v6
    v_lshlrev_b32 v29, 4, v10
    v_lshl_add_u32 v29, v3, 6, v29
    v_lshl_add_u32 v29, v7, 3, v29
    s_lshl_b32 s57, s{sW}, 8
    s_add_u32 s57, s57, {LK_LDS}
    v_add_u32 v29, s57, v29
    v_lshlrev_b32 v7, 4, v10
    s_lshr_b32 s57, s{sU}, 3
    s_mul_i32 s57, s57, 12288
    s_and_b32 s58, s{sU}, 7
    s_lshl_b32 s59, s58, 6
    s_add_u32 s59, s59, s57
    s_lshl_b32 s60, s{sW}, 11
    s_add_u32 s59, s59, s60
    s_lshr_b32 s58, s58, 2
    s_mul_i32 s58, s58, 3072
    s_add_u32 s57, s57, s58
    s_add_u32 s57, s57, 6144
    s_and_b32 s58, s{sU}, 1
    s_lshl_b32 s58, s58, 9
    s_add_u32 s57, s57, s58
    s_and_b32 s58, s{sU}, 2
    s_lshl_b32 s58, s58, 2
    s_add_u32 s57, s57, s58
    s_lshl_b32 s60, s{sW}, 10
    s_add_u32 s57, s57, s60
    s_mul_i32 s58, s{sW}, 6144
    s_add_u32 s58, s58, {XST}
    v_add_u32 v30, s58, v{vXO}
    v_add_u32 v31, s58, v{vDMA}
    v_and_b32 v{vFO}, 7, v1
    v_lshlrev_b32 v{vFO}, 7, v{vFO}
    s_sub_u32 s{sFO}, s{sFM}, {192*128}
    v_mov_b32 v3, 1
    ''')
    def zero_o():
        for t in ('own', 'B0'):
            for i in range(48):
                a(f'v_mov_b32 v{rO[t][1]+i}, 0')
    for t in vL:
        a(f'v_mov_b32 v{vL[t]}, 0')
    def xfrags(n):
        for s in range(6):
            a(f'ds_read_b128 {rng("a", aX["B1"]+4*s, 4)}, v30 offset:{32*s}')
        if n > 1:
            for s in range(6):
                a(f'ds_read_b128 {rng("a", aX["B2"]+4*s, 4)}, v30 offset:{4*6144+32*s}')
    a(f's_cmp_eq_u32 s{sW}, 3')
    a('s_cbranch_scc1 L_w3_b2')
    zero_o()
    a(f'buffer_load_dwordx2 v[{vF}:{vF+1}], v{vZ}, s[48:51], 0 offen {OPT["ldsc"]}')
    stamp(a, 2)
    a(f's_waitcnt vmcnt({3 if OPT.get("warm", 1) else 1})')
    a('s_mov_b64 exec, 1')
    a('ds_add_u32 v2, v3')
    a('s_mov_b64 exec, -1')
    a.label('L_xw')
    a(f'ds_read_b32 v4, v2')
    a('s_waitcnt lgkmcnt(0)')
    a('v_cmp_ne_u32 vcc, 3, v4')
    a('s_cbranch_vccnz L_xw')
    stamp(a, 3)
    F = vM['own']
    def trr(row):
        for c in range(2):
            for half in range(2):
                d = F + (row * 2 + c) * 4 + 2 * half
                a(f'ds_read_b64_tr_b16 v[{d}:{d+1}], v5 offset:{row*6144 + half*768 + c*32}')
    IND = rng('v', vS[3], 4)
    D = vS[0]
    for row in range(3): trr(row)
    for row in range(8):
        nahead = min(2, 7 - row) if row + 3 > 7 else 2
        a(f's_waitcnt lgkmcnt({4*min(2, 7-row)})')
        for c in range(2):
            f = rng('v', F + (row * 2 + c) * 4, 4)
            d1 = rng('v', D + 8 * c, 4); d2 = rng('v', D + 8 * c + 4, 4)
            a(f'v_mfma_f32_16x16x32_bf16 {d1}, {f}, {IND}, {"0" if row == 0 else d1}')
            a(f'v_mfma_f32_16x16x32_bf16 {d2}, {IND}, {f}, {"0" if row == 0 else d2}')
        if row + 3 < 8: trr(row + 3)
    a('s_mov_b32 s60, 0x3c800000')
    a('v_cmp_gt_u32 vcc, 4, v10')
    xfrags(2)
    for r in range(16):
        a(f'v_mul_f32 v{D+r}, s60, v{D+r}')
    for r in range(8):
        a(f'v_cvt_pk_bf16_f32 v{D+16+r}, v{D+2*r}, v{D+2*r+1}')
    a('s_cmp_eq_u32 s56, 7')
    a('s_mov_b64 exec, vcc')
    a('s_cbranch_scc1 L_nostore')
    for c in range(2):
        a(f'buffer_store_dwordx2 v[{D+16+4*c}:{D+17+4*c}], v6, s[24:27], s59 offen offset:{1024*c} {st}')
    a('s_mov_b64 exec, 0xffff')
    for c in range(2):
        a(f'buffer_store_dwordx2 v[{D+18+4*c}:{D+19+4*c}], v7, s[24:27], s57 offen offset:{256*c} {st}')
    a('s_mov_b64 exec, vcc')
    a.label('L_nostore')
    for c in range(2):
        a(f'ds_write_b64 v29, v[{D+16+4*c}:{D+17+4*c}] offset:{128*c}')
    a('s_mov_b64 exec, -1')
    stamp(a, 4)
    a('s_cmp_eq_u32 s56, 7')
    a('s_cbranch_scc1 L_nw0')
    a('s_waitcnt vmcnt(4)')
    a('s_branch L_nw1')
    a.label('L_nw0')
    a('s_waitcnt vmcnt(0)')
    a.label('L_nw1')
    a(f'v_cmp_eq_u32 vcc, 0, v{vF+1}')
    a('s_cbranch_vccz L_nonce_ok')
    nonce_spin(a, 'L_nonce')
    a(f'v_readfirstlane_b32 s{sN}, v{vF}')
    a(f'v_readfirstlane_b32 s{sN+1}, v{vF+1}')
    def g0_dma():
        for q in range(3):
            a(f's_add_u32 s60, s{sW12}, {q*4096}')
            a('s_mov_b32 m0, s60')
            a('s_nop 0')
            for p in range(4):
                a(f'buffer_load_dwordx4 v{vDMA}, s[24:27], s60 offen offset:{1024*p} lds')
        a(f's_add_u32 s{sFO}, s{sFO}, 4096')
        a(flag_load())
    def checkpoint(k):
        a('s_cmp_eq_u32 s55, 1')
        a(f's_cbranch_scc1 L_cp{k}_{"n" if k == 2 else "e"}')
        a('s_waitcnt vmcnt(0)')
        a(flag_cmp())
        a(f's_cbranch_vccnz L_cp{k}_n')
        g0_dma()
        a('s_mov_b32 s55, 1')
        a(f's_branch L_cp{k}_e')
        a.label(f'L_cp{k}_n')
        a(flag_load())
        a.label(f'L_cp{k}_e')
    def publish(tag):
        a(f'''
        s_lshl_b32 s60, s{sU}, 7
        s_add_u32 s60, s60, {FLAG_OFF}
        v_mov_b32 v6, s{sN}
        v_mov_b32 v7, s{sN+1}
        s_waitcnt vmcnt(0)
        s_mov_b64 exec, 1
        ds_add_rtn_u32 v5, v2, v3 offset:12
        s_waitcnt lgkmcnt(0)
        v_cmp_eq_u32 vcc, 2, v5
        s_cmp_eq_u32 s56, 7
        s_cbranch_scc1 L_noflag{tag}
        s_cbranch_vccz L_noflag{tag}
        buffer_store_dwordx2 v[6:7], v{vZ}, s[24:27], s60 offen {st}
        ''')
        a.label(f'L_noflag{tag}')
        a('s_mov_b64 exec, -1')
        a('s_mov_b32 s59, 1')
    a(f'''
    s_waitcnt lgkmcnt(0)
    s_mov_b64 exec, 1
    ds_add_u32 v2, v3 offset:4
    s_mov_b64 exec, -1
    s_mov_b32 s59, 0
    s_mov_b32 s55, 0
    s_mov_b32 s57, 0
    ''')
    a.label('L_pq')
    a('ds_read2_b32 v[4:5], v2 offset0:1 offset1:2')
    a('s_waitcnt lgkmcnt(0)')
    a('v_add_u32 v4, v4, v5')
    a('v_cmp_ne_u32 vcc, 4, v4')
    a('s_cbranch_vccz L_q')
    a('s_add_u32 s57, s57, 1')
    a(f's_cmp_lt_u32 s57, {OPT.get("npq", 5)}')
    a('s_cbranch_scc1 L_pq')
    publish('a')
    a('s_branch L_pw0')
    a.label('L_w3_b2')
    zero_o()
    for i in range(96):
        a(f'v_accvgpr_write_b32 a{i}, 0')
    stamp(a, 2)
    a('v_min_u32 v4, 8, v1')
    a('v_lshlrev_b32 v4, 7, v4')
    a(f's_mov_b32 s57, {FLAG_OFF + 224*128}')
    a.label('L_wq')
    a(f'buffer_load_dwordx2 v[6:7], v{vZ}, s[48:51], 0 offen {OPT["ldsc"]}')
    a(f'buffer_load_dwordx2 v[{vF}:{vF+1}], v4, s[24:27], s57 offen {OPT["ldsc"]}')
    a('s_waitcnt vmcnt(0)')
    a('v_cmp_eq_u32 s[58:59], 0, v7')
    a(f'v_cmp_ne_u64 vcc, v[6:7], v[{vF}:{vF+1}]')
    a('s_or_b64 vcc, vcc, s[58:59]')
    spin_tail(a, 'L_wq')
    a(f'v_readfirstlane_b32 s{sN}, v6')
    a(f'v_readfirstlane_b32 s{sN+1}, v7')
    stamp(a, 3)
    a(f's_mov_b32 s57, {WQK_OFF}')
    a(f's_mov_b32 s58, {WQ_LDS}')
    for q in range(5):
        a('s_mov_b32 m0, s58')
        a('s_add_u32 s58, s58, 4096')
        for p in range(4 if q < 4 else 2):
            a(f'buffer_load_dwordx4 v{vDMA}, s[24:27], s57 offen offset:{1024*p} lds')
        a('s_add_u32 s57, s57, 4096')
    stamp(a, 4, True)
    a(f'v_add_u32 v31, {4*6144}, v31')
    a('s_waitcnt vmcnt(0)')
    probe(a, 'b2')
    a('ds_write_b32 v2, v3 offset:8')
    a('s_mov_b32 s59, 1')
    a.label('L_pw0')
    a('s_mov_b32 s55, 0')
    a(flag_load())
    a.label('L_pw')
    a('s_mov_b32 s57, 0')
    a.label('L_pw1')
    a('ds_read2_b32 v[4:5], v2 offset0:1 offset1:2')
    a('s_waitcnt lgkmcnt(0)')
    a('v_add_u32 v4, v4, v5')
    a('v_cmp_ne_u32 vcc, 4, v4')
    a('s_cbranch_vccz L_q')
    a('s_add_u32 s57, s57, 1')
    a(f's_cmp_lt_u32 s57, {OPT.get("npoll", 6)}')
    a('s_cbranch_scc1 L_pw1')
    checkpoint(0)
    a('s_branch L_pw')
    a.label('L_q')
    stamp(a, 5)
    a(f's_cmp_lg_u32 s{sW}, 3')
    a('s_cbranch_scc1 L_q2')
    xfrags(1)
    a.label('L_q2')
    a(f'v_add_u32 v4, {WQ_LDS}, v{vDMA}')
    for f in range(18):
        a(f'ds_read_b128 {wvo_reg(f)}, v4 offset:{1024*f}')
    for s in range(6):
        a(f'ds_read_b128 {rng("a", aV+4*s, 4)}, v8 offset:{128*s}')
    blocks = [(ti, ct) for ti in range(2) for ct in range(3)]
    def qfin(n):
        ti, ct = blocks[n]
        S = vS[n % 4]
        X = aX['own' if ti == 0 else 'B0'] + 8 * ct
        out = []
        for j in range(8):
            out.append(f'v_cvt_pk_bf16_f32 v{S+j}, v{S+2*j}, v{S+2*j+1}')
        for j in range(8):
            out.append(f'v_accvgpr_write_b32 a{X+j}, v{S+j}')
        if ti == 1:
            for k in range(2):
                out.append(f'ds_write_b128 v31, v[{S+4*k}:{S+4*k+3}] offset:{(2*ct+k)*1024}')
        return out
    def blk_mf(n):
        ti, ct = blocks[n]
        d = rng('v', vS[n % 4], 16)
        X = aX['B1' if ti == 0 else 'B2']
        return [f'v_mfma_f32_32x32x16_bf16 {d}, {wvo_reg(6*ct+s)}, {rng("a", X+4*s, 4)}, {"0" if s == 0 else d}' for s in range(6)]
    def lqk(t, sb):
        d = rng('v', vS[sb], 16)
        return [f'v_mfma_f32_32x32x16_bf16 {d}, {rng("a", aV+4*s, 4)}, {rng("a", aX[t]+4*s, 4)}, {"0" if s == 0 else d}' for s in range(6)]
    def mops(t, sb):
        S = vS[sb]
        return [f'v_max3_f32 v5, v{S}, v{S+1}, v{S+2}', f'v_max_f32 v5, v5, v{S+3}'] + [f'v_sub_f32 v{vM[t]+i}, 0, v5' for i in range(16)]
    m0_ = blk_mf(0); m1_ = blk_mf(1); m2_ = blk_mf(2)
    m0_[0] = 's_waitcnt lgkmcnt(15)\n' + m0_[0]
    m1_[0] = 's_waitcnt lgkmcnt(12)\n' + m1_[0]
    m2_[0] = 's_waitcnt lgkmcnt(6)\n' + m2_[0]
    weave(a, m0_ + m1_, [('at', 8)] + qfin(0))
    a('s_cmp_eq_u32 s59, 1')
    a('s_cbranch_scc1 L_pub_done')
    publish('b')
    a(flag_load())
    a.label('L_pub_done')
    weave(a, m2_ + blk_mf(3), [('at', 2)] + qfin(1) + [('at', 8)] + qfin(2))
    checkpoint(1)
    l0 = lqk('own', 2)
    l0[0] = 's_waitcnt lgkmcnt(4)\n' + l0[0]
    weave(a, blk_mf(4) + blk_mf(5) + l0,
          [('at', 2)] + qfin(3) + [('at', 8)] + qfin(4) + [('at', 14)] + qfin(5))
    stamp(a, 6)
    checkpoint(2)
    a(f's_lshl_b32 s60, s{sW}, 10')
    a(f's_add_u32 s60, s60, {MX_LDS}')
    a(f'v_add_u32 v3, s60, v{vDMA}')
    weave(a, lqk('B0', 3), [('at', 2)] + mops('own', 2) + [f'v_add_u32 v2, {XST}, v{vDMA}', f'v_mov_b32 v{vHI}, 0x{HI:08x}'])
    a('s_cmp_eq_u32 s55, 1')
    a('s_cbranch_scc1 L_g0_done')
    a('s_waitcnt vmcnt(0)')
    a(flag_cmp())
    a('s_cbranch_vccz L_w0_ok')
    spin(a, 'L_w0')
    g0_dma()
    a.label('L_g0_done')
    stamp(a, 7)
    for i in range(24):
        a(f'v_accvgpr_write_b32 a{aV+i}, 0')
    for x in mops('B0', 3): a(x)
    a(f'ds_write_b128 v3, {rng("v", vM["B0"], 4)}')
    for i in range(4):
        a(f'v_mov_b32 v{vS[3]+i}, 0')
        a(f'v_mov_b32 v{vS[3]+8+i}, 0')
    a('s_waitcnt vmcnt(0) lgkmcnt(0)')
    probe(a, 'b3')
    a('s_barrier')
    stamp(a, 8)
    for s in range(6):
        a(kread(0, s))
    a(flag_cmp())
    a(f's_cmp_lg_u32 s{sW}, 3')
    a('s_cbranch_scc1 L_owner')

    def first_qk_group1(tag, extra, nwait):
        a(f's_cbranch_vccz L_w1{tag}_ok')
        spin(a, f'L_w1{tag}')
        a(f's_mov_b32 m0, s{sTE}')
        a(f's_waitcnt lgkmcnt({nwait})')
        fill = []
        for q in range(3):
            fill += [('at', 2 * q), dma(q, 0), dma(q, 1)] + extra[8*q:8*q+4]
            fill += [('at', 2 * q + 1), dma(q, 2), dma(q, 3)] + extra[8*q+4:8*q+8]
            fill += [f's_add_u32 m0, s{sTE}, {(q+1)*4096}', f's_add_u32 s{sG[q]}, s{sG[q]}, {BUF}']
        weave(a, [qk_mfma('own', 0, s) for s in range(6)], fill, cap=8)
        a(f's_add_u32 s{sFO}, s{sFO}, 4096')
        a('s_waitcnt lgkmcnt(0)')
        a('s_nop 3')
        stamp(a, 11)
        stamp(a, 12, True)
        if OPT['stamps']: a('s_waitcnt lgkmcnt(0)')

    vhalf = [f'ds_read_b128 {rng("a", aV+4*ct, 4)}, v{vDMA} offset:{6144+1024*ct}' for ct in range(3)]
    wv = [f'ds_read_b128 {wvo_reg(f)}, v{vDMA} offset:{WVO_LDS + 1024*f}' for f in range(18)]
    PA = vS[0]
    PB = vS[2]

    ex = []
    for e, t in enumerate(('B0', 'B1', 'B2')):
        ex += [f'ds_read_b128 {rng("a", aX[t]+4*s, 4)}, v2 offset:{e*6144 + 1024*s}' for s in range(6)]
        ex += [f'ds_read_b128 {rng("v", vM[t]+4*k, 4)}, v2 offset:{24576 + 1024*e}' for k in range(4)]
    for x in ex[:6]: a(x)
    first_qk_group1('h', ex[6:], 6)
    gen_loop(a, True)
    stamp(a, 13); stamp(a, 14, True)
    a(f'v_add_u32 v5, {MERGE0}, v{vDMA}')
    a('v_lshlrev_b32 v2, 2, v1')
    a(f'v_add_u32 v2, {MERGE0}, v2')
    a(f's_mov_b32 s58, 0x{LO:08x}')
    a('s_waitcnt lgkmcnt(0)')
    wr = []
    for e, t in enumerate(('B0', 'B1', 'B2')):
        k, b = rO[t]
        wr += [f'ds_write_b128 v5, {rng(k, b+4*j, 4)} offset:{e*MERGE + 1024*j}' for j in range(12)]
        wr += [f'ds_write_b32 v2, v{vL[t]} offset:{e*MERGE + 12288}']
    mf = [pv_mfma('own', 3, t, ct) for t in range(2) for ct in range(3)]
    hs = half_softmax_ops(0, 'own')
    k = 0
    for n, x in enumerate(wr):
        a(x)
        if n % 6 == 1 and n // 6 < 6:
            a(mf[n // 6])
            if n // 6 < 3: a(vhalf[n // 6])
        elif k < len(hs) and n >= 3:
            a(hs[k]); k += 1
    for x in hs[k:]: a(x)
    if OPT.get('epi'): stamp(a, 3)
    a('s_waitcnt lgkmcnt(0)')
    if OPT.get('epi'): stamp(a, 4)
    probe(a, 'mg')
    a('s_barrier')
    if OPT.get('epi'): stamp(a, 5)
    weave(a, [pv_mfma('own', 0, 0, ct) for ct in range(3)], wv)
    for x in lsum_ops('own', 2, 'h'): a(x)
    if OPT.get('epi'): stamp(a, 6)
    cv = cvt_ops('own', PA)
    a('s_nop 1')
    a('v_mov_b32 v3, v2')
    for x in cv[:8]: a(x)
    a('s_waitcnt lgkmcnt(0)')
    if OPT.get('epi'): stamp(a, 7)
    weave(a, proj_mfmas('own', PA), cv[8:] + [('at', 8)] + fin_ops('own', 0, 2) + [('at', 14)] + fin_ops('own', 1, 2))
    if OPT.get('epi'): stamp(a, 8)
    a('s_nop 7')
    for x in fin_ops('own', 2, 2, pk=True): a(x)
    for x in store_ops(PB, sXo, 60): a(x)
    for x in store_ops2(PB, sXo, 60): a(x)
    stamp(a, 15)
    stamp_store(a)
    a('s_endpgm')
    slow_path(a, 'h')
    redo(a, 'own', 2, 'h')
    a.label('L_owner')
    first_qk_group1('o', [], 0)
    gen_loop(a, False)
    stamp(a, 13); stamp(a, 14, True)
    a(f's_mul_i32 s60, s{sW}, {MERGE}')
    a(f's_add_u32 s60, s60, {MERGE0}')
    a(f'v_add_u32 v6, s60, v{vDMA}')
    a('v_lshlrev_b32 v7, 2, v1')
    a('v_add_u32 v7, s60, v7')
    a(f's_mov_b32 s58, 0x{LO:08x}')
    a('s_waitcnt lgkmcnt(0)')
    mf = [qk_mfma('B0', 1, s) for s in range(6)] + [pv_mfma('own', 3, t, ct) for t in range(2) for ct in range(3)]
    hs = half_softmax_ops(0, 'own')
    fill = wv[0:4] + wv[8:10] + [('at', 1)] + wv[4:8] + wv[10:12] + [('at', 2)] + wv[12:18] + [('at', 3)] + hs[:9]
    fill += [('at', 6), vhalf[0]] + hs[9:14] + [('at', 7), vhalf[1]] + hs[14:19] + [('at', 8), vhalf[2]] + hs[19:]
    hb = half_softmax_ops(1, 'B0')
    fill += [('at', 9)] + hb[:10]
    weave(a, mf, fill)
    if OPT.get('epi'): stamp(a, 2)
    a('s_waitcnt lgkmcnt(0)')
    mf = [pv_mfma('own', 0, 0, ct) for ct in range(3)] + [pv_mfma('B0', 1, 0, ct) for ct in range(3)]
    ls = lsum_ops('own', 2, 'oo')
    weave(a, mf, hb[10:] + [('at', 3)] + ls[:7])
    if OPT.get('epi'): stamp(a, 3)
    for x in ls[7:]: a(x)
    cv = cvt_ops('own', PA)
    for x in cv[:8]: a(x)
    a('v_mov_b32 v3, v2')
    if OPT.get('epi'): stamp(a, 4)
    b = rO['B0'][1]
    TT = [56 + 4 * j for j in range(10)]
    rdm = [f'ds_read_b128 v[{TT[j]}:{TT[j]+3}], v6 offset:{1024*j}' for j in range(10)]
    g0 = OPT.get('mgat', 12)
    f0 = fin_ops('own', 0, 2); f1 = fin_ops('own', 1, 2)
    fill = cv[8:] + [('at', 8)] + f0[:24] + [('at', g0), 's_barrier'] + f0[24:] + ['ds_read_b32 v8, v7 offset:12288'] + rdm[:1]
    fill += [('at', g0 + 1)] + rdm[1:7] + [('at', g0 + 2)] + rdm[7:] + f1
    weave(a, proj_mfmas('own', PA), fill)
    for j in (10, 11):
        a(f'ds_read_b128 v[{PA+4*(j-10)}:{PA+4*(j-10)+3}], v6 offset:{1024*j}')
    TT += [PA, PA + 4]
    a('s_waitcnt lgkmcnt(6)')
    a(f'v_add_f32 v{vL["B0"]}, v{vL["B0"]}, v8')
    def padd(j):
        t = TT[j]
        a(f'v_pk_add_f32 v[{b+4*j}:{b+4*j+1}], v[{b+4*j}:{b+4*j+1}], v[{t}:{t+1}]')
        a(f'v_pk_add_f32 v[{b+4*j+2}:{b+4*j+3}], v[{b+4*j+2}:{b+4*j+3}], v[{t+2}:{t+3}]')
    for j in range(10): padd(j)
    for x in fin_ops('own', 2, 2, pk=True): a(x)
    a('s_waitcnt lgkmcnt(4)')
    padd(10); padd(11)
    if OPT.get('epi'): stamp(a, 6)
    so = store_ops(PA, sXo, 60)
    st2 = store_ops2(PA, sXo, 60, waits=False)
    ls = lsum_ops('B0', 2, 'ob')
    for x in ls[:7]: a(x)
    for x in so: a(x)
    for x in ls[7:]: a(x)
    cv = cvt_ops('B0', PB)
    for x in cv[:8]: a(x)
    a('v_mov_b32 v3, v2')
    if OPT.get('epi'): stamp(a, 7)
    f0 = fin_ops('B0', 0, 2); f1 = fin_ops('B0', 1, 2)
    fill = cv[8:14] + [('at', 1), 's_waitcnt lgkmcnt(0)', st2[0]] + cv[14:19] + [('at', 2), st2[1]] + cv[19:]
    for k in range(4):
        fill += [('at', 3 + k), st2[2 + k]]
    fill += [('at', 8)] + f0 + [('at', 14)] + f1
    weave(a, proj_mfmas('B0', PB), fill)
    a('s_nop 3')
    if OPT.get('epi'): stamp(a, 8)
    for x in fin_ops('B0', 2, 2, pk=True): a(x)
    for x in store_ops(PB, sXb, 60): a(x)
    for x in store_ops2(PB, sXb, 60): a(x)
    stamp(a, 15)
    stamp_store(a)
    a('s_endpgm')
    slow_path(a, 'o')
    redo(a, 'own', 2, 'oo')
    redo(a, 'B0', 2, 'ob')

def gen_spare(a):
    st = OPT['stsc']
    a.label('L_spare')
    a(f'''
    s_cmp_gt_u32 s{sW}, 1
    s_cbranch_scc1 L_end
    s_cmp_gt_u32 s2, 27
    s_cbranch_scc1 L_end
    v_mov_b32 v60, 1
    s_cmp_eq_u32 s2, 27
    s_cbranch_scc1 L_sp_nonce
    s_mul_i32 s28, s2, 57
    s_lshr_b32 s28, s28, 9
    s_mul_i32 s28, s28, 9
    s_sub_u32 s28, s2, s28
    s_mov_b32 s56, s8
    s_mov_b32 s57, s9
    s_mov_b32 s58, 36864
    s_mov_b32 s59, 0x20000
    v_and_b32 v3, 31, v1
    v_lshrrev_b32 v4, 5, v1
    v_mul_u32_u24 v6, 384, v3
    v_lshl_add_u32 v6, v4, 4, v6
    s_mul_i32 s29, s28, 11
    s_lshr_b32 s29, s29, 5
    s_mul_i32 s30, s29, 3
    s_sub_u32 s30, s28, s30
    s_mul_i32 s33, s30, 6
    s_lshl_b32 s34, s29, 1
    s_add_u32 s33, s33, s34
    s_lshl_b32 s33, s33, 10
    s_cmp_eq_u32 s{sW}, 1
    s_cbranch_scc1 L_sp_vo
    s_mov_b32 s52, s6
    s_mov_b32 s53, s7
    s_mov_b32 s54, 18432
    s_mov_b32 s55, 0x20000
    v_mul_u32_u24 v5, 192, v3
    v_lshl_add_u32 v5, v4, 4, v5
    s_mul_i32 s31, s29, {32*192}
    s_mul_i32 s32, s30, {32*384}
    ''')
    for s in range(6):
        a(f'buffer_load_dwordx4 v[{8+4*s}:{11+4*s}], v5, s[52:55], s31 offen offset:{32*s} {OPT.get("wsc", "")}')
        a(f'buffer_load_dwordx4 v[{32+4*s}:{35+4*s}], v6, s[56:59], s32 offen offset:{32*s} {OPT.get("wsc", "")}')
    a(f'''
    v_lshlrev_b32 v7, 4, v3
    v_lshl_add_u32 v7, v4, 3, v7
    s_add_u32 s33, s33, {WQK_OFF}
    s_mov_b32 s35, 0x{f32bits(CST):08x}
    s_add_u32 s36, s28, 224
    ''')
    for s in range(6):
        a(f's_waitcnt vmcnt({10-2*s})')
        a(f'v_mfma_f32_32x32x16_bf16 v[64:79], v[{8+4*s}:{11+4*s}], v[{32+4*s}:{35+4*s}], {"0" if s == 0 else "v[64:79]"}')
    stamp(a, 2, True)
    a('s_nop 15')
    for r in range(16):
        a(f'v_mul_f32 v{64+r}, s35, v{64+r}')
    for r in range(8):
        a(f'v_cvt_pk_bf16_f32 v{80+r}, v{64+2*r}, v{65+2*r}')
    for i in range(4):
        a(f'buffer_store_dwordx2 v[{80+2*i}:{81+2*i}], v7, s[24:27], s33 offen offset:{(i>>1)*1024 + (i&1)*512} {st}')
    a('s_branch L_sp_flag')
    a.label('L_sp_vo')
    a(f'''
    s_cmp_gt_u32 s2, 8
    s_cbranch_scc1 L_end
    s_mov_b32 s20, s10
    s_mov_b32 s21, s11
    s_mov_b32 s22, 18432
    s_mov_b32 s23, 0x20000
    v_lshlrev_b32 v7, 4, v1
    v_lshrrev_b32 v56, 2, v1
    v_and_b32 v57, 3, v1
    v_mul_u32_u24 v56, 192, v56
    v_lshl_add_u32 v56, v57, 4, v56
    s_lshl_b32 s31, s30, 6
    s_mov_b32 s34, 0
    ''')
    for p in range(6):
        a('s_mov_b32 m0, s34')
        a('s_add_u32 s34, s34, 1024')
        a('buffer_load_dwordx4 v56, s[20:23], s31 offen lds')
        a(f's_add_u32 s31, s31, {16*192}')
    a(f's_mul_i32 s32, s29, {32*384}')
    for s in range(6):
        a(f'buffer_load_dwordx4 v[{8+4*s}:{11+4*s}], v6, s[56:59], s32 offen offset:{192+32*s}')
    a(f'''
    v_bfe_u32 v56, v1, 2, 2
    v_lshl_add_u32 v56, v4, 3, v56
    v_lshlrev_b32 v56, 6, v56
    v_bfe_u32 v58, v1, 4, 1
    v_lshl_add_u32 v56, v58, 5, v56
    v_lshl_add_u32 v56, v57, 3, v56
    s_add_u32 s33, s33, {WVO_OFF}
    s_mul_i32 s36, s30, 3
    s_add_u32 s36, s36, s29
    s_add_u32 s36, s36, 200
    s_cmp_eq_u32 s30, 2
    s_cselect_b32 s34, 2, 0
    s_add_u32 s36, s36, s34
    s_waitcnt vmcnt(6)
    ''')
    for s in range(6):
        for half in range(2):
            a(f'ds_read_b64_tr_b16 v[{32+4*s+2*half}:{33+4*s+2*half}], v56 offset:{s*1024 + half*256}')
    a('s_waitcnt vmcnt(0) lgkmcnt(0)')
    for s in range(6):
        a(f'v_mfma_f32_32x32x16_bf16 v[64:79], v[{8+4*s}:{11+4*s}], v[{32+4*s}:{35+4*s}], {"0" if s == 0 else "v[64:79]"}')
    a('s_nop 15')
    for r in range(8):
        a(f'v_cvt_pk_bf16_f32 v{80+r}, v{64+2*r}, v{65+2*r}')
    for k in range(2):
        a(f'buffer_store_dwordx4 v[{80+4*k}:{83+4*k}], v7, s[24:27], s33 offen offset:{1024*k} {st}')
    a.label('L_sp_flag')
    a(f'''
    v_mov_b32 v{vZ}, 0
    s_mov_b32 s{sSP}, 0
    s_lshl_b32 s36, s36, 7
    s_add_u32 s36, s36, {FLAG_OFF}
    ''')
    stamp(a, 3, True)
    nonce_spin(a, 'L_sp_n')
    stamp(a, 4, True)
    a(f'''
    s_mov_b64 exec, 1
    buffer_store_dwordx2 v[{vF}:{vF+1}], v{vZ}, s[24:27], s36 offen {st}
    ''')
    stamp_store(a)
    a('s_endpgm')
    a.label('L_sp_nonce')
    a(f'''
    s_cmp_lg_u32 s{sW}, 0
    s_cbranch_scc1 L_end
    s_memrealtime s[28:29]
    v_mov_b32 v4, 0
    s_waitcnt lgkmcnt(0)
    s_or_b32 s29, s29, 0x40000000
    v_mov_b32 v2, s28
    v_mov_b32 v3, s29
    s_mov_b64 exec, 1
    buffer_store_dwordx2 v[2:3], v4, s[48:51], 0 offen {st}
    s_mov_b32 exec_lo, 0x{DUMMY & 0xffffffff:08x}
    s_mov_b32 exec_hi, 0
    v_lshlrev_b32 v4, 7, v1
    s_mov_b32 s30, {FLAG_OFF + 192*128}
    buffer_store_dwordx2 v[2:3], v4, s[24:27], s30 offen {st}
    s_endpgm
    ''')

def build(path):
    a = Asm()
    a.raw(f'.globl {NAME}')
    a.raw('.p2align 8')
    a.raw(f'.type {NAME},@function')
    a.label(NAME)
    a(f'''
    s_cmp_ge_u32 s2, {NSP+NCONS}
    s_cbranch_scc1 L_end
    ''')
    stamp(a, 0, True)
    stamp(a, 1)
    if OPT.get('probe'): a('s_memrealtime s[100:101]')
    a(f'''
    s_load_dwordx8 s[4:11], s[0:1], 0
    s_load_dwordx2 s[12:13], s[0:1], 32
    s_load_dwordx4 s[44:47], s[0:1], 40
    v_lshrrev_b32 v2, 6, v0
    v_and_b32 v1, 63, v0
    v_readfirstlane_b32 s{sW}, v2
    s_waitcnt lgkmcnt(0)
    s_mov_b32 s16, s4
    s_mov_b32 s17, s5
    s_mov_b32 s18, {X_BYTES}
    s_mov_b32 s19, 0x20000
    s_mov_b32 s24, s46
    s_mov_b32 s25, s47
    s_mov_b32 s26, {WS_BYTES}
    s_mov_b32 s27, 0x20000
    s_mov_b32 s48, s44
    s_mov_b32 s49, s45
    s_mov_b32 s50, 256
    s_mov_b32 s51, 0x20000
    ''')
    lay = OPT.get('layout', 'C')
    if lay == 'A':
        a(f's_cmp_ge_u32 s2, {NSP}')
        a('s_cbranch_scc1 L_cons')
        gen_spare(a)
        a.label('L_cons')
        gen_consumer(a)
    else:
        a(f's_cmp_lt_u32 s2, {NSP}')
        a('s_cbranch_scc1 L_spare')
        gen_consumer(a)
        if lay == 'B': gen_spare(a)
    a.label('L_end')
    a('s_endpgm')
    out = HEADER
    out += f'; @launch grid=({NSP+NCONS},1,1) block=(256,1,1) lds={LDS_TOTAL}\n'
    out += '.amdgcn_target "amdgcn-amd-amdhsa--gfx950"\n.text\n'
    out += a.text()
    out += '.section .rodata,"a"\n.p2align 6\n'
    out += kd(NAME, 512, 256)
    open(path, 'w').write(out)

if __name__ == '__main__':
    for o in sys.argv[2:]:
        if '=' in o:
            k, v = o.split('=')
            OPT[k] = int(v) if v.isdigit() else v.replace('+', ' ')
        else:
            OPT[o] = True
    build(sys.argv[1] if len(sys.argv) > 1 else 'k12.s')
```

```python
import sys, math, struct
from gen import Asm, f32bits, kd, HEADER, X_BYTES, CST

NAME = 'standalone__window_attn_twins__vision_kernel'
NSP, NCONS = 32, 224
OPT = dict(stamps=False, sleep=4)
PC = 1088
TILE = 6 * PC
GB = 4 * TILE
WQK_OFF = 28 * TILE
FLAG_OFF = WQK_OFF + 18432
WS_BYTES = FLAG_OFF + 256 * 128
XST = 3 * GB
QX_LDS = XST
MX_LDS = XST + 24576
WQ_LDS = XST + 49152
LK_LDS = WQ_LDS + 18432
NC_LDS = LK_LDS + 768
MERGE = 12544
MERGE0 = XST
OST = 6656
STG0 = MERGE0 + 3 * MERGE
LDS_TOTAL = NC_LDS + 256
assert STG0 + 4 * OST <= LDS_TOTAL and FLAG_OFF % 128 == 0
SPIN_MAX = 0x8000

vFO2 = 0; vFO = 11
vKA = [12, 13, 14, 15]; vVA = [4, 5, 6, 7]; vVB = [8, 10, 29, 30]
vDMA = 16
vL = {'own': 17, 'B0': 18, 'B1': 19, 'B2': 20}
vXO = 21; vF = 22; vZ = 24; vRB = [25, 26, 27]; vSW = 28; vHI = 9
vS = [32, 48, 64, 80]
vM = {'own': 96, 'B0': 112, 'B1': 128, 'B2': 144}
rO = {'own': ('v', 160), 'B0': ('v', 208), 'B1': ('a', 0), 'B2': ('a', 48)}
aX = {'own': 96, 'B0': 120, 'B1': 144, 'B2': 168}
aK = 192; aV = 216
sN = 4; sW = 14; sSP = 15
sCNT = 28; sT = 29; sG = [30, 31]; sDn = 33; sDp = 34; sTE = 35; sTMP = 36; sXo = 37; sXb = 38; sXB = 39; sXS = 40
sFO = 41; sD0 = 42; sK0 = 43; sU = 53; sWT = 54; sFM = 61
ST0 = 62
_used = set(range(192, 196)) | {200 + 8 * b + k for b in range(3) for k in range(3)}
DUMMY = sum(1 << (b - 192) for b in range(192, 224) if b not in _used)
LO = f32bits(2.0 ** -90); HI = f32bits(2.0 ** 90)

def rng(kind, base, n): return f'{kind}[{base}:{base+n-1}]'
def stamp(a, idx, rt=False):
    if OPT['stamps']: a(f's_mem{"real" if rt else ""}time s[{ST0+2*idx}:{ST0+1+2*idx}]')
def stamp_store(a, n=11):
    if not OPT['stamps']: return
    a('s_mov_b64 exec, -1')
    a('s_waitcnt vmcnt(0) lgkmcnt(0)')
    a(f's_memtime s[{ST0+2*(n-2)}:{ST0+1+2*(n-2)}]')
    a(f's_memrealtime s[{ST0+2*(n-1)}:{ST0+1+2*(n-1)}]')
    a('s_waitcnt lgkmcnt(0)')
    a('s_mov_b32 s26, 0x1000000')
    a('s_lshl_b32 s3, s2, 2')
    a(f's_add_u32 s3, s3, s{sW}')
    a('s_lshl_b32 s3, s3, 6')
    a('s_add_u32 s3, s3, 0x100000')
    a('v_mov_b32 v2, 0')
    for i in range(16):
        a(f'v_mov_b32 v3, s{ST0+2*i}')
        a(f'buffer_store_dword v3, v2, s[24:27], s3 offen offset:{4*i}')

def qk_mfma(tile, sbuf, s, cinit=None):
    d = rng('v', vS[sbuf], 16)
    c = d if s else (rng('v', vM[tile], 16) if cinit is None else cinit)
    return f'v_mfma_f32_32x32x16_bf16 {d}, {rng("a", aK+4*s, 4)}, {rng("a", aX[tile]+4*s, 4)}, {c}'
def pv_mfma(tile, sbuf, t, ct):
    k, b = rO[tile]
    d = rng(k, b + 16 * ct, 16)
    return f'v_mfma_f32_32x32x16_bf16 {d}, {rng("a", aV+4*(3*t+ct), 4)}, {rng("v", vS[sbuf]+8*t, 4)}, {d}'
def koff(s):
    ct, e = s >> 1, s & 1
    return 2 * PC * e + 512 * ct if ct < 2 else 4 * PC + 512 * e
def kread(reg, s):
    return f'ds_read_b128 {rng("a", aK+4*s, 4)}, v{reg} offset:{koff(s)}'
def vread(ra, rb, t, ct):
    r = aV + 4 * (3 * t + ct)
    base = (512 * ct if ct < 2 else 4 * PC) + 256 * t
    reg = ra if ct < 2 else rb
    return [f'ds_read_b64_tr_b16 a[{r+2*h}:{r+2*h+1}], v{reg} offset:{base + 128*h}' for h in range(2)]
def dma(i):
    q, p = (0, i) if i < 4 else (1, i - 4)
    return f'buffer_load_dwordx4 v{vDMA}, s[24:27], s{sG[q]} offen offset:{PC*p} sc1 lds'
def flag_load(): return f'buffer_load_dwordx2 v[{vF}:{vF+1}], v{vFO}, s[24:27], s{sFO} offen sc1'
def flag2_load(): return f'buffer_load_dwordx2 v[{vF}:{vF+1}], v{vFO2}, s[24:27], s{sFO} offen sc1'
def flag_cmp(): return f'v_cmp_ne_u64 vcc, s[{sN}:{sN+1}], v[{vF}:{vF+1}]'
def wreg(f): return rng('v', vM['own'] + 4 * f, 4) if f < 16 else rng('a', 244 + 4 * (f - 16), 4)

def spin_tail(a, lbl):
    a(f's_cbranch_vccz {lbl}_ok')
    a(f's_sleep {OPT["sleep"]}')
    a(f's_add_u32 s{sSP}, s{sSP}, 1')
    a(f's_cmp_lt_u32 s{sSP}, {SPIN_MAX:#x}')
    a(f's_cbranch_scc1 {lbl}')
    a.label(lbl + '_ok')
def nonce_spin(a, lbl):
    a.label(lbl)
    a(f'buffer_load_dwordx2 v[{vF}:{vF+1}], v{vZ}, s[48:51], 0 offen sc1')
    a('s_waitcnt vmcnt(0)')
    a(f'v_cmp_eq_u32 vcc, 0, v{vF+1}')
    spin_tail(a, lbl)
def spin(a, lbl):
    a.label(lbl)
    a(flag_load())
    a('s_waitcnt vmcnt(0)')
    a(flag_cmp())
    spin_tail(a, lbl)

def softmax_ops(tile, sbuf):
    S = vS[sbuf]; L = vL[tile]
    E = lambda i: (f'v_exp_f32 v{S+i}, v{S+i}', 2, ('E', i))
    A = lambda i: (f'v_add_f32 v{L}, v{L}, v{S+i}', 1, ('A', i))
    def C(p):
        t, j = divmod(p, 4)
        return (f'v_cvt_pk_bf16_f32 v{S+8*t+j}, v{S+2*p}, v{S+2*p+1}', 1, ('C', p))
    ops = [E(0), E(1)]
    for p in range(1, 8):
        ops += [E(2*p), A(2*p-2), E(2*p+1), A(2*p-1), C(p-1)]
    return ops + [A(14), A(15), C(7)]
def ready(op, seq):
    kind, i = op[2]
    pos = lambda tag: seq.index(tag) if tag in seq else None
    n = len(seq)
    if kind == 'A':
        p = pos(('E', i)); return p is not None and n - p >= 2
    if kind == 'C':
        for q in (2*i, 2*i+1):
            e = pos(('E', q))
            if e is None or n - e < 2 or pos(('A', q)) is None: return False
        t, j = divmod(i, 4); dst = 8*t + j
        if pos(('A', dst)) is None: return False
        if dst // 2 != i and pos(('C', dst // 2)) is None: return False
    return True
def schedule_stage(a, mfmas, shadow, mem, pre, valu, extra, carry, may_carry):
    q = list(valu) + [(t, 1, ('X', k)) for k, t in enumerate(extra)]
    cq = list(carry)
    seq = []
    ng = len(mfmas)
    total = sum(o[1] for o in q) + len(cq)
    caps = [6 - len(mem.get(g, [])) - len(pre.get(g, [])) for g in range(ng)]
    used = 0
    for g in range(ng):
        a(mfmas[g]); seq.append(None)
        if g in shadow: a(shadow[g]); seq.append(None)
        for m in pre.get(g, []) + mem.get(g, []):
            a(m); seq.append(None)
        cap = caps[g]
        while cap > 0 and cq:
            a(cq.pop(0)); seq.append(None); cap -= 1; used += 1
        rest = sum(caps[g+1:])
        while cap > 0 and q:
            remaining = sum(o[1] for o in q)
            if used >= total * (g + 1) / ng and remaining <= rest - 2 * (ng - g - 1) // 3: break
            pick = next((k for k, o in enumerate(q[:6]) if o[1] <= cap and ready(o, seq)), None)
            if pick is None: break
            o = q.pop(pick)
            a(o[0]); seq.append(o[2]); cap -= o[1]; used += o[1]
    assert not cq
    if q:
        assert may_carry and all(o[1] == 1 for o in q) and len(q) <= 6, [o[0] for o in q]
    return [o[0] for o in q]

def cost(ins): return 2 if ins.startswith(('v_exp', 'v_rcp')) else 1
def weave(a, mfmas, fill, cap=6):
    q = list(fill)
    for g, m in enumerate(mfmas):
        a(m)
        c = cap; first = True; pv = False
        while q:
            it = q[0]
            if isinstance(it, tuple):
                if it[1] > g: break
                q.pop(0); continue
            k = 0 if (it.startswith('s_') and first) else cost(it)
            if it.startswith(('ds_', 'buffer_')) and pv: break
            if k > c: break
            a(q.pop(0)); c -= k; first = False
            pv = pv or it.startswith('v_')
    for it in q:
        if not isinstance(it, tuple): a(it)

def gen_loop(a, helper):
    nm = 'h' if helper else 'o'
    B = ['B0', 'B1', 'B2'] if helper else ['B0', 'B0', 'B0']
    units = [('own', 0), (B[0], 0), ('own', 1), (B[1], 1), ('own', 2), (B[2], 2), ('own', 3)]
    sb = [0, 1, 2, 0, 1, 2, 3]
    a.raw('.p2align 6')
    a.label(f'L_loop_{nm}')
    kload = {0: 1, 2: 2, 4: 3, 5: 0}
    vload = {2: 1, 4: 2, 6: 3, 0: 0}
    adv = lambda r, s: f'v_add_u32 v{r}, s{s}, v{r}'
    carry = []
    for u in range(7):
        nxt, prv = (u + 1) % 7, (u - 1) % 7
        mf = [qk_mfma(units[nxt][0], sb[nxt], s) for s in range(6)]
        mf += [pv_mfma(units[prv][0], sb[prv], t, ct) for t in range(2) for ct in range(3)]
        shadow = {}; mem = {}; pre = {}; extra = []
        if u in kload:
            for s in range(6): mem.setdefault(s, []).append(kread(vKA[kload[u]], s))
        if u in vload:
            p = vload[u]
            for t in range(2):
                for ct in range(3): mem.setdefault(6 + 3*t + ct, []).extend(vread(vVA[p], vVB[p], t, ct))
        if prv in vload: shadow[5] = f's_waitcnt lgkmcnt({5 if u in kload else 0})'
        if u in kload: shadow[11] = f's_waitcnt lgkmcnt({10 if u in vload else 0})'
        if u == 0:
            shadow[0] = f's_cmp_lt_u32 s{sCNT}, 5'
            shadow[1] = f's_cselect_b32 s{sTMP}, 0, s{sK0}'
            shadow[2] = f's_cselect_b32 s{sTE}, s{sT}, 0x30000'
            shadow[3] = f's_sub_u32 s{sD0}, s{sDn}, s{sTMP}'
            shadow[4] = f's_add_u32 s{sT}, s{sT}, s{sDp}'
        if u == 1:
            mem.setdefault(0, []).append(flag_load())
            extra += [adv(vKA[1], sDn), adv(vVA[0], sD0), adv(vVB[0], sD0), adv(vVA[3], sDp), adv(vVB[3], sDp), adv(vKA[0], sD0)]
        if u == 3:
            shadow[0] = 's_waitcnt vmcnt(0)'
            pre[0] = ['s_barrier']
            pre[1] = [flag_cmp()]
            shadow[2] = f's_mov_b32 m0, s{sTE}'
            shadow[3] = f's_cbranch_vccnz L_slow_{nm}\nL_back_{nm}:'
            for i, g in enumerate((4, 6, 7, 8)): mem.setdefault(g, []).append(dma(i))
            shadow[9] = f's_add_u32 m0, s{sTE}, {4*PC}'
            for i, g in enumerate((10, 11)): mem.setdefault(g, []).append(dma(4 + i))
            extra += [adv(vKA[2], sDn)]
        if u == 4:
            shadow[0] = f's_add_u32 s{sFO}, s{sFO}, 4096'
            shadow[1] = f's_min_u32 s{sFO}, s{sFO}, s{sFM}'
            shadow[2] = f's_add_u32 s{sG[0]}, s{sG[0]}, {GB}'
            shadow[3] = f's_add_u32 s{sG[1]}, s{sG[1]}, {GB}'
        if u == 5:
            extra += [adv(vVA[1], sDn), adv(vVB[1], sDn), adv(vKA[3], sDn), adv(vVA[2], sDn), adv(vVB[2], sDn)]
        if u == 6:
            shadow[1] = f's_add_u32 s{sTMP}, s{sDn}, s{sDp}'
            shadow[2] = f's_mov_b32 s{sDp}, s{sDn}'
            shadow[3] = f's_sub_u32 s{sDn}, 0, s{sTMP}'
            shadow[4] = f's_add_u32 s{sCNT}, s{sCNT}, 1'
            shadow[5] = f's_cmp_lt_u32 s{sCNT}, 6'
        carry = schedule_stage(a, mf, shadow, mem, pre, softmax_ops(units[u][0], sb[u]), extra, carry, u in (0, 2, 4))
    assert not carry
    a(f's_cbranch_scc1 L_loop_{nm}')

def slow_path(a, nm):
    a.label(f'L_slow_{nm}')
    spin(a, f'L_spin_{nm}')
    a(f's_branch L_back_{nm}')

def lane_addr(a, rK, rA, rB, t0, t1):
    a(f'''
    v_lshrrev_b32 v{t0}, 5, v1
    v_mul_u32_u24 v{rK}, {PC}, v{t0}
    v_and_b32 v{t1}, 31, v1
    v_lshl_add_u32 v{rK}, v{t1}, 4, v{rK}
    v_bfe_u32 v{t1}, v1, 2, 2
    v_lshl_add_u32 v{t1}, v{t0}, 2, v{t1}
    v_lshlrev_b32 v{rB}, 4, v{t1}
    v_bfe_u32 v{t1}, v1, 1, 1
    v_lshl_add_u32 v{rB}, v{t1}, 3, v{rB}
    v_and_b32 v{t1}, 1, v1
    v_mul_u32_u24 v{t1}, {PC}, v{t1}
    v_add_u32 v{rB}, v{rB}, v{t1}
    v_bfe_u32 v{t1}, v1, 4, 1
    v_mul_u32_u24 v{t0}, {2*PC}, v{t1}
    v_add_u32 v{rA}, v{rB}, v{t0}
    v_lshl_add_u32 v{rB}, v{t1}, 9, v{rB}
    ''')

def half_softmax_ops(sbuf, tile):
    S = vS[sbuf]; L = vL[tile]
    o = [f'v_exp_f32 v{S+i}, v{S+i}' for i in range(8)]
    o += [f'v_add_f32 v{L}, v{L}, v{S+i}' for i in range(8)]
    o += [f'v_cvt_pk_bf16_f32 v{S+j}, v{S+2*j}, v{S+2*j+1}' for j in range(4)]
    return o
def lsum_ops(tile, r, tag):
    L = vL[tile]
    return [f'v_mov_b32 v{r}, v{L}', 's_nop 1', f'v_permlane32_swap_b32 v{L}, v{r}', 's_nop 0',
            f'v_add_f32 v{r}, v{L}, v{r}', f'v_med3_f32 v{r+1}, v{r}, s58, v{vHI}', f'v_cmp_neq_f32 vcc, v{r+1}, v{r}',
            f's_cbranch_vccnz L_redo_{tag}', f'L_redone_{tag}:', f'v_rcp_f32 v{r}, v{r}']
def redo(a, tile, r, tag):
    k, b = rO[tile]
    L = vL[tile]; X = aX[tile]; S = vS[2]; M = vS[3]
    sd = rng('v', S, 16)
    rK, rA, rB = 12, 13, 14
    a.label(f'L_redo_{tag}')
    a('s_waitcnt vmcnt(0) lgkmcnt(0)')
    lane_addr(a, rK, rA, rB, 4, 5)
    a(f's_mul_i32 s59, s{sW}, {OST}')
    a(f's_add_u32 s59, s59, {STG0}')
    for x in (rK, rA, rB): a(f'v_add_u32 v{x}, s59, v{x}')
    a('v_mov_b32 v4, 0xff800000')
    a('s_mov_b32 s55, 0')
    def stage():
        a('s_mov_b32 m0, s59')
        a(f's_add_u32 s57, s55, {4*PC}')
        for p in range(4): a(f'buffer_load_dwordx4 v{vDMA}, s[24:27], s55 offen offset:{PC*p} sc1 lds')
        a(f's_add_u32 m0, s59, {4*PC}')
        a('s_nop 0')
        for p in range(2): a(f'buffer_load_dwordx4 v{vDMA}, s[24:27], s57 offen offset:{PC*p} sc1 lds')
        a('s_waitcnt vmcnt(0)')
        for s in range(6): a(kread(rK, s))
    def qk(c):
        a('s_waitcnt lgkmcnt(0)')
        for s in range(6):
            a(f'v_mfma_f32_32x32x16_bf16 {sd}, {rng("a", aK+4*s, 4)}, {rng("a", X+4*s, 4)}, {c if s == 0 else sd}')
        a('s_nop 15')
    def mx(n):
        for i in range(0, n, 2): a(f'v_max3_f32 v4, v4, v{S+i}, v{S+i+1}')
    a.label(f'L_redo1_{tag}')
    stage(); qk('0')
    a(f's_cmp_eq_u32 s55, {24*TILE}')
    a(f's_cbranch_scc1 L_redo1e_{tag}')
    mx(16)
    a(f's_add_u32 s55, s55, {TILE}')
    a(f's_branch L_redo1_{tag}')
    a.label(f'L_redo1e_{tag}')
    mx(8)
    a('v_mov_b32 v5, v4')
    a('s_nop 1')
    a('v_permlane32_swap_b32 v4, v5')
    a('s_nop 0')
    a('v_max_f32 v4, v4, v5')
    for i in range(16): a(f'v_sub_f32 v{M+i}, 0, v4')
    for i in range(48): a(f'v_mov_b32 v{b+i}, 0')
    a(f'v_mov_b32 v{L}, 0')
    a('s_mov_b32 s55, 0')
    def sm(n):
        for i in range(n): a(f'v_exp_f32 v{S+i}, v{S+i}')
        a('s_nop 0')
        for i in range(n): a(f'v_add_f32 v{L}, v{L}, v{S+i}')
        for p in range(n // 2):
            t, j = divmod(p, 4)
            a(f'v_cvt_pk_bf16_f32 v{S+8*t+j}, v{S+2*p}, v{S+2*p+1}')
        a('s_nop 1')
        for t in range(n // 8):
            for ct in range(3): a(pv_mfma(tile, 2, t, ct))
    a.label(f'L_redo2_{tag}')
    stage()
    for t in range(2):
        for ct in range(3):
            for x in vread(rA, rB, t, ct): a(x)
    qk(rng('v', M, 16))
    a(f's_cmp_eq_u32 s55, {24*TILE}')
    a(f's_cbranch_scc1 L_redo2e_{tag}')
    sm(16)
    a(f's_add_u32 s55, s55, {TILE}')
    a(f's_branch L_redo2_{tag}')
    a.label(f'L_redo2e_{tag}')
    sm(8)
    a(f'v_mov_b32 v{r}, v{L}')
    a('s_nop 1')
    a(f'v_permlane32_swap_b32 v{L}, v{r}')
    a('s_nop 0')
    a(f'v_add_f32 v{r}, v{L}, v{r}')
    a('s_nop 15')
    a(f's_branch L_redone_{tag}')
def cvt_ops(tile, P):
    b = rO[tile][1]
    return [f'v_cvt_pk_bf16_f32 v{P+j}, v{b+2*j}, v{b+2*j+1}' for j in range(24)]
def proj_mfmas(tile, P):
    b = rO[tile][1]; m = []
    for cot in range(3):
        d = rng('v', b + 16 * cot, 16)
        for s in range(6):
            m.append(f'v_mfma_f32_32x32x16_bf16 {d}, {wreg(6*cot+s)}, {rng("v", P+4*s, 4)}, {"0" if s == 0 else d}')
    return m
def fin_ops(tile, cot, r, pk=False):
    o = rO[tile][1] + 16 * cot
    out = []
    for j in range(8):
        if pk:
            out.append(f'v_pk_mul_f32 v[{o+2*j}:{o+2*j+1}], v[{o+2*j}:{o+2*j+1}], v[{r}:{r+1}]')
        else:
            out += [f'v_mul_f32 v{o+2*j}, v{r}, v{o+2*j}', f'v_mul_f32 v{o+2*j+1}, v{r}, v{o+2*j+1}',
                    f'v_cvt_pk_bf16_f32 v{o+j}, v{o+2*j}, v{o+2*j+1}']
    if pk: out += [f'v_cvt_pk_bf16_f32 v{o+j}, v{o+2*j}, v{o+2*j+1}' for j in range(8)]
    return out + [f'ds_write_b64 v{vSW}, v[{o+2*i}:{o+2*i+1}] offset:{64*cot+16*i}' for i in range(4)]
def store_ops(R, soff, s2):
    return ['s_waitcnt lgkmcnt(0)'] + [f'ds_read_b128 v[{R+4*j}:{R+4*j+3}], v{vRB[j%3]} offset:{(j//3)*16*208}' for j in range(6)] + [f's_add_u32 s{s2}, s{soff}, 4096']
def store_ops2(R, soff, s2, waits=True):
    o = []
    for j in range(6):
        if waits: o.append(f's_waitcnt lgkmcnt({5-j})')
        o.append(f'buffer_store_dwordx4 v[{R+4*j}:{R+4*j+3}], v{vDMA}, s[20:23], s{soff if j < 4 else s2} offen offset:{1024*(j%4)} nt')
    return o

def code_prefetch(a):
    a('s_getpc_b64 s[58:59]')
    a.label('L_pc')
    a(f's_sub_u32 s58, s58, L_pc-{NAME}')
    a('s_subb_u32 s59, s59, 0')
    a('v_lshlrev_b32 v6, 7, v1')
    for k in range(3):
        a(f'v_min_u32 v7, L_end-{NAME}, v6')
        a('v_mov_b32 v5, s59')
        a('v_add_co_u32 v4, vcc, s58, v7')
        a('v_addc_co_u32 v5, vcc, 0, v5, vcc')
        a(f'global_load_dword a{252+k}, v[4:5], off')
        if k < 2: a('v_add_u32 v6, 0x2000, v6')

def gen_spare(a):
    a.label('L_spare')
    a(f'''
    s_cmp_gt_u32 s{sW}, 1
    s_cbranch_scc1 L_end
    s_cmp_gt_u32 s2, 27
    s_cbranch_scc1 L_end
    s_cmp_eq_u32 s2, 27
    s_cbranch_scc1 L_sp_nonce
    s_mul_i32 s28, s2, 57
    s_lshr_b32 s28, s28, 9
    s_mul_i32 s28, s28, 9
    s_sub_u32 s28, s2, s28
    s_mov_b32 s56, s8
    s_mov_b32 s57, s9
    s_mov_b32 s58, 36864
    s_mov_b32 s59, 0x20000
    v_and_b32 v3, 31, v1
    v_lshrrev_b32 v4, 5, v1
    v_mul_u32_u24 v6, 384, v3
    v_lshl_add_u32 v6, v4, 4, v6
    s_mul_i32 s29, s28, 11
    s_lshr_b32 s29, s29, 5
    s_mul_i32 s30, s29, 3
    s_sub_u32 s30, s28, s30
    s_cmp_eq_u32 s{sW}, 1
    s_cbranch_scc1 L_sp_vo
    s_mov_b32 s52, s6
    s_mov_b32 s53, s7
    s_mov_b32 s54, 18432
    s_mov_b32 s55, 0x20000
    v_mul_u32_u24 v5, 192, v3
    v_lshl_add_u32 v5, v4, 4, v5
    s_mul_i32 s31, s29, {32*192}
    s_mul_i32 s32, s30, {32*384}
    ''')
    for s in range(6):
        a(f'buffer_load_dwordx4 v[{8+4*s}:{11+4*s}], v5, s[52:55], s31 offen offset:{32*s}')
        a(f'buffer_load_dwordx4 v[{32+4*s}:{35+4*s}], v6, s[56:59], s32 offen offset:{32*s}')
    a(f'''
    v_lshlrev_b32 v7, 4, v3
    v_lshl_add_u32 v7, v4, 3, v7
    s_mul_i32 s33, s30, 6
    s_lshl_b32 s34, s29, 1
    s_add_u32 s33, s33, s34
    s_lshl_b32 s33, s33, 10
    s_add_u32 s33, s33, {WQK_OFF}
    s_mov_b32 s35, 0x{f32bits(CST):08x}
    s_add_u32 s36, s28, 224
    ''')
    for s in range(6):
        a(f's_waitcnt vmcnt({10-2*s})')
        a(f'v_mfma_f32_32x32x16_bf16 v[64:79], v[{8+4*s}:{11+4*s}], v[{32+4*s}:{35+4*s}], {"0" if s == 0 else "v[64:79]"}')
    a('s_nop 15')
    for r in range(16): a(f'v_mul_f32 v{64+r}, s35, v{64+r}')
    for r in range(8): a(f'v_cvt_pk_bf16_f32 v{80+r}, v{64+2*r}, v{65+2*r}')
    for i in range(4):
        a(f'buffer_store_dwordx2 v[{80+2*i}:{81+2*i}], v7, s[24:27], s33 offen offset:{(i>>1)*1024 + (i&1)*512} sc1')
    a.label('L_sp_flag')
    a(f'''
    v_mov_b32 v{vZ}, 0
    s_mov_b32 s{sSP}, 0
    s_lshl_b32 s36, s36, 7
    s_add_u32 s36, s36, {FLAG_OFF}
    ''')
    nonce_spin(a, 'L_sp_n')
    a(f'''
    s_mov_b64 exec, 1
    buffer_store_dwordx2 v[{vF}:{vF+1}], v{vZ}, s[24:27], s36 offen sc1
    s_endpgm
    ''')
    a.label('L_sp_nonce')
    a(f'''
    s_cmp_lg_u32 s{sW}, 0
    s_cbranch_scc1 L_end
    s_memrealtime s[28:29]
    v_mov_b32 v4, 0
    s_waitcnt lgkmcnt(0)
    s_or_b32 s29, s29, 0x40000000
    v_mov_b32 v2, s28
    v_mov_b32 v3, s29
    s_mov_b64 exec, 1
    buffer_store_dwordx2 v[2:3], v4, s[48:51], 0 offen sc1
    s_mov_b32 exec_lo, 0x{DUMMY & 0xffffffff:08x}
    s_mov_b32 exec_hi, 0
    v_lshlrev_b32 v4, 7, v1
    s_mov_b32 s30, {FLAG_OFF + 192*128}
    buffer_store_dwordx2 v[2:3], v4, s[24:27], s30 offen sc1
    s_endpgm
    ''')
def gen_spare_vo(a):
    a.label('L_sp_vo')
    a(f'''
    s_cmp_gt_u32 s2, 8
    s_cbranch_scc1 L_end
    s_mov_b32 s20, s10
    s_mov_b32 s21, s11
    s_mov_b32 s22, 18432
    s_mov_b32 s23, 0x20000
    v_lshlrev_b32 v7, 4, v1
    v_lshrrev_b32 v56, 2, v1
    v_and_b32 v57, 3, v1
    v_mul_u32_u24 v56, 192, v56
    v_lshl_add_u32 v56, v57, 4, v56
    s_lshl_b32 s31, s30, 6
    s_mov_b32 s34, 0
    ''')
    for p in range(6):
        a('s_mov_b32 m0, s34')
        a('s_add_u32 s34, s34, 1024')
        a('buffer_load_dwordx4 v56, s[20:23], s31 offen lds')
        a(f's_add_u32 s31, s31, {16*192}')
    a(f's_mul_i32 s32, s29, {32*384}')
    for s in range(6):
        a(f'buffer_load_dwordx4 v[{8+4*s}:{11+4*s}], v6, s[56:59], s32 offen offset:{192+32*s}')
    a(f'''
    v_bfe_u32 v56, v1, 2, 2
    v_lshl_add_u32 v56, v4, 3, v56
    v_lshlrev_b32 v56, 6, v56
    v_bfe_u32 v58, v1, 4, 1
    v_lshl_add_u32 v56, v58, 5, v56
    v_lshl_add_u32 v56, v57, 3, v56
    s_mul_i32 s33, s30, {TILE}
    s_mul_i32 s34, s29, {2*PC}
    s_add_u32 s33, s33, s34
    s_add_u32 s33, s33, {25*TILE}
    s_lshl_b32 s36, s30, 3
    s_add_u32 s36, s36, s29
    s_add_u32 s36, s36, 200
    s_waitcnt vmcnt(6)
    ''')
    for s in range(6):
        for half in range(2):
            a(f'ds_read_b64_tr_b16 v[{32+4*s+2*half}:{33+4*s+2*half}], v56 offset:{s*1024 + half*256}')
    a('s_waitcnt vmcnt(0) lgkmcnt(0)')
    for s in range(6):
        a(f'v_mfma_f32_32x32x16_bf16 v[64:79], v[{8+4*s}:{11+4*s}], v[{32+4*s}:{35+4*s}], {"0" if s == 0 else "v[64:79]"}')
    a('s_nop 15')
    for r in range(8): a(f'v_cvt_pk_bf16_f32 v{80+r}, v{64+2*r}, v{65+2*r}')
    for k in range(2):
        a(f'buffer_store_dwordx4 v[{80+4*k}:{83+4*k}], v7, s[24:27], s33 offen offset:{PC*k} sc1')
    a('s_branch L_sp_flag')

def gen_consumer(a):
    a(f'''
    s_sub_u32 s3, s2, {NSP}
    v_lshlrev_b32 v{vDMA}, 4, v1
    s_lshr_b32 s55, s3, 3
    s_and_b32 s56, s3, 7
    s_mul_i32 s{sXB}, s55, 344064
    s_mul_i32 s57, s56, 6144
    s_mov_b32 s{sXS}, 43008
    s_cmp_eq_u32 s56, 7
    s_cselect_b32 s57, {7*43008}, s57
    s_cselect_b32 s{sXS}, 6144, s{sXS}
    s_add_u32 s{sXB}, s{sXB}, s57
    s_cmp_eq_u32 s{sW}, 3
    s_cbranch_scc1 L_x_w3
    s_mul_i32 s57, s{sW}, 3
    s_mul_i32 s58, s57, 6144
    s_mul_i32 s57, s57, s{sXS}
    s_add_u32 s57, s57, s{sXB}
    s_add_u32 s58, s58, {XST}
    s_mov_b32 m0, s58
    s_add_u32 s59, s57, 4096
    ''')
    for t in range(3):
        for p in range(4): a(f'buffer_load_dwordx4 v{vDMA}, s[16:19], s57 offen offset:{1024*p} nt lds')
        a(f's_add_u32 m0, s58, {6144*t + 4096}')
        a(f's_add_u32 s57, s57, s{sXS}')
        for p in range(2): a(f'buffer_load_dwordx4 v{vDMA}, s[16:19], s59 offen offset:{1024*p} nt lds')
        if t < 2:
            a(f's_add_u32 m0, s58, {6144*(t+1)}')
            a(f's_add_u32 s59, s59, s{sXS}')
        if t == 1:
            a(f's_cmp_eq_u32 s{sW}, 2')
            a('s_cbranch_scc1 L_cons2')
    a('s_branch L_cons2')
    gen_spare(a)
    a.label('L_x_w3')
    code_prefetch(a)
    a(f'v_mov_b32 v2, {NC_LDS}')
    for i in range(4): a(f'v_mov_b32 v{4+i}, 0')
    a('ds_write_b128 v2, v[4:7]')
    a('s_waitcnt lgkmcnt(0)')
    a.label('L_cons2')
    a('s_barrier')
    a(f'''
    s_mul_i32 s{sU}, s55, 7
    s_add_u32 s{sU}, s{sU}, s56
    s_mul_i32 s{sWT}, s{sW}, {TILE}
    v_mov_b32 v{vZ}, 0
    v_mov_b32 v2, {NC_LDS}
    s_mov_b32 s{sSP}, 0
    v_and_b32 v3, 31, v1
    v_lshrrev_b32 v4, 5, v1
    v_mul_u32_u24 v{vXO}, 192, v3
    v_lshl_add_u32 v{vXO}, v4, 4, v{vXO}
    s_mul_i32 s{sXo}, s{sW}, s{sXS}
    s_add_u32 s{sXo}, s{sXo}, s{sXB}
    s_lshl_b32 s57, s{sXS}, 2
    s_add_u32 s{sXb}, s{sXo}, s57
    s_mov_b32 s20, s12
    s_mov_b32 s21, s13
    s_mov_b32 s22, {X_BYTES}
    s_mov_b32 s23, 0x20000
    buffer_load_dword a240, v{vZ}, s[20:23], s{sXo} offen
    buffer_load_dword a241, v{vZ}, s[20:23], s{sXb} offen
    s_mov_b32 s{sCNT}, 0
    s_add_u32 s{sT}, s{sWT}, {2*GB}
    s_add_u32 s{sG[0]}, s{sWT}, {2*GB}
    s_add_u32 s{sG[1]}, s{sWT}, {2*GB + 4*PC}
    s_mov_b32 s{sDn}, {GB}
    s_mov_b32 s{sDp}, {(-2*GB) & 0xffffffff}
    s_lshl_b32 s{sFM}, s{sW}, 10
    s_add_u32 s{sFM}, s{sFM}, {FLAG_OFF + 192*128}
    s_sub_u32 s{sFO}, s{sFM}, {192*128}
    s_mul_i32 s57, s{sW}, {OST}
    s_add_u32 s57, s57, {STG0}
    v_mul_u32_u24 v{vSW}, 208, v3
    v_lshl_add_u32 v{vSW}, v4, 3, v{vSW}
    v_add_u32 v{vSW}, s57, v{vSW}
    ''')
    for j in range(3):
        a(f'v_add_u32 v5, {64*j}, v1')
        a('v_mul_u32_u24 v6, 171, v5')
        a('v_lshrrev_b32 v6, 11, v6')
        a('v_add_u32 v5, v5, v6')
        a('v_lshlrev_b32 v5, 4, v5')
        a(f'v_add_u32 v{vRB[j]}, s57, v5')
    a(f'''
    v_lshrrev_b32 v9, 4, v1
    v_and_b32 v10, 15, v1
    v_lshrrev_b32 v6, 2, v10
    v_lshl_add_u32 v6, v9, 3, v6
    v_mul_u32_u24 v5, 192, v6
    v_and_b32 v8, 3, v1
    v_lshl_add_u32 v5, v8, 3, v5
    s_lshl_b32 s57, s{sW}, 6
    s_add_u32 s57, s57, {XST}
    v_add_u32 v5, s57, v5
    v_cmp_eq_u32 vcc, v9, v10
    v_mov_b32 v6, 0x3f803f80
    v_lshlrev_b32 v8, 4, v8
    v_cndmask_b32 v{vS[3]}, 0, v6, vcc
    v_cndmask_b32 v{vS[3]+1}, 0, v6, vcc
    v_cndmask_b32 v{vS[3]+2}, 0, v6, vcc
    v_cndmask_b32 v{vS[3]+3}, 0, v6, vcc
    v_lshl_add_u32 v8, v4, 6, v8
    v_add_u32 v8, {LK_LDS}, v8
    v_and_b32 v3, 1, v9
    v_lshrrev_b32 v7, 1, v9
    v_lshlrev_b32 v29, 4, v10
    v_lshl_add_u32 v29, v7, 3, v29
    v_mul_u32_u24 v6, {PC}, v3
    v_add_u32 v6, v6, v29
    v_lshl_add_u32 v29, v3, 6, v29
    s_lshl_b32 s57, s{sW}, 8
    s_add_u32 s57, s57, {LK_LDS}
    v_add_u32 v29, s57, v29
    s_lshr_b32 s57, s{sU}, 3
    s_mul_i32 s57, s57, {TILE}
    s_and_b32 s58, s{sU}, 7
    s_lshl_b32 s58, s58, 6
    s_add_u32 s59, s57, s58
    s_lshl_b32 s58, s{sW}, 9
    s_mov_b32 s60, {2*PC}
    s_cmp_eq_u32 s{sW}, 2
    s_cselect_b32 s58, {4*PC}, s58
    s_cselect_b32 s60, 512, s60
    s_add_u32 s59, s59, s58
    s_add_u32 s57, s59, s60
    s_mul_i32 s58, s{sW}, 6144
    s_add_u32 s58, s58, {XST}
    v_add_u32 v30, s58, v{vXO}
    v_add_u32 v31, s58, v{vDMA}
    v_and_b32 v{vFO}, 7, v1
    v_lshlrev_b32 v{vFO}, 7, v{vFO}
    v_and_b32 v{vFO2}, 8, v1
    v_lshlrev_b32 v{vFO2}, 9, v{vFO2}
    v_add_u32 v{vFO2}, v{vFO2}, v{vFO}
    v_mov_b32 v3, 1
    ''')
    for t in vL: a(f'v_mov_b32 v{vL[t]}, 0')
    for t in ('own', 'B0'):
        for i in range(48): a(f'v_mov_b32 v{rO[t][1]+i}, 0')
    def xfrags(n):
        for s in range(6): a(f'ds_read_b128 {rng("a", aX["B1"]+4*s, 4)}, v30 offset:{32*s}')
        if n > 1:
            for s in range(6): a(f'ds_read_b128 {rng("a", aX["B2"]+4*s, 4)}, v30 offset:{4*6144+32*s}')
    a(f's_cmp_eq_u32 s{sW}, 3')
    a('s_cbranch_scc1 L_w3')
    a(f'buffer_load_dwordx2 v[{vF}:{vF+1}], v{vZ}, s[48:51], 0 offen sc1')
    stamp(a, 2)
    a('s_waitcnt vmcnt(3)')
    a('s_mov_b64 exec, 1')
    a('ds_add_u32 v2, v3')
    a('s_mov_b64 exec, -1')
    a.label('L_xw')
    a('ds_read_b32 v4, v2')
    a('s_waitcnt lgkmcnt(0)')
    a('v_cmp_ne_u32 vcc, 3, v4')
    a('s_cbranch_vccnz L_xw')
    stamp(a, 3)
    F = vM['own']
    def trr(row):
        for c in range(2):
            for half in range(2):
                d = F + (row * 2 + c) * 4 + 2 * half
                a(f'ds_read_b64_tr_b16 v[{d}:{d+1}], v5 offset:{row*6144 + half*768 + c*32}')
    IND = rng('v', vS[3], 4)
    D = vS[0]
    for row in range(3): trr(row)
    for row in range(8):
        a(f's_waitcnt lgkmcnt({4*min(2, 7-row)})')
        for c in range(2):
            f = rng('v', F + (row * 2 + c) * 4, 4)
            d1 = rng('v', D + 8 * (row & 1) + 4 * c, 4)
            a(f'v_mfma_f32_16x16x32_bf16 {d1}, {f}, {IND}, {"0" if row < 2 else d1}')
        if row + 3 < 8: trr(row + 3)
    a('s_mov_b32 s60, 0x3c800000')
    a('v_cmp_gt_u32 vcc, 4, v10')
    xfrags(2)
    for r in range(8): a(f'v_add_f32 v{D+r}, v{D+r}, v{D+8+r}')
    for r in range(8): a(f'v_mul_f32 v{D+r}, s60, v{D+r}')
    for r in range(4): a(f'v_cvt_pk_bf16_f32 v{D+16+r}, v{D+2*r}, v{D+2*r+1}')
    a('s_cmp_eq_u32 s56, 7')
    a('s_mov_b64 exec, vcc')
    a('s_cbranch_scc1 L_nostore')
    a(f'buffer_store_dwordx2 v[{D+16}:{D+17}], v6, s[24:27], s59 offen sc1')
    a(f'buffer_store_dwordx2 v[{D+18}:{D+19}], v6, s[24:27], s57 offen sc1')
    a.label('L_nostore')
    for c in range(2): a(f'ds_write_b64 v29, v[{D+16+2*c}:{D+17+2*c}] offset:{128*c}')
    a('s_mov_b64 exec, -1')
    stamp(a, 4)
    a('s_cbranch_scc1 L_nw0')
    a('s_waitcnt vmcnt(2)')
    a('s_branch L_nw1')
    a.label('L_nw0')
    a('s_waitcnt vmcnt(0)')
    a.label('L_nw1')
    a(f'v_cmp_eq_u32 vcc, 0, v{vF+1}')
    a('s_cbranch_vccz L_nonce_ok')
    nonce_spin(a, 'L_nonce')
    a(f'v_readfirstlane_b32 s{sN}, v{vF}')
    a(f'v_readfirstlane_b32 s{sN+1}, v{vF+1}')

    def g_dma(g):
        for q in range(6):
            a(f's_mov_b32 s60, {g*GB + q*4*PC}')
            a('s_mov_b32 m0, s60')
            a('s_nop 0')
            for p in range(4): a(f'buffer_load_dwordx4 v{vDMA}, s[24:27], s60 offen offset:{PC*p} sc1 lds')
    def publish(tag):
        a(f'''
        s_lshl_b32 s60, s{sU}, 7
        s_add_u32 s60, s60, {FLAG_OFF}
        v_mov_b32 v6, s{sN}
        v_mov_b32 v7, s{sN+1}
        s_waitcnt vmcnt(0)
        s_mov_b64 exec, 1
        ds_add_rtn_u32 v5, v2, v3 offset:12
        s_waitcnt lgkmcnt(0)
        v_cmp_eq_u32 vcc, 2, v5
        s_cmp_eq_u32 s56, 7
        s_cbranch_scc1 L_noflag{tag}
        s_cbranch_vccz L_noflag{tag}
        buffer_store_dwordx2 v[6:7], v{vZ}, s[24:27], s60 offen sc1
        ''')
        a.label(f'L_noflag{tag}')
        a('s_mov_b64 exec, -1')
        a('s_mov_b32 s59, 1')
    def ready_poll(lbl, n):
        a('s_mov_b32 s57, 0')
        a.label(lbl)
        a('ds_read2_b32 v[4:5], v2 offset0:1 offset1:2')
        a('s_waitcnt lgkmcnt(0)')
        a('v_add_u32 v4, v4, v5')
        a('v_cmp_ne_u32 vcc, 4, v4')
        a('s_cbranch_vccz L_q')
        a('s_add_u32 s57, s57, 1')
        a(f's_cmp_lt_u32 s57, {n}')
        a(f's_cbranch_scc1 {lbl}')
    a(f'''
    s_waitcnt lgkmcnt(0)
    s_mov_b64 exec, 1
    ds_add_u32 v2, v3 offset:4
    s_mov_b64 exec, -1
    s_mov_b32 s59, 0
    s_mov_b32 s55, 0
    ''')
    ready_poll('L_pq', 5)
    publish('a')
    a.label('L_pw')
    ready_poll('L_pw1', 64)
    a('s_branch L_pw')
    a.label('L_w3')
    for i in range(96): a(f'v_accvgpr_write_b32 a{i}, 0')
    stamp(a, 2)
    a('v_min_u32 v4, 8, v1')
    a('v_lshlrev_b32 v4, 7, v4')
    a(f's_mov_b32 s57, {FLAG_OFF + 224*128}')
    a.label('L_wq')
    a(f'buffer_load_dwordx2 v[6:7], v{vZ}, s[48:51], 0 offen sc1')
    a(f'buffer_load_dwordx2 v[{vF}:{vF+1}], v4, s[24:27], s57 offen sc1')
    a('s_waitcnt vmcnt(0)')
    a('v_cmp_eq_u32 s[58:59], 0, v7')
    a(f'v_cmp_ne_u64 vcc, v[6:7], v[{vF}:{vF+1}]')
    a('s_or_b64 vcc, vcc, s[58:59]')
    spin_tail(a, 'L_wq')
    a(f'v_readfirstlane_b32 s{sN}, v6')
    a(f'v_readfirstlane_b32 s{sN+1}, v7')
    stamp(a, 3)
    a(f's_mov_b32 s57, {WQK_OFF}')
    a(f's_mov_b32 s58, {WQ_LDS}')
    for q in range(5):
        a('s_mov_b32 m0, s58')
        a('s_add_u32 s58, s58, 4096')
        for p in range(4 if q < 4 else 2): a(f'buffer_load_dwordx4 v{vDMA}, s[24:27], s57 offen offset:{1024*p} sc1 lds')
        a('s_add_u32 s57, s57, 4096')
    stamp(a, 4, True)
    a.label('L_w3x')
    a('ds_read_b32 v4, v2')
    a('s_waitcnt lgkmcnt(0)')
    a('v_cmp_ne_u32 vcc, 3, v4')
    a('s_cbranch_vccnz L_w3x')
    xfrags(1)
    a('s_waitcnt vmcnt(0) lgkmcnt(0)')
    a('ds_write_b32 v2, v3 offset:8')
    a(f'v_lshlrev_b32 v{vFO2}, 7, v1')
    a(f's_mov_b32 s57, {FLAG_OFF}')
    f64 = f'buffer_load_dwordx2 v[{vF}:{vF+1}], v{vFO2}, s[24:27], s57 offen sc1'
    a.label('L_w3p')
    a('ds_read_b32 v4, v2 offset:4')
    a('s_waitcnt lgkmcnt(0)')
    a('v_cmp_ne_u32 vcc, 3, v4')
    a('s_cbranch_vccnz L_w3p')
    a('s_branch L_q3')
    a.label('L_q')
    stamp(a, 5)
    def q_reads():
        a(f'v_add_u32 v4, {WQ_LDS}, v{vDMA}')
        for f in range(18): a(f'ds_read_b128 {wreg(f)}, v4 offset:{1024*f}')
        for s in range(6): a(f'ds_read_b128 {rng("a", aV+4*s, 4)}, v8 offset:{128*s}')
    q_reads()
    blocks = [(ti, ct) for ti in range(2) for ct in range(3)]
    def qfin(n):
        ti, ct = blocks[n]; S = vS[n % 4]; X = aX['own' if ti == 0 else 'B0'] + 8 * ct
        out = [f'v_cvt_pk_bf16_f32 v{S+j}, v{S+2*j}, v{S+2*j+1}' for j in range(8)]
        out += [f'v_accvgpr_write_b32 a{X+j}, v{S+j}' for j in range(8)]
        if ti == 1: out += [f'ds_write_b128 v31, v[{S+4*k}:{S+4*k+3}] offset:{(2*ct+k)*1024}' for k in range(2)]
        return out
    def blk(n):
        ti, ct = blocks[n]; d = rng('v', vS[n % 4], 16); X = aX['B1' if ti == 0 else 'B2']
        return [f'v_mfma_f32_32x32x16_bf16 {d}, {wreg(6*ct+s)}, {rng("a", X+4*s, 4)}, {"0" if s == 0 else d}' for s in range(6)]
    def lqk(t, sbuf):
        d = rng('v', vS[sbuf], 16)
        return [f'v_mfma_f32_32x32x16_bf16 {d}, {rng("a", aV+4*s, 4)}, {rng("a", aX[t]+4*s, 4)}, {"0" if s == 0 else d}' for s in range(6)]
    def mops(t, sbuf):
        S = vS[sbuf]
        return [f'v_max3_f32 v9, v{S}, v{S+1}, v{S+2}', f'v_max_f32 v9, v9, v{S+3}'] + [f'v_sub_f32 v{vM[t]+i}, 0, v9' for i in range(16)]
    m0_, m1_, m2_ = blk(0), blk(1), blk(2)
    m0_[0] = 's_waitcnt lgkmcnt(15)\n' + m0_[0]
    m1_[0] = 's_waitcnt lgkmcnt(12)\n' + m1_[0]
    m2_[0] = 's_waitcnt lgkmcnt(6)\n' + m2_[0]
    def addr_setup():
        lane_addr(a, vKA[3], vVA[3], vVB[3], 21, 31)
        for i in range(4):
            a(f's_add_u32 s60, s{sW}, {1+i}')
            a('s_and_b32 s60, s60, 3')
            a(f's_mul_i32 s60, s60, {TILE}')
            if i == 0: a(f's_mov_b32 s{sK0}, s60')
            a(f'v_add_u32 v{vKA[i]}, s60, v{vKA[3]}')
            if i == 3: a(f's_add_u32 s60, s60, {2*GB}')
            a(f'v_add_u32 v{vVA[i]}, s60, v{vVA[3]}')
            a(f'v_add_u32 v{vVB[i]}, s60, v{vVB[3]}')
        for i in range(24): a(f'v_accvgpr_write_b32 a{aV+i}, 0')
    def zero_p():
        for i in range(4):
            a(f'v_mov_b32 v{vS[3]+i}, 0')
            a(f'v_mov_b32 v{vS[3]+8+i}, 0')
        a(f'v_mov_b32 v{vHI}, 0x{HI:08x}')
        a(f's_add_u32 s{sFO}, s{sFO}, 8192')
    weave(a, m0_ + m1_, [('at', 8)] + qfin(0))
    a('s_cmp_eq_u32 s59, 1')
    a('s_cbranch_scc1 L_pub_done')
    publish('b')
    a.label('L_pub_done')
    l0 = lqk('own', 2)
    b3_ = blk(3)
    b3_[0] = 's_waitcnt lgkmcnt(0)\n' + b3_[0]
    a(f's_lshl_b32 s60, s{sW}, 10')
    a(f's_add_u32 s60, s60, {MX_LDS}')
    a(f'v_add_u32 v3, s60, v{vDMA}')
    weave(a, m2_ + b3_ + blk(4) + blk(5) + l0 + lqk('B0', 3),
          [('at', 2)] + qfin(1) + [('at', 8)] + qfin(2) + [('at', 14)] + qfin(3) + [('at', 20)] + qfin(4) + [('at', 26)] + qfin(5)
          + [('at', 32)] + mops('own', 2))
    stamp(a, 6); stamp(a, 7)
    addr_setup()
    for x in mops('B0', 3): a(x)
    a(f'ds_write_b128 v3, {rng("v", vM["B0"], 4)}')
    zero_p()
    a('s_waitcnt lgkmcnt(0)')
    a('s_barrier')
    stamp(a, 8)
    for s in range(6): a(kread(vKA[0], s))
    a('s_branch L_owner')
    a.label('L_q3')
    stamp(a, 5)
    q_reads()
    a(f64)
    l0 = lqk('own', 3)
    l0[0] = 's_waitcnt lgkmcnt(0)\ns_nop 1\n' + l0[0]
    weave(a, m0_ + m1_ + m2_, [('at', 8)] + qfin(0) + [('at', 14)] + qfin(1))
    a('s_nop 11')
    for x in qfin(2): a(x)
    for x in l0: a(x)
    stamp(a, 6)
    a('s_mov_b32 s55, 0')
    a.label('L_gw')
    a('s_waitcnt vmcnt(0)')
    a(flag_cmp())
    a('s_cmp_eq_u32 s55, 1')
    a('s_mov_b64 s[58:59], vcc')
    a('s_cbranch_scc1 L_gw1')
    a('s_cmp_lg_u32 s58, 0')
    a('s_cbranch_scc1 L_gwn')
    a.label('L_gw0')
    g_dma(0)
    a('s_mov_b32 s55, 1')
    a.label('L_gw1')
    a('s_cmp_eq_u32 s59, 0')
    a('s_cbranch_scc1 L_gw2')
    a.label('L_gwn')
    a(f64)
    a(f's_add_u32 s{sSP}, s{sSP}, 1')
    a(f's_cmp_lt_u32 s{sSP}, {SPIN_MAX:#x}')
    a('s_cbranch_scc1 L_gw')
    a('s_mov_b32 s59, 0')
    a('s_cmp_eq_u32 s55, 0')
    a('s_cbranch_scc1 L_gw0')
    a.label('L_gw2')
    g_dma(1)
    stamp(a, 7)
    addr_setup()
    for x in mops('own', 3): a(x)
    zero_p()
    a(f'v_add_u32 v2, {QX_LDS}, v{vDMA}')
    a('s_waitcnt vmcnt(24)')
    a('s_barrier')
    stamp(a, 8)
    for s in range(6): a(kread(vKA[0], s))

    def first_qk(extra, nwait):
        a(f's_waitcnt lgkmcnt({nwait})')
        weave(a, [qk_mfma('own', 0, s) for s in range(6)], extra)
        a('s_waitcnt lgkmcnt(0)')
        a('s_nop 9')
        stamp(a, 11); stamp(a, 12, True)
        if OPT['stamps']: a('s_waitcnt lgkmcnt(0)')
    vhalf = [vread(vVA[0], vVB[0], 0, ct) for ct in range(3)]
    wv = [f'ds_read_b128 {wreg(f)}, v{vDMA} offset:{(1 + f//6)*TILE + (f%6)*PC}' for f in range(18)]
    PA, PB = vS[0], vS[2]

    ex = []
    for e, t in enumerate(('B0', 'B1', 'B2')):
        ex += [f'ds_read_b128 {rng("a", aX[t]+4*s, 4)}, v2 offset:{e*6144 + 1024*s}' for s in range(6)]
        ex += [f'ds_read_b128 {rng("v", vM[t]+4*k, 4)}, v2 offset:{24576 + 1024*e}' for k in range(4)]
    for x in ex[:6]: a(x)
    first_qk(ex[6:], 6)
    gen_loop(a, True)
    stamp(a, 13); stamp(a, 14, True)
    a(f'v_add_u32 v5, {MERGE0}, v{vDMA}')
    a('v_lshlrev_b32 v2, 2, v1')
    a(f'v_add_u32 v2, {MERGE0}, v2')
    a(f's_mov_b32 s58, 0x{LO:08x}')
    a('s_waitcnt lgkmcnt(0)')
    wr = []
    for e, t in enumerate(('B0', 'B1', 'B2')):
        k, b = rO[t]
        wr += [f'ds_write_b128 v5, {rng(k, b+4*j, 4)} offset:{e*MERGE + 1024*j}' for j in range(12)]
        wr += [f'ds_write_b32 v2, v{vL[t]} offset:{e*MERGE + 12288}']
    mf = [pv_mfma('own', 3, t, ct) for t in range(2) for ct in range(3)]
    hs = half_softmax_ops(0, 'own')
    k = 0
    for n, x in enumerate(wr):
        a(x)
        if n % 6 == 1 and n // 6 < 6:
            a(mf[n // 6])
            if n // 6 < 3:
                for y in vhalf[n // 6]: a(y)
        elif k < len(hs) and n >= 3:
            a(hs[k]); k += 1
    for x in hs[k:]: a(x)
    a('s_waitcnt lgkmcnt(0)')
    a('s_barrier')
    weave(a, [pv_mfma('own', 0, 0, ct) for ct in range(3)], wv)
    for x in lsum_ops('own', 2, 'h'): a(x)
    cv = cvt_ops('own', PA)
    a('s_nop 1')
    a('v_mov_b32 v3, v2')
    for x in cv[:8]: a(x)
    a('s_waitcnt lgkmcnt(0)')
    weave(a, proj_mfmas('own', PA), cv[8:] + [('at', 8)] + fin_ops('own', 0, 2) + [('at', 14)] + fin_ops('own', 1, 2))
    a('s_nop 7')
    for x in fin_ops('own', 2, 2, pk=True) + store_ops(PB, sXo, 60) + store_ops2(PB, sXo, 60): a(x)
    stamp(a, 15)
    stamp_store(a)
    a('s_endpgm')
    a.label('L_owner')
    first_qk([], 0)
    gen_loop(a, False)
    stamp(a, 13); stamp(a, 14, True)
    a(f's_mul_i32 s60, s{sW}, {MERGE}')
    a(f's_add_u32 s60, s60, {MERGE0}')
    a(f'v_add_u32 v6, s60, v{vDMA}')
    a('v_lshlrev_b32 v7, 2, v1')
    a('v_add_u32 v7, s60, v7')
    a(f's_mov_b32 s58, 0x{LO:08x}')
    a('s_waitcnt lgkmcnt(0)')
    mf = [qk_mfma('B0', 1, s) for s in range(6)] + [pv_mfma('own', 3, t, ct) for t in range(2) for ct in range(3)]
    hs = half_softmax_ops(0, 'own')
    fill = wv[0:4] + wv[8:10] + [('at', 1)] + wv[4:8] + wv[10:12] + [('at', 2)] + wv[12:18] + [('at', 3)] + hs[:9]
    fill += [('at', 6)] + vhalf[0] + hs[9:13] + [('at', 7)] + vhalf[1] + hs[13:17] + [('at', 8)] + vhalf[2] + hs[17:]
    hb = half_softmax_ops(1, 'B0')
    fill += [('at', 9)] + hb[:10]
    weave(a, mf, fill)
    a('s_waitcnt lgkmcnt(0)')
    mf = [pv_mfma('own', 0, 0, ct) for ct in range(3)] + [pv_mfma('B0', 1, 0, ct) for ct in range(3)]
    ls = lsum_ops('own', 2, 'oo')
    weave(a, mf, hb[10:] + [('at', 3)] + ls[:7])
    for x in ls[7:]: a(x)
    cv = cvt_ops('own', PA)
    for x in cv[:8]: a(x)
    a('v_mov_b32 v3, v2')
    b = rO['B0'][1]
    TT = [56 + 4 * j for j in range(10)]
    rdm = [f'ds_read_b128 v[{TT[j]}:{TT[j]+3}], v6 offset:{1024*j}' for j in range(10)]
    f0 = fin_ops('own', 0, 2); f1 = fin_ops('own', 1, 2)
    fill = cv[8:] + [('at', 8)] + f0[:24] + [('at', 12), 's_barrier'] + f0[24:] + ['ds_read_b32 v8, v7 offset:12288'] + rdm[:1]
    fill += [('at', 13)] + rdm[1:7] + [('at', 14)] + rdm[7:] + f1
    weave(a, proj_mfmas('own', PA), fill)
    for j in (10, 11): a(f'ds_read_b128 v[{PA+4*(j-10)}:{PA+4*(j-10)+3}], v6 offset:{1024*j}')
    TT += [PA, PA + 4]
    a('s_waitcnt lgkmcnt(6)')
    a(f'v_add_f32 v{vL["B0"]}, v{vL["B0"]}, v8')
    def padd(j):
        t = TT[j]
        a(f'v_pk_add_f32 v[{b+4*j}:{b+4*j+1}], v[{b+4*j}:{b+4*j+1}], v[{t}:{t+1}]')
        a(f'v_pk_add_f32 v[{b+4*j+2}:{b+4*j+3}], v[{b+4*j+2}:{b+4*j+3}], v[{t+2}:{t+3}]')
    for j in range(10): padd(j)
    for x in fin_ops('own', 2, 2, pk=True): a(x)
    a('s_waitcnt lgkmcnt(4)')
    padd(10); padd(11)
    so = store_ops(PA, sXo, 60)
    st2 = store_ops2(PA, sXo, 60, waits=False)
    ls = lsum_ops('B0', 2, 'ob')
    for x in ls[:7] + so + ls[7:]: a(x)
    cv = cvt_ops('B0', PB)
    for x in cv[:8]: a(x)
    a('v_mov_b32 v3, v2')
    fill = cv[8:14] + [('at', 1), 's_waitcnt lgkmcnt(0)', st2[0]] + cv[14:19] + [('at', 2), st2[1]] + cv[19:]
    for k in range(4): fill += [('at', 3 + k), st2[2 + k]]
    fill += [('at', 8)] + fin_ops('B0', 0, 2) + [('at', 14)] + fin_ops('B0', 1, 2)
    weave(a, proj_mfmas('B0', PB), fill)
    a('s_nop 3')
    for x in fin_ops('B0', 2, 2, pk=True) + store_ops(PB, sXb, 60) + store_ops2(PB, sXb, 60): a(x)
    stamp(a, 15)
    stamp_store(a)
    a('s_endpgm')
    slow_path(a, 'h'); slow_path(a, 'o')
    gen_spare_vo(a)
    redo(a, 'own', 2, 'h'); redo(a, 'own', 2, 'oo'); redo(a, 'B0', 2, 'ob')

def build(path):
    a = Asm()
    a.raw(f'.globl {NAME}')
    a.raw('.p2align 8')
    a.raw(f'.type {NAME},@function')
    a.label(NAME)
    a(f's_cmp_ge_u32 s2, {NSP+NCONS}')
    a('s_cbranch_scc1 L_end')
    stamp(a, 0, True); stamp(a, 1)
    a(f'''
    s_load_dwordx8 s[4:11], s[0:1], 0
    s_load_dwordx2 s[12:13], s[0:1], 32
    s_load_dwordx4 s[44:47], s[0:1], 40
    v_lshrrev_b32 v2, 6, v0
    v_and_b32 v1, 63, v0
    v_readfirstlane_b32 s{sW}, v2
    s_mov_b32 s18, {X_BYTES}
    s_mov_b32 s19, 0x20000
    s_mov_b32 s26, {WS_BYTES}
    s_mov_b32 s27, 0x20000
    s_mov_b32 s50, 256
    s_mov_b32 s51, 0x20000
    s_waitcnt lgkmcnt(0)
    s_mov_b32 s16, s4
    s_mov_b32 s17, s5
    s_mov_b32 s24, s46
    s_mov_b32 s25, s47
    s_mov_b32 s48, s44
    s_mov_b32 s49, s45
    s_cmp_lt_u32 s2, {NSP}
    s_cbranch_scc1 L_spare
    ''')
    gen_consumer(a)
    a.label('L_end')
    a('s_endpgm')
    out = HEADER
    out += f'; @launch grid=({NSP+NCONS},1,1) block=(256,1,1) lds={LDS_TOTAL}\n'
    out += '.amdgcn_target "amdgcn-amd-amdhsa--gfx950"\n.text\n'
    out += a.text()
    out += '.section .rodata,"a"\n.p2align 6\n'
    out += kd(NAME, 512, 256)
    open(path, 'w').write(out)

if __name__ == '__main__':
    for o in sys.argv[2:]:
        if '=' in o:
            k, v = o.split('=')
            OPT[k] = int(v) if v.isdigit() else v.replace('+', ' ')
        else:
            OPT[o] = True
    build(sys.argv[1] if len(sys.argv) > 1 else 'k15.s')
```

```python
import sys, math, struct
from gen import Asm, f32bits, kd, HEADER, X_BYTES, CST

NAME = 'standalone__window_attn_twins__vision_kernel'
NSP, NCONS = int(next((o.split("=")[1] for o in sys.argv if o.startswith("NSP=")), 28)), 224
OPT = dict(stamps=False, sleep=4)
PC = 1088
TILE = 6 * PC
GB = 4 * TILE
WQK_OFF = 28 * TILE
FLAG_OFF = WQK_OFF + 18432
WFLAG_OFF = FLAG_OFF + 256 * 512
WS_BYTES = WFLAG_OFF + 16 * 1024
XST = 3 * GB
QX_LDS = XST
MX_LDS = XST + 24576
WQ_LDS = XST + 49152
LK_LDS = WQ_LDS + 18432
NC_LDS = LK_LDS + 768
MERGE = 12544
MERGE0 = XST
OST = 6656
STG0 = MERGE0 + 3 * MERGE
LDS_TOTAL = NC_LDS + 256
assert STG0 + 4 * OST <= LDS_TOTAL and FLAG_OFF % 128 == 0
SPIN_MAX = 0x8000
FL = int(next((o.split('=')[1] for o in sys.argv if o.startswith('FL=')), 4))
FS = 1 << FL
WL = int(next((o.split('=')[1] for o in sys.argv if o.startswith('WL=')), 7))

vFO2 = 0; vFO = 11
vKA = [12, 13, 14, 15]; vVA = [4, 5, 6, 7]; vVB = [8, 10, 29, 30]
vDMA = 16
vL = {'own': 17, 'B0': 18, 'B1': 19, 'B2': 20}
vXO = 21; vF = 22; vZ = 24; vRB = [25, 26, 27]; vSW = 28; vHI = 9
vS = [32, 48, 64, 80]
vM = {'own': 96, 'B0': 112, 'B1': 128, 'B2': 144}
rO = {'own': ('v', 160), 'B0': ('v', 208), 'B1': ('a', 0), 'B2': ('a', 48)}
aX = {'own': 96, 'B0': 120, 'B1': 144, 'B2': 168}
aK = 192; aV = 216
sN = 4; sW = 14; sSP = 15
sCNT = 28; sT = 29; sG = [30, 31]; sDn = 33; sDp = 34; sTE = 35; sTMP = 36; sXo = 37; sXb = 38; sXB = 39; sXS = 40
sFO = 41; sD0 = 42; sK0 = 43; sU = 53; sWT = 54; sFM = 61
ST0 = 62
_used = set(range(192, 196)) | {200 + 8 * b + k for b in range(3) for k in range(3)}
DUMMY = sum(1 << (b - 192) for b in range(192, 224) if b not in _used)
LO = f32bits(2.0 ** -90); HI = f32bits(2.0 ** 90)

def rng(kind, base, n): return f'{kind}[{base}:{base+n-1}]'
def stamp(a, idx, rt=False):
    if OPT['stamps']: a(f's_mem{"real" if rt else ""}time s[{ST0+2*idx}:{ST0+1+2*idx}]')
def stamp_store(a, n=11):
    if not OPT['stamps']: return
    a('s_mov_b64 exec, -1')
    a('s_waitcnt vmcnt(0) lgkmcnt(0)')
    a(f's_memtime s[{ST0+2*(n-2)}:{ST0+1+2*(n-2)}]')
    a(f's_memrealtime s[{ST0+2*(n-1)}:{ST0+1+2*(n-1)}]')
    a('s_waitcnt lgkmcnt(0)')
    a('s_mov_b32 s26, 0x1000000')
    a('s_lshl_b32 s3, s2, 2')
    a(f's_add_u32 s3, s3, s{sW}')
    a('s_lshl_b32 s3, s3, 6')
    a('s_add_u32 s3, s3, 0x100000')
    a('v_mov_b32 v2, 0')
    for i in range(16):
        a(f'v_mov_b32 v3, s{ST0+2*i}')
        a(f'buffer_store_dword v3, v2, s[24:27], s3 offen offset:{4*i}')

def qk_mfma(tile, sbuf, s, cinit=None):
    d = rng('v', vS[sbuf], 16)
    c = d if s else (rng('v', vM[tile], 16) if cinit is None else cinit)
    return f'v_mfma_f32_32x32x16_bf16 {d}, {rng("a", aK+4*s, 4)}, {rng("a", aX[tile]+4*s, 4)}, {c}'
def pv_mfma(tile, sbuf, t, ct):
    k, b = rO[tile]
    d = rng(k, b + 16 * ct, 16)
    return f'v_mfma_f32_32x32x16_bf16 {d}, {rng("a", aV+4*(3*t+ct), 4)}, {rng("v", vS[sbuf]+8*t, 4)}, {d}'
def koff(s):
    ct, e = s >> 1, s & 1
    return 2 * PC * e + 512 * ct if ct < 2 else 4 * PC + 512 * e
def kread(reg, s):
    return f'ds_read_b128 {rng("a", aK+4*s, 4)}, v{reg} offset:{koff(s)}'
def vread(ra, rb, t, ct):
    r = aV + 4 * (3 * t + ct)
    base = (512 * ct if ct < 2 else 4 * PC) + 256 * t
    reg = ra if ct < 2 else rb
    return [f'ds_read_b64_tr_b16 a[{r+2*h}:{r+2*h+1}], v{reg} offset:{base + 128*h}' for h in range(2)]
def dma(i):
    q, p = (0, i) if i < 4 else (1, i - 4)
    return f'buffer_load_dwordx4 v{vDMA}, s[24:27], s{sG[q]} offen offset:{PC*p} sc1 lds'
def flag_load(): return f'buffer_load_dwordx2 v[{vF}:{vF+1}], v{vFO}, s[24:27], s{sFO} offen sc1'
def flag2_load(): return f'buffer_load_dwordx2 v[{vF}:{vF+1}], v{vFO2}, s[24:27], s{sFO} offen sc1'
def flag_cmp(): return f'v_cmp_ne_u64 vcc, s[{sN}:{sN+1}], v[{vF}:{vF+1}]'
def wreg(f): return rng('v', vM['own'] + 4 * f, 4) if f < 16 else rng('a', 244 + 4 * (f - 16), 4)

def spin_tail(a, lbl):
    a(f's_cbranch_vccz {lbl}_ok')
    a(f's_sleep {OPT["sleep"]}')
    a(f's_add_u32 s{sSP}, s{sSP}, 1')
    a(f's_cmp_lt_u32 s{sSP}, {SPIN_MAX:#x}')
    a(f's_cbranch_scc1 {lbl}')
    a.label(lbl + '_ok')
def nonce_spin(a, lbl):
    a.label(lbl)
    a(f'buffer_load_dwordx2 v[{vF}:{vF+1}], v{vZ}, s[48:51], 0 offen sc1')
    a('s_waitcnt vmcnt(0)')
    a(f'v_cmp_eq_u32 vcc, 0, v{vF+1}')
    spin_tail(a, lbl)
def spin(a, lbl):
    a.label(lbl)
    a(flag_load())
    a('s_waitcnt vmcnt(0)')
    a(flag_cmp())
    spin_tail(a, lbl)

def softmax_ops(tile, sbuf):
    S = vS[sbuf]; L = vL[tile]
    E = lambda i: (f'v_exp_f32 v{S+i}, v{S+i}', 2, ('E', i))
    A = lambda i: (f'v_add_f32 v{L}, v{L}, v{S+i}', 1, ('A', i))
    def C(p):
        t, j = divmod(p, 4)
        return (f'v_cvt_pk_bf16_f32 v{S+8*t+j}, v{S+2*p}, v{S+2*p+1}', 1, ('C', p))
    ops = [E(0), E(1)]
    for p in range(1, 8):
        ops += [E(2*p), A(2*p-2), E(2*p+1), A(2*p-1), C(p-1)]
    return ops + [A(14), A(15), C(7)]
def ready(op, seq):
    kind, i = op[2]
    pos = lambda tag: seq.index(tag) if tag in seq else None
    n = len(seq)
    if kind == 'A':
        p = pos(('E', i)); return p is not None and n - p >= 2
    if kind == 'C':
        for q in (2*i, 2*i+1):
            e = pos(('E', q))
            if e is None or n - e < 2 or pos(('A', q)) is None: return False
        t, j = divmod(i, 4); dst = 8*t + j
        if pos(('A', dst)) is None: return False
        if dst // 2 != i and pos(('C', dst // 2)) is None: return False
    return True
def schedule_stage(a, mfmas, shadow, mem, pre, valu, extra, carry, may_carry):
    q = list(valu) + [(t, 1, ('X', k)) for k, t in enumerate(extra)]
    cq = list(carry)
    seq = []
    ng = len(mfmas)
    total = sum(o[1] for o in q) + len(cq)
    caps = [6 - len(mem.get(g, [])) - len(pre.get(g, [])) for g in range(ng)]
    used = 0
    for g in range(ng):
        a(mfmas[g]); seq.append(None)
        if g in shadow: a(shadow[g]); seq.append(None)
        for m in pre.get(g, []) + mem.get(g, []):
            a(m); seq.append(None)
        cap = caps[g]
        while cap > 0 and cq:
            a(cq.pop(0)); seq.append(None); cap -= 1; used += 1
        rest = sum(caps[g+1:])
        while cap > 0 and q:
            remaining = sum(o[1] for o in q)
            if used >= total * (g + 1) / ng and remaining <= rest - 2 * (ng - g - 1) // 3: break
            pick = next((k for k, o in enumerate(q[:6]) if o[1] <= cap and ready(o, seq)), None)
            if pick is None: break
            o = q.pop(pick)
            a(o[0]); seq.append(o[2]); cap -= o[1]; used += o[1]
    assert not cq
    if q:
        assert may_carry and all(o[1] == 1 for o in q) and len(q) <= 6, [o[0] for o in q]
    return [o[0] for o in q]

def cost(ins): return 2 if ins.startswith(('v_exp', 'v_rcp')) else 1
def weave(a, mfmas, fill, cap=6):
    q = list(fill)
    for g, m in enumerate(mfmas):
        a(m)
        c = cap; first = True; pv = False
        while q:
            it = q[0]
            if isinstance(it, tuple):
                if it[1] > g: break
                q.pop(0); continue
            k = 0 if (it.startswith('s_') and first) else cost(it)
            if it.startswith(('ds_', 'buffer_')) and pv: break
            if k > c: break
            a(q.pop(0)); c -= k; first = False
            pv = pv or it.startswith('v_')
    for it in q:
        if not isinstance(it, tuple): a(it)

def gen_loop(a, helper):
    nm = 'h' if helper else 'o'
    B = ['B0', 'B1', 'B2'] if helper else ['B0', 'B0', 'B0']
    units = [('own', 0), (B[0], 0), ('own', 1), (B[1], 1), ('own', 2), (B[2], 2), ('own', 3)]
    sb = [0, 1, 2, 0, 1, 2, 3]
    a.raw('.p2align 6')
    a.label(f'L_loop_{nm}')
    kload = {0: 1, 2: 2, 4: 3, 5: 0}
    vload = {2: 1, 4: 2, 6: 3, 0: 0}
    adv = lambda r, s: f'v_add_u32 v{r}, s{s}, v{r}'
    carry = []
    for u in range(7):
        nxt, prv = (u + 1) % 7, (u - 1) % 7
        mf = [qk_mfma(units[nxt][0], sb[nxt], s) for s in range(6)]
        mf += [pv_mfma(units[prv][0], sb[prv], t, ct) for t in range(2) for ct in range(3)]
        shadow = {}; mem = {}; pre = {}; extra = []
        if u in kload:
            for s in range(6): mem.setdefault(s, []).append(kread(vKA[kload[u]], s))
        if u in vload:
            p = vload[u]
            for t in range(2):
                for ct in range(3): mem.setdefault(6 + 3*t + ct, []).extend(vread(vVA[p], vVB[p], t, ct))
        if prv in vload: shadow[5] = f's_waitcnt lgkmcnt({5 if u in kload else 0})'
        if u in kload: shadow[11] = f's_waitcnt lgkmcnt({10 if u in vload else 0})'
        if u == 0:
            shadow[0] = f's_cmp_lt_u32 s{sCNT}, 5'
            shadow[1] = f's_cselect_b32 s{sTMP}, 0, s{sK0}'
            shadow[2] = f's_cselect_b32 s{sTE}, s{sT}, 0x30000'
            shadow[3] = f's_sub_u32 s{sD0}, s{sDn}, s{sTMP}'
            shadow[4] = f's_add_u32 s{sT}, s{sT}, s{sDp}'
        if u == 1:
            mem.setdefault(0, []).append(flag_load())
            extra += [adv(vKA[1], sDn), adv(vVA[0], sD0), adv(vVB[0], sD0), adv(vVA[3], sDp), adv(vVB[3], sDp), adv(vKA[0], sD0)]
        if u == 3:
            shadow[0] = 's_waitcnt vmcnt(0)'
            pre[0] = ['s_barrier']
            pre[1] = [flag_cmp()]
            shadow[2] = f's_mov_b32 m0, s{sTE}'
            shadow[3] = f's_cbranch_vccnz L_slow_{nm}\nL_back_{nm}:'
            for i, g in enumerate((4, 6, 7, 8)): mem.setdefault(g, []).append(dma(i))
            shadow[9] = f's_add_u32 m0, s{sTE}, {4*PC}'
            for i, g in enumerate((10, 11)): mem.setdefault(g, []).append(dma(4 + i))
            extra += [adv(vKA[2], sDn)]
        if u == 4:
            shadow[0] = f's_add_u32 s{sFO}, s{sFO}, {32*FS}'
            shadow[1] = f's_min_u32 s{sFO}, s{sFO}, s{sFM}'
            shadow[2] = f's_add_u32 s{sG[0]}, s{sG[0]}, {GB}'
            shadow[3] = f's_add_u32 s{sG[1]}, s{sG[1]}, {GB}'
        if u == 5:
            extra += [adv(vVA[1], sDn), adv(vVB[1], sDn), adv(vKA[3], sDn), adv(vVA[2], sDn), adv(vVB[2], sDn)]
        if u == 6:
            shadow[1] = f's_add_u32 s{sTMP}, s{sDn}, s{sDp}'
            shadow[2] = f's_mov_b32 s{sDp}, s{sDn}'
            shadow[3] = f's_sub_u32 s{sDn}, 0, s{sTMP}'
            shadow[4] = f's_add_u32 s{sCNT}, s{sCNT}, 1'
            shadow[5] = f's_cmp_lt_u32 s{sCNT}, 6'
        carry = schedule_stage(a, mf, shadow, mem, pre, softmax_ops(units[u][0], sb[u]), extra, carry, u in (0, 2, 4))
    assert not carry
    a(f's_cbranch_scc1 L_loop_{nm}')

def slow_path(a, nm):
    a.label(f'L_slow_{nm}')
    spin(a, f'L_spin_{nm}')
    a(f's_branch L_back_{nm}')

def lane_addr(a, rK, rA, rB, t0, t1):
    a(f'''
    v_lshrrev_b32 v{t0}, 5, v1
    v_mul_u32_u24 v{rK}, {PC}, v{t0}
    v_and_b32 v{t1}, 31, v1
    v_lshl_add_u32 v{rK}, v{t1}, 4, v{rK}
    v_bfe_u32 v{t1}, v1, 2, 2
    v_lshl_add_u32 v{t1}, v{t0}, 2, v{t1}
    v_lshlrev_b32 v{rB}, 4, v{t1}
    v_bfe_u32 v{t1}, v1, 1, 1
    v_lshl_add_u32 v{rB}, v{t1}, 3, v{rB}
    v_and_b32 v{t1}, 1, v1
    v_mul_u32_u24 v{t1}, {PC}, v{t1}
    v_add_u32 v{rB}, v{rB}, v{t1}
    v_bfe_u32 v{t1}, v1, 4, 1
    v_mul_u32_u24 v{t0}, {2*PC}, v{t1}
    v_add_u32 v{rA}, v{rB}, v{t0}
    v_lshl_add_u32 v{rB}, v{t1}, 9, v{rB}
    ''')

def half_softmax_ops(sbuf, tile):
    S = vS[sbuf]; L = vL[tile]
    o = [f'v_exp_f32 v{S+i}, v{S+i}' for i in range(8)]
    o += [f'v_add_f32 v{L}, v{L}, v{S+i}' for i in range(8)]
    o += [f'v_cvt_pk_bf16_f32 v{S+j}, v{S+2*j}, v{S+2*j+1}' for j in range(4)]
    return o
def lsum_ops(tile, r, tag):
    L = vL[tile]
    return [f'v_mov_b32 v{r}, v{L}', 's_nop 1', f'v_permlane32_swap_b32 v{L}, v{r}', 's_nop 0',
            f'v_add_f32 v{r}, v{L}, v{r}', f'v_med3_f32 v{r+1}, v{r}, s58, v{vHI}', f'v_cmp_neq_f32 vcc, v{r+1}, v{r}',
            f's_cbranch_vccnz L_redo_{tag}', f'L_redone_{tag}:', f'v_rcp_f32 v{r}, v{r}']
def redo(a, tile, r, tag):
    k, b = rO[tile]
    L = vL[tile]; X = aX[tile]; S = vS[2]; M = vS[3]
    sd = rng('v', S, 16)
    rK, rA, rB = 12, 13, 14
    a.label(f'L_redo_{tag}')
    a('s_waitcnt vmcnt(0) lgkmcnt(0)')
    lane_addr(a, rK, rA, rB, 4, 5)
    a(f's_mul_i32 s59, s{sW}, {OST}')
    a(f's_add_u32 s59, s59, {STG0}')
    for x in (rK, rA, rB): a(f'v_add_u32 v{x}, s59, v{x}')
    a('v_mov_b32 v4, 0xff800000')
    a('s_mov_b32 s55, 0')
    def stage():
        a('s_mov_b32 m0, s59')
        a(f's_add_u32 s57, s55, {4*PC}')
        for p in range(4): a(f'buffer_load_dwordx4 v{vDMA}, s[24:27], s55 offen offset:{PC*p} sc1 lds')
        a(f's_add_u32 m0, s59, {4*PC}')
        a('s_nop 0')
        for p in range(2): a(f'buffer_load_dwordx4 v{vDMA}, s[24:27], s57 offen offset:{PC*p} sc1 lds')
        a('s_waitcnt vmcnt(0)')
        for s in range(6): a(kread(rK, s))
    def qk(c):
        a('s_waitcnt lgkmcnt(0)')
        for s in range(6):
            a(f'v_mfma_f32_32x32x16_bf16 {sd}, {rng("a", aK+4*s, 4)}, {rng("a", X+4*s, 4)}, {c if s == 0 else sd}')
        a('s_nop 15')
    def mx(n):
        for i in range(0, n, 2): a(f'v_max3_f32 v4, v4, v{S+i}, v{S+i+1}')
    a.label(f'L_redo1_{tag}')
    stage(); qk('0')
    a(f's_cmp_eq_u32 s55, {24*TILE}')
    a(f's_cbranch_scc1 L_redo1e_{tag}')
    mx(16)
    a(f's_add_u32 s55, s55, {TILE}')
    a(f's_branch L_redo1_{tag}')
    a.label(f'L_redo1e_{tag}')
    mx(8)
    a('v_mov_b32 v5, v4')
    a('s_nop 1')
    a('v_permlane32_swap_b32 v4, v5')
    a('s_nop 0')
    a('v_max_f32 v4, v4, v5')
    for i in range(16): a(f'v_sub_f32 v{M+i}, 0, v4')
    for i in range(48): a(f'v_mov_b32 v{b+i}, 0')
    a(f'v_mov_b32 v{L}, 0')
    a('s_mov_b32 s55, 0')
    def sm(n):
        for i in range(n): a(f'v_exp_f32 v{S+i}, v{S+i}')
        a('s_nop 0')
        for i in range(n): a(f'v_add_f32 v{L}, v{L}, v{S+i}')
        for p in range(n // 2):
            t, j = divmod(p, 4)
            a(f'v_cvt_pk_bf16_f32 v{S+8*t+j}, v{S+2*p}, v{S+2*p+1}')
        a('s_nop 1')
        for t in range(n // 8):
            for ct in range(3): a(pv_mfma(tile, 2, t, ct))
    a.label(f'L_redo2_{tag}')
    stage()
    for t in range(2):
        for ct in range(3):
            for x in vread(rA, rB, t, ct): a(x)
    qk(rng('v', M, 16))
    a(f's_cmp_eq_u32 s55, {24*TILE}')
    a(f's_cbranch_scc1 L_redo2e_{tag}')
    sm(16)
    a(f's_add_u32 s55, s55, {TILE}')
    a(f's_branch L_redo2_{tag}')
    a.label(f'L_redo2e_{tag}')
    sm(8)
    a(f'v_mov_b32 v{r}, v{L}')
    a('s_nop 1')
    a(f'v_permlane32_swap_b32 v{L}, v{r}')
    a('s_nop 0')
    a(f'v_add_f32 v{r}, v{L}, v{r}')
    a('s_nop 15')
    a(f's_branch L_redone_{tag}')
def cvt_ops(tile, P):
    b = rO[tile][1]
    return [f'v_cvt_pk_bf16_f32 v{P+j}, v{b+2*j}, v{b+2*j+1}' for j in range(24)]
def proj_mfmas(tile, P):
    b = rO[tile][1]; m = []
    for cot in range(3):
        d = rng('v', b + 16 * cot, 16)
        for s in range(6):
            m.append(f'v_mfma_f32_32x32x16_bf16 {d}, {wreg(6*cot+s)}, {rng("v", P+4*s, 4)}, {"0" if s == 0 else d}')
    return m
def fin_ops(tile, cot, r, pk=False):
    o = rO[tile][1] + 16 * cot
    out = []
    for j in range(8):
        if pk:
            out.append(f'v_pk_mul_f32 v[{o+2*j}:{o+2*j+1}], v[{o+2*j}:{o+2*j+1}], v[{r}:{r+1}]')
        else:
            out += [f'v_mul_f32 v{o+2*j}, v{r}, v{o+2*j}', f'v_mul_f32 v{o+2*j+1}, v{r}, v{o+2*j+1}',
                    f'v_cvt_pk_bf16_f32 v{o+j}, v{o+2*j}, v{o+2*j+1}']
    if pk: out += [f'v_cvt_pk_bf16_f32 v{o+j}, v{o+2*j}, v{o+2*j+1}' for j in range(8)]
    return out + [f'ds_write_b64 v{vSW}, v[{o+2*i}:{o+2*i+1}] offset:{64*cot+16*i}' for i in range(4)]
def store_ops(R, soff, s2):
    return ['s_waitcnt lgkmcnt(0)'] + [f'ds_read_b128 v[{R+4*j}:{R+4*j+3}], v{vRB[j%3]} offset:{(j//3)*16*208}' for j in range(6)] + [f's_add_u32 s{s2}, s{soff}, 4096']
def store_ops2(R, soff, s2, waits=True):
    o = []
    for j in range(6):
        if waits: o.append(f's_waitcnt lgkmcnt({5-j})')
        o.append(f'buffer_store_dwordx4 v[{R+4*j}:{R+4*j+3}], v{vDMA}, s[20:23], s{soff if j < 4 else s2} offen offset:{1024*(j%4)} nt')
    return o

def code_prefetch(a):
    a('s_getpc_b64 s[58:59]')
    a.label('L_pc')
    a(f's_sub_u32 s58, s58, L_pc-{NAME}')
    a('s_subb_u32 s59, s59, 0')
    a('v_lshlrev_b32 v6, 7, v1')
    for k in range(3):
        a(f'v_min_u32 v7, L_end-{NAME}, v6')
        a('v_mov_b32 v5, s59')
        a('v_add_co_u32 v4, vcc, s58, v7')
        a('v_addc_co_u32 v5, vcc, 0, v5, vcc')
        a(f'global_load_dword a{252+k}, v[4:5], off')
        if k < 2: a('v_add_u32 v6, 0x2000, v6')

def gen_spare(a):
    a.label('L_spare')
    a(f'''
    s_cmp_gt_u32 s{sW}, 1
    s_cbranch_scc1 L_end
    s_cmp_gt_u32 s2, 27
    s_cbranch_scc1 L_end
    s_cmp_eq_u32 s2, 27
    s_cbranch_scc1 L_sp_nonce
    s_mul_i32 s28, s2, 57
    s_lshr_b32 s28, s28, 9
    s_mul_i32 s28, s28, 9
    s_sub_u32 s28, s2, s28
    s_mov_b32 s56, s8
    s_mov_b32 s57, s9
    s_mov_b32 s58, 36864
    s_mov_b32 s59, 0x20000
    v_and_b32 v3, 31, v1
    v_lshrrev_b32 v4, 5, v1
    v_mul_u32_u24 v6, 384, v3
    v_lshl_add_u32 v6, v4, 4, v6
    s_mul_i32 s29, s28, 11
    s_lshr_b32 s29, s29, 5
    s_mul_i32 s30, s29, 3
    s_sub_u32 s30, s28, s30
    s_cmp_eq_u32 s{sW}, 1
    s_cbranch_scc1 L_sp_vo
    s_mov_b32 s52, s6
    s_mov_b32 s53, s7
    s_mov_b32 s54, 18432
    s_mov_b32 s55, 0x20000
    v_mul_u32_u24 v5, 192, v3
    v_lshl_add_u32 v5, v4, 4, v5
    s_mul_i32 s31, s29, {32*192}
    s_mul_i32 s32, s30, {32*384}
    ''')
    for s in range(6):
        a(f'buffer_load_dwordx4 v[{8+4*s}:{11+4*s}], v5, s[52:55], s31 offen offset:{32*s}')
        a(f'buffer_load_dwordx4 v[{32+4*s}:{35+4*s}], v6, s[56:59], s32 offen offset:{32*s}')
    a(f'''
    v_lshlrev_b32 v7, 4, v3
    v_lshl_add_u32 v7, v4, 3, v7
    s_mul_i32 s33, s30, 6
    s_lshl_b32 s34, s29, 1
    s_add_u32 s33, s33, s34
    s_lshl_b32 s33, s33, 10
    s_add_u32 s33, s33, {WQK_OFF}
    s_mov_b32 s35, 0x{f32bits(CST):08x}
    s_lshl_b32 s36, s28, {WL}
    s_add_u32 s36, s36, {WFLAG_OFF}
    ''')
    for s in range(6):
        a(f's_waitcnt vmcnt({10-2*s})')
        a(f'v_mfma_f32_32x32x16_bf16 v[64:79], v[{8+4*s}:{11+4*s}], v[{32+4*s}:{35+4*s}], {"0" if s == 0 else "v[64:79]"}')
    a('s_nop 15')
    for r in range(16): a(f'v_mul_f32 v{64+r}, s35, v{64+r}')
    for r in range(8): a(f'v_cvt_pk_bf16_f32 v{80+r}, v{64+2*r}, v{65+2*r}')
    for i in range(4):
        a(f'buffer_store_dwordx2 v[{80+2*i}:{81+2*i}], v7, s[24:27], s33 offen offset:{(i>>1)*1024 + (i&1)*512} sc1')
    a.label('L_sp_flag')
    a(f'''
    v_mov_b32 v{vZ}, 0
    s_mov_b32 s{sSP}, 0
    ''')
    nonce_spin(a, 'L_sp_n')
    a(f'''
    s_mov_b64 exec, 1
    buffer_store_dwordx2 v[{vF}:{vF+1}], v{vZ}, s[24:27], s36 offen sc1
    s_endpgm
    ''')
    a.label('L_sp_nonce')
    a(f'''
    s_cmp_lg_u32 s{sW}, 0
    s_cbranch_scc1 L_end
    s_memrealtime s[28:29]
    v_mov_b32 v4, 0
    s_waitcnt lgkmcnt(0)
    s_or_b32 s29, s29, 0x40000000
    v_mov_b32 v2, s28
    v_mov_b32 v3, s29
    s_mov_b64 exec, 1
    buffer_store_dwordx2 v[2:3], v4, s[48:51], 0 offen sc1
    s_mov_b32 exec_lo, 0x{DUMMY & 0xffffffff:08x}
    s_mov_b32 exec_hi, 0
    v_lshlrev_b32 v4, {FL}, v1
    s_mov_b32 s30, {FLAG_OFF + 192*FS}
    buffer_store_dwordx2 v[2:3], v4, s[24:27], s30 offen sc1
    s_endpgm
    ''')
def gen_spare_vo(a):
    a.label('L_sp_vo')
    a(f'''
    s_cmp_gt_u32 s2, 8
    s_cbranch_scc1 L_end
    s_mov_b32 s20, s10
    s_mov_b32 s21, s11
    s_mov_b32 s22, 18432
    s_mov_b32 s23, 0x20000
    v_lshlrev_b32 v7, 4, v1
    v_lshrrev_b32 v56, 2, v1
    v_and_b32 v57, 3, v1
    v_mul_u32_u24 v56, 192, v56
    v_lshl_add_u32 v56, v57, 4, v56
    s_lshl_b32 s31, s30, 6
    s_mov_b32 s34, 0
    ''')
    for p in range(6):
        a('s_mov_b32 m0, s34')
        a('s_add_u32 s34, s34, 1024')
        a('buffer_load_dwordx4 v56, s[20:23], s31 offen lds')
        a(f's_add_u32 s31, s31, {16*192}')
    a(f's_mul_i32 s32, s29, {32*384}')
    for s in range(6):
        a(f'buffer_load_dwordx4 v[{8+4*s}:{11+4*s}], v6, s[56:59], s32 offen offset:{192+32*s}')
    a(f'''
    v_bfe_u32 v56, v1, 2, 2
    v_lshl_add_u32 v56, v4, 3, v56
    v_lshlrev_b32 v56, 6, v56
    v_bfe_u32 v58, v1, 4, 1
    v_lshl_add_u32 v56, v58, 5, v56
    v_lshl_add_u32 v56, v57, 3, v56
    s_mul_i32 s33, s30, {TILE}
    s_mul_i32 s34, s29, {2*PC}
    s_add_u32 s33, s33, s34
    s_add_u32 s33, s33, {25*TILE}
    s_lshl_b32 s36, s30, 3
    s_add_u32 s36, s36, s29
    s_add_u32 s36, s36, 200
    s_lshl_b32 s36, s36, {FL}
    s_add_u32 s36, s36, {FLAG_OFF}
    s_waitcnt vmcnt(6)
    ''')
    for s in range(6):
        for half in range(2):
            a(f'ds_read_b64_tr_b16 v[{32+4*s+2*half}:{33+4*s+2*half}], v56 offset:{s*1024 + half*256}')
    a('s_waitcnt vmcnt(0) lgkmcnt(0)')
    for s in range(6):
        a(f'v_mfma_f32_32x32x16_bf16 v[64:79], v[{8+4*s}:{11+4*s}], v[{32+4*s}:{35+4*s}], {"0" if s == 0 else "v[64:79]"}')
    a('s_nop 15')
    for r in range(8): a(f'v_cvt_pk_bf16_f32 v{80+r}, v{64+2*r}, v{65+2*r}')
    for k in range(2):
        a(f'buffer_store_dwordx4 v[{80+4*k}:{83+4*k}], v7, s[24:27], s33 offen offset:{PC*k} sc1')
    a('s_branch L_sp_flag')

def gen_consumer(a):
    a(f'''
    s_sub_u32 s3, s2, {NSP}
    v_lshlrev_b32 v{vDMA}, 4, v1
    s_lshr_b32 s55, s3, 3
    s_and_b32 s56, s3, 7
    s_mul_i32 s{sXB}, s55, 344064
    s_mul_i32 s57, s56, 6144
    s_mov_b32 s{sXS}, 43008
    s_cmp_eq_u32 s56, 7
    s_cselect_b32 s57, {7*43008}, s57
    s_cselect_b32 s{sXS}, 6144, s{sXS}
    s_add_u32 s{sXB}, s{sXB}, s57
    s_cmp_eq_u32 s{sW}, 3
    s_cbranch_scc1 L_x_w3
    s_mul_i32 s57, s{sW}, 3
    s_mul_i32 s58, s57, 6144
    s_mul_i32 s57, s57, s{sXS}
    s_add_u32 s57, s57, s{sXB}
    s_add_u32 s58, s58, {XST}
    s_mov_b32 m0, s58
    s_add_u32 s59, s57, 4096
    ''')
    for t in range(3):
        for p in range(4): a(f'buffer_load_dwordx4 v{vDMA}, s[16:19], s57 offen offset:{1024*p} nt lds')
        a(f's_add_u32 m0, s58, {6144*t + 4096}')
        a(f's_add_u32 s57, s57, s{sXS}')
        for p in range(2): a(f'buffer_load_dwordx4 v{vDMA}, s[16:19], s59 offen offset:{1024*p} nt lds')
        if t < 2:
            a(f's_add_u32 m0, s58, {6144*(t+1)}')
            a(f's_add_u32 s59, s59, s{sXS}')
        if t == 1:
            a(f's_cmp_eq_u32 s{sW}, 2')
            a('s_cbranch_scc1 L_cons2')
    a('s_branch L_cons2')
    gen_spare(a)
    a.label('L_x_w3')
    code_prefetch(a)
    a(f'v_mov_b32 v2, {NC_LDS}')
    for i in range(4): a(f'v_mov_b32 v{4+i}, 0')
    a('ds_write_b128 v2, v[4:7]')
    a('s_waitcnt lgkmcnt(0)')
    a.label('L_cons2')
    a('s_barrier')
    a(f'''
    s_mul_i32 s{sU}, s55, 7
    s_add_u32 s{sU}, s{sU}, s56
    s_mul_i32 s{sWT}, s{sW}, {TILE}
    v_mov_b32 v{vZ}, 0
    v_mov_b32 v2, {NC_LDS}
    s_mov_b32 s{sSP}, 0
    v_and_b32 v3, 31, v1
    v_lshrrev_b32 v4, 5, v1
    v_mul_u32_u24 v{vXO}, 192, v3
    v_lshl_add_u32 v{vXO}, v4, 4, v{vXO}
    s_mul_i32 s{sXo}, s{sW}, s{sXS}
    s_add_u32 s{sXo}, s{sXo}, s{sXB}
    s_lshl_b32 s57, s{sXS}, 2
    s_add_u32 s{sXb}, s{sXo}, s57
    s_mov_b32 s20, s12
    s_mov_b32 s21, s13
    s_mov_b32 s22, {X_BYTES}
    s_mov_b32 s23, 0x20000
    buffer_load_dword a240, v{vZ}, s[20:23], s{sXo} offen
    buffer_load_dword a241, v{vZ}, s[20:23], s{sXb} offen
    s_mov_b32 s{sCNT}, 0
    s_add_u32 s{sT}, s{sWT}, {2*GB}
    s_add_u32 s{sG[0]}, s{sWT}, {2*GB}
    s_add_u32 s{sG[1]}, s{sWT}, {2*GB + 4*PC}
    s_mov_b32 s{sDn}, {GB}
    s_mov_b32 s{sDp}, {(-2*GB) & 0xffffffff}
    s_lshl_b32 s{sFM}, s{sW}, {FL+3}
    s_add_u32 s{sFM}, s{sFM}, {FLAG_OFF + 192*FS}
    s_sub_u32 s{sFO}, s{sFM}, {192*FS}
    s_mul_i32 s57, s{sW}, {OST}
    s_add_u32 s57, s57, {STG0}
    v_mul_u32_u24 v{vSW}, 208, v3
    v_lshl_add_u32 v{vSW}, v4, 3, v{vSW}
    v_add_u32 v{vSW}, s57, v{vSW}
    ''')
    for j in range(3):
        a(f'v_add_u32 v5, {64*j}, v1')
        a('v_mul_u32_u24 v6, 171, v5')
        a('v_lshrrev_b32 v6, 11, v6')
        a('v_add_u32 v5, v5, v6')
        a('v_lshlrev_b32 v5, 4, v5')
        a(f'v_add_u32 v{vRB[j]}, s57, v5')
    a(f'''
    v_lshrrev_b32 v9, 4, v1
    v_and_b32 v10, 15, v1
    v_lshrrev_b32 v6, 2, v10
    v_lshl_add_u32 v6, v9, 3, v6
    v_mul_u32_u24 v5, 192, v6
    v_and_b32 v8, 3, v1
    v_lshl_add_u32 v5, v8, 3, v5
    s_lshl_b32 s57, s{sW}, 6
    s_add_u32 s57, s57, {XST}
    v_add_u32 v5, s57, v5
    v_cmp_eq_u32 vcc, v9, v10
    v_mov_b32 v6, 0x3f803f80
    v_lshlrev_b32 v8, 4, v8
    v_cndmask_b32 v{vS[3]}, 0, v6, vcc
    v_cndmask_b32 v{vS[3]+1}, 0, v6, vcc
    v_cndmask_b32 v{vS[3]+2}, 0, v6, vcc
    v_cndmask_b32 v{vS[3]+3}, 0, v6, vcc
    v_lshl_add_u32 v8, v4, 6, v8
    v_add_u32 v8, {LK_LDS}, v8
    v_and_b32 v3, 1, v9
    v_lshrrev_b32 v7, 1, v9
    v_lshlrev_b32 v29, 4, v10
    v_lshl_add_u32 v29, v7, 3, v29
    v_mul_u32_u24 v6, {PC}, v3
    v_add_u32 v6, v6, v29
    v_lshl_add_u32 v29, v3, 6, v29
    s_lshl_b32 s57, s{sW}, 8
    s_add_u32 s57, s57, {LK_LDS}
    v_add_u32 v29, s57, v29
    s_lshr_b32 s57, s{sU}, 3
    s_mul_i32 s57, s57, {TILE}
    s_and_b32 s58, s{sU}, 7
    s_lshl_b32 s58, s58, 6
    s_add_u32 s59, s57, s58
    s_lshl_b32 s58, s{sW}, 9
    s_mov_b32 s60, {2*PC}
    s_cmp_eq_u32 s{sW}, 2
    s_cselect_b32 s58, {4*PC}, s58
    s_cselect_b32 s60, 512, s60
    s_add_u32 s59, s59, s58
    s_add_u32 s57, s59, s60
    s_mul_i32 s58, s{sW}, 6144
    s_add_u32 s58, s58, {XST}
    v_add_u32 v30, s58, v{vXO}
    v_add_u32 v31, s58, v{vDMA}
    v_and_b32 v{vFO}, 7, v1
    v_lshlrev_b32 v{vFO}, {FL}, v{vFO}
    v_mov_b32 v3, 1
    ''')
    for t in vL: a(f'v_mov_b32 v{vL[t]}, 0')
    for t in ('own', 'B0'):
        for i in range(48): a(f'v_mov_b32 v{rO[t][1]+i}, 0')
    def xfrags(n):
        for s in range(6): a(f'ds_read_b128 {rng("a", aX["B1"]+4*s, 4)}, v30 offset:{32*s}')
        if n > 1:
            for s in range(6): a(f'ds_read_b128 {rng("a", aX["B2"]+4*s, 4)}, v30 offset:{4*6144+32*s}')
    a(f's_cmp_eq_u32 s{sW}, 3')
    a('s_cbranch_scc1 L_w3')
    a(f'buffer_load_dwordx2 v[{vF}:{vF+1}], v{vZ}, s[48:51], 0 offen sc1')
    stamp(a, 2)
    a('s_waitcnt vmcnt(3)')
    a('s_mov_b64 exec, 1')
    a('ds_add_u32 v2, v3')
    a('s_mov_b64 exec, -1')
    a.label('L_xw')
    a('ds_read_b32 v4, v2')
    a('s_waitcnt lgkmcnt(0)')
    a('v_cmp_ne_u32 vcc, 3, v4')
    a('s_cbranch_vccnz L_xw')
    stamp(a, 3)
    F = vM['own']
    def trr(row):
        for c in range(2):
            for half in range(2):
                d = F + (row * 2 + c) * 4 + 2 * half
                a(f'ds_read_b64_tr_b16 v[{d}:{d+1}], v5 offset:{row*6144 + half*768 + c*32}')
    IND = rng('v', vS[3], 4)
    D = vS[0]
    for row in range(3): trr(row)
    for row in range(8):
        a(f's_waitcnt lgkmcnt({4*min(2, 7-row)})')
        for c in range(2):
            f = rng('v', F + (row * 2 + c) * 4, 4)
            d1 = rng('v', D + 8 * (row & 1) + 4 * c, 4)
            a(f'v_mfma_f32_16x16x32_bf16 {d1}, {f}, {IND}, {"0" if row < 2 else d1}')
        if row + 3 < 8: trr(row + 3)
    a('s_mov_b32 s60, 0x3c800000')
    a('v_cmp_gt_u32 vcc, 4, v10')
    xfrags(2)
    for r in range(8): a(f'v_add_f32 v{D+r}, v{D+r}, v{D+8+r}')
    for r in range(8): a(f'v_mul_f32 v{D+r}, s60, v{D+r}')
    for r in range(4): a(f'v_cvt_pk_bf16_f32 v{D+16+r}, v{D+2*r}, v{D+2*r+1}')
    a('s_cmp_eq_u32 s56, 7')
    a('s_mov_b64 exec, vcc')
    a('s_cbranch_scc1 L_nostore')
    a(f'buffer_store_dwordx2 v[{D+16}:{D+17}], v6, s[24:27], s59 offen sc1')
    a(f'buffer_store_dwordx2 v[{D+18}:{D+19}], v6, s[24:27], s57 offen sc1')
    a.label('L_nostore')
    for c in range(2): a(f'ds_write_b64 v29, v[{D+16+2*c}:{D+17+2*c}] offset:{128*c}')
    a('s_mov_b64 exec, -1')
    stamp(a, 4)
    a('s_cbranch_scc1 L_nw0')
    a('s_waitcnt vmcnt(2)')
    a('s_branch L_nw1')
    a.label('L_nw0')
    a('s_waitcnt vmcnt(0)')
    a.label('L_nw1')
    a(f'v_cmp_eq_u32 vcc, 0, v{vF+1}')
    a('s_cbranch_vccz L_nonce_ok')
    nonce_spin(a, 'L_nonce')
    a(f'v_readfirstlane_b32 s{sN}, v{vF}')
    a(f'v_readfirstlane_b32 s{sN+1}, v{vF+1}')

    def g_dma(g):
        for q in range(6):
            a(f's_mov_b32 s60, {g*GB + q*4*PC}')
            a('s_mov_b32 m0, s60')
            a('s_nop 0')
            for p in range(4): a(f'buffer_load_dwordx4 v{vDMA}, s[24:27], s60 offen offset:{PC*p} sc1 lds')
    def publish(tag):
        a(f'''
        s_lshl_b32 s60, s{sU}, {FL}
        s_add_u32 s60, s60, {FLAG_OFF}
        v_mov_b32 v6, s{sN}
        v_mov_b32 v7, s{sN+1}
        s_waitcnt vmcnt(0)
        s_mov_b64 exec, 1
        ds_add_rtn_u32 v5, v2, v3 offset:12
        s_waitcnt lgkmcnt(0)
        v_cmp_eq_u32 vcc, 2, v5
        s_cmp_eq_u32 s56, 7
        s_cbranch_scc1 L_noflag{tag}
        s_cbranch_vccz L_noflag{tag}
        buffer_store_dwordx2 v[6:7], v{vZ}, s[24:27], s60 offen sc1
        ''')
        a.label(f'L_noflag{tag}')
        a('s_mov_b64 exec, -1')
        a('s_mov_b32 s59, 1')
    def ready_poll(lbl, n):
        a('s_mov_b32 s57, 0')
        a.label(lbl)
        a('ds_read2_b32 v[4:5], v2 offset0:1 offset1:2')
        a('s_waitcnt lgkmcnt(0)')
        a('v_add_u32 v4, v4, v5')
        a('v_cmp_ne_u32 vcc, 4, v4')
        a('s_cbranch_vccz L_q')
        a('s_add_u32 s57, s57, 1')
        a(f's_cmp_lt_u32 s57, {n}')
        a(f's_cbranch_scc1 {lbl}')
    a(f'''
    s_waitcnt lgkmcnt(0)
    s_mov_b64 exec, 1
    ds_add_u32 v2, v3 offset:4
    s_mov_b64 exec, -1
    s_mov_b32 s59, 0
    s_mov_b32 s55, 0
    ''')
    ready_poll('L_pq', 5)
    publish('a')
    a.label('L_pw')
    ready_poll('L_pw1', 64)
    a('s_branch L_pw')
    a.label('L_w3')
    for i in range(96): a(f'v_accvgpr_write_b32 a{i}, 0')
    stamp(a, 2)
    a('v_min_u32 v4, 8, v1')
    a(f'v_lshlrev_b32 v4, {WL}, v4')
    a(f's_mov_b32 s57, {WFLAG_OFF}')
    a.label('L_wq')
    a(f'buffer_load_dwordx2 v[6:7], v{vZ}, s[48:51], 0 offen sc1')
    a(f'buffer_load_dwordx2 v[{vF}:{vF+1}], v4, s[24:27], s57 offen sc1')
    a('s_waitcnt vmcnt(0)')
    a('v_cmp_eq_u32 s[58:59], 0, v7')
    a(f'v_cmp_ne_u64 vcc, v[6:7], v[{vF}:{vF+1}]')
    a('s_or_b64 vcc, vcc, s[58:59]')
    spin_tail(a, 'L_wq')
    a(f'v_readfirstlane_b32 s{sN}, v6')
    a(f'v_readfirstlane_b32 s{sN+1}, v7')
    stamp(a, 3)
    a(f's_mov_b32 s57, {WQK_OFF}')
    a(f's_mov_b32 s58, {WQ_LDS}')
    for q in range(5):
        a('s_mov_b32 m0, s58')
        a('s_add_u32 s58, s58, 4096')
        for p in range(4 if q < 4 else 2): a(f'buffer_load_dwordx4 v{vDMA}, s[24:27], s57 offen offset:{1024*p} sc1 lds')
        a('s_add_u32 s57, s57, 4096')
    stamp(a, 4, True)
    a.label('L_w3x')
    a('ds_read_b32 v4, v2')
    a('s_waitcnt lgkmcnt(0)')
    a('v_cmp_ne_u32 vcc, 3, v4')
    a('s_cbranch_vccnz L_w3x')
    xfrags(1)
    a('s_waitcnt vmcnt(0) lgkmcnt(0)')
    a('ds_write_b32 v2, v3 offset:8')
    a(f'v_lshlrev_b32 v{vFO2}, {FL}, v1')
    a(f's_mov_b32 s57, {FLAG_OFF}')
    f64 = f'buffer_load_dwordx2 v[{vF}:{vF+1}], v{vFO2}, s[24:27], s57 offen sc1'
    a.label('L_w3p')
    a('ds_read_b32 v4, v2 offset:4')
    a('s_waitcnt lgkmcnt(0)')
    a('v_cmp_ne_u32 vcc, 3, v4')
    a('s_cbranch_vccnz L_w3p')
    a('s_branch L_q3')
    a.label('L_q')
    stamp(a, 5)
    def q_reads():
        a(f'v_add_u32 v4, {WQ_LDS}, v{vDMA}')
        for f in range(18): a(f'ds_read_b128 {wreg(f)}, v4 offset:{1024*f}')
        for s in range(6): a(f'ds_read_b128 {rng("a", aV+4*s, 4)}, v8 offset:{128*s}')
    q_reads()
    blocks = [(ti, ct) for ti in range(2) for ct in range(3)]
    def qfin(n):
        ti, ct = blocks[n]; S = vS[n % 4]; X = aX['own' if ti == 0 else 'B0'] + 8 * ct
        out = [f'v_cvt_pk_bf16_f32 v{S+j}, v{S+2*j}, v{S+2*j+1}' for j in range(8)]
        out += [f'v_accvgpr_write_b32 a{X+j}, v{S+j}' for j in range(8)]
        if ti == 1: out += [f'ds_write_b128 v31, v[{S+4*k}:{S+4*k+3}] offset:{(2*ct+k)*1024}' for k in range(2)]
        return out
    def blk(n):
        ti, ct = blocks[n]; d = rng('v', vS[n % 4], 16); X = aX['B1' if ti == 0 else 'B2']
        return [f'v_mfma_f32_32x32x16_bf16 {d}, {wreg(6*ct+s)}, {rng("a", X+4*s, 4)}, {"0" if s == 0 else d}' for s in range(6)]
    def lqk(t, sbuf):
        d = rng('v', vS[sbuf], 16)
        return [f'v_mfma_f32_32x32x16_bf16 {d}, {rng("a", aV+4*s, 4)}, {rng("a", aX[t]+4*s, 4)}, {"0" if s == 0 else d}' for s in range(6)]
    def mops(t, sbuf):
        S = vS[sbuf]
        return [f'v_max3_f32 v9, v{S}, v{S+1}, v{S+2}', f'v_max_f32 v9, v9, v{S+3}'] + [f'v_sub_f32 v{vM[t]+i}, 0, v9' for i in range(16)]
    m0_, m1_, m2_ = blk(0), blk(1), blk(2)
    m0_[0] = 's_waitcnt lgkmcnt(15)\n' + m0_[0]
    m1_[0] = 's_waitcnt lgkmcnt(12)\n' + m1_[0]
    m2_[0] = 's_waitcnt lgkmcnt(6)\n' + m2_[0]
    def addr_setup():
        lane_addr(a, vKA[3], vVA[3], vVB[3], 21, 31)
        for i in range(4):
            a(f's_add_u32 s60, s{sW}, {1+i}')
            a('s_and_b32 s60, s60, 3')
            a(f's_mul_i32 s60, s60, {TILE}')
            if i == 0: a(f's_mov_b32 s{sK0}, s60')
            a(f'v_add_u32 v{vKA[i]}, s60, v{vKA[3]}')
            if i == 3: a(f's_add_u32 s60, s60, {2*GB}')
            a(f'v_add_u32 v{vVA[i]}, s60, v{vVA[3]}')
            a(f'v_add_u32 v{vVB[i]}, s60, v{vVB[3]}')
        for i in range(24): a(f'v_accvgpr_write_b32 a{aV+i}, 0')
    def zero_p():
        for i in range(4):
            a(f'v_mov_b32 v{vS[3]+i}, 0')
            a(f'v_mov_b32 v{vS[3]+8+i}, 0')
        a(f'v_mov_b32 v{vHI}, 0x{HI:08x}')
        a(f's_add_u32 s{sFO}, s{sFO}, {64*FS}')
    weave(a, m0_ + m1_, [('at', 8)] + qfin(0))
    a('s_cmp_eq_u32 s59, 1')
    a('s_cbranch_scc1 L_pub_done')
    publish('b')
    a.label('L_pub_done')
    l0 = lqk('own', 2)
    b3_ = blk(3)
    b3_[0] = 's_waitcnt lgkmcnt(0)\n' + b3_[0]
    a(f's_lshl_b32 s60, s{sW}, 10')
    a(f's_add_u32 s60, s60, {MX_LDS}')
    a(f'v_add_u32 v3, s60, v{vDMA}')
    weave(a, m2_ + b3_ + blk(4) + blk(5) + l0 + lqk('B0', 3),
          [('at', 2)] + qfin(1) + [('at', 8)] + qfin(2) + [('at', 14)] + qfin(3) + [('at', 20)] + qfin(4) + [('at', 26)] + qfin(5)
          + [('at', 32)] + mops('own', 2))
    stamp(a, 6); stamp(a, 7)
    addr_setup()
    for x in mops('B0', 3): a(x)
    a(f'ds_write_b128 v3, {rng("v", vM["B0"], 4)}')
    zero_p()
    a('s_waitcnt lgkmcnt(0)')
    a('s_barrier')
    stamp(a, 8)
    for s in range(6): a(kread(vKA[0], s))
    a('s_branch L_owner')
    a.label('L_q3')
    stamp(a, 5)
    q_reads()
    pa = OPT.get('pollat', 0)
    if pa == 0: a(f64)
    l0 = lqk('own', 3)
    l0[0] = 's_waitcnt lgkmcnt(0)\ns_nop 1\n' + l0[0]
    weave(a, m0_ + m1_ + m2_, ([('at', 6), f64] if pa == 1 else []) + [('at', 8)] + qfin(0) + ([('at', 13), f64] if pa == 2 else []) + [('at', 14)] + qfin(1))
    if pa == 3: a(f64)
    a('s_nop 11')
    for x in qfin(2): a(x)
    for x in l0: a(x)
    if pa == 4: a(f64)
    stamp(a, 6)
    a('s_mov_b32 s55, 0')
    a.label('L_gw')
    a('s_waitcnt vmcnt(0)')
    a(flag_cmp())
    a('s_cmp_eq_u32 s55, 1')
    a('s_mov_b64 s[58:59], vcc')
    a('s_cbranch_scc1 L_gw1')
    a('s_cmp_lg_u32 s58, 0')
    a('s_cbranch_scc1 L_gwn')
    a.label('L_gw0')
    g_dma(0)
    a('s_mov_b32 s55, 1')
    a.label('L_gw1')
    a('s_cmp_eq_u32 s59, 0')
    a('s_cbranch_scc1 L_gw2')
    a.label('L_gwn')
    a(f64)
    a(f's_add_u32 s{sSP}, s{sSP}, 1')
    a(f's_cmp_lt_u32 s{sSP}, {SPIN_MAX:#x}')
    a('s_cbranch_scc1 L_gw')
    a('s_mov_b32 s59, 0')
    a('s_cmp_eq_u32 s55, 0')
    a('s_cbranch_scc1 L_gw0')
    a.label('L_gw2')
    g_dma(1)
    stamp(a, 7)
    addr_setup()
    for x in mops('own', 3): a(x)
    zero_p()
    a(f'v_add_u32 v2, {QX_LDS}, v{vDMA}')
    a('s_waitcnt vmcnt(24)')
    a('s_barrier')
    stamp(a, 8)
    for s in range(6): a(kread(vKA[0], s))

    def first_qk(extra, nwait):
        a(f's_waitcnt lgkmcnt({nwait})')
        weave(a, [qk_mfma('own', 0, s) for s in range(6)], extra)
        a('s_waitcnt lgkmcnt(0)')
        a('s_nop 9')
        stamp(a, 11); stamp(a, 12, True)
        if OPT['stamps']: a('s_waitcnt lgkmcnt(0)')
    vhalf = [vread(vVA[0], vVB[0], 0, ct) for ct in range(3)]
    wv = [f'ds_read_b128 {wreg(f)}, v{vDMA} offset:{(1 + f//6)*TILE + (f%6)*PC}' for f in range(18)]
    PA, PB = vS[0], vS[2]

    ex = []
    for e, t in enumerate(('B0', 'B1', 'B2')):
        ex += [f'ds_read_b128 {rng("a", aX[t]+4*s, 4)}, v2 offset:{e*6144 + 1024*s}' for s in range(6)]
        ex += [f'ds_read_b128 {rng("v", vM[t]+4*k, 4)}, v2 offset:{24576 + 1024*e}' for k in range(4)]
    for x in ex[:6]: a(x)
    first_qk(ex[6:], 6)
    gen_loop(a, True)
    stamp(a, 13); stamp(a, 14, True)
    a(f'v_add_u32 v5, {MERGE0}, v{vDMA}')
    a('v_lshlrev_b32 v2, 2, v1')
    a(f'v_add_u32 v2, {MERGE0}, v2')
    a(f's_mov_b32 s58, 0x{LO:08x}')
    a('s_waitcnt lgkmcnt(0)')
    wr = []
    for e, t in enumerate(('B0', 'B1', 'B2')):
        k, b = rO[t]
        wr += [f'ds_write_b128 v5, {rng(k, b+4*j, 4)} offset:{e*MERGE + 1024*j}' for j in range(12)]
        wr += [f'ds_write_b32 v2, v{vL[t]} offset:{e*MERGE + 12288}']
    mf = [pv_mfma('own', 3, t, ct) for t in range(2) for ct in range(3)]
    hs = half_softmax_ops(0, 'own')
    k = 0
    for n, x in enumerate(wr):
        a(x)
        if n % 6 == 1 and n // 6 < 6:
            a(mf[n // 6])
            if n // 6 < 3:
                for y in vhalf[n // 6]: a(y)
        elif k < len(hs) and n >= 3:
            a(hs[k]); k += 1
    for x in hs[k:]: a(x)
    a('s_waitcnt lgkmcnt(0)')
    a('s_barrier')
    weave(a, [pv_mfma('own', 0, 0, ct) for ct in range(3)], wv)
    for x in lsum_ops('own', 2, 'h'): a(x)
    cv = cvt_ops('own', PA)
    a('s_nop 1')
    a('v_mov_b32 v3, v2')
    for x in cv[:8]: a(x)
    a('s_waitcnt lgkmcnt(0)')
    weave(a, proj_mfmas('own', PA), cv[8:] + [('at', 8)] + fin_ops('own', 0, 2) + [('at', 14)] + fin_ops('own', 1, 2))
    a('s_nop 7')
    for x in fin_ops('own', 2, 2, pk=True) + store_ops(PB, sXo, 60) + store_ops2(PB, sXo, 60): a(x)
    stamp(a, 15)
    stamp_store(a)
    a('s_endpgm')
    a.label('L_owner')
    first_qk([], 0)
    gen_loop(a, False)
    stamp(a, 13); stamp(a, 14, True)
    a(f's_mul_i32 s60, s{sW}, {MERGE}')
    a(f's_add_u32 s60, s60, {MERGE0}')
    a(f'v_add_u32 v6, s60, v{vDMA}')
    a('v_lshlrev_b32 v7, 2, v1')
    a('v_add_u32 v7, s60, v7')
    a(f's_mov_b32 s58, 0x{LO:08x}')
    a('s_waitcnt lgkmcnt(0)')
    mf = [qk_mfma('B0', 1, s) for s in range(6)] + [pv_mfma('own', 3, t, ct) for t in range(2) for ct in range(3)]
    hs = half_softmax_ops(0, 'own')
    fill = wv[0:4] + wv[8:10] + [('at', 1)] + wv[4:8] + wv[10:12] + [('at', 2)] + wv[12:18] + [('at', 3)] + hs[:9]
    fill += [('at', 6)] + vhalf[0] + hs[9:13] + [('at', 7)] + vhalf[1] + hs[13:17] + [('at', 8)] + vhalf[2] + hs[17:]
    hb = half_softmax_ops(1, 'B0')
    fill += [('at', 9)] + hb[:10]
    weave(a, mf, fill)
    a('s_waitcnt lgkmcnt(0)')
    mf = [pv_mfma('own', 0, 0, ct) for ct in range(3)] + [pv_mfma('B0', 1, 0, ct) for ct in range(3)]
    ls = lsum_ops('own', 2, 'oo')
    weave(a, mf, hb[10:] + [('at', 3)] + ls[:7])
    for x in ls[7:]: a(x)
    cv = cvt_ops('own', PA)
    for x in cv[:8]: a(x)
    a('v_mov_b32 v3, v2')
    b = rO['B0'][1]
    TT = [56 + 4 * j for j in range(10)]
    rdm = [f'ds_read_b128 v[{TT[j]}:{TT[j]+3}], v6 offset:{1024*j}' for j in range(10)]
    f0 = fin_ops('own', 0, 2); f1 = fin_ops('own', 1, 2)
    fill = cv[8:] + [('at', 8)] + f0[:24] + [('at', 12), 's_barrier'] + f0[24:] + ['ds_read_b32 v8, v7 offset:12288'] + rdm[:1]
    fill += [('at', 13)] + rdm[1:7] + [('at', 14)] + rdm[7:] + f1
    weave(a, proj_mfmas('own', PA), fill)
    for j in (10, 11): a(f'ds_read_b128 v[{PA+4*(j-10)}:{PA+4*(j-10)+3}], v6 offset:{1024*j}')
    TT += [PA, PA + 4]
    a('s_waitcnt lgkmcnt(6)')
    a(f'v_add_f32 v{vL["B0"]}, v{vL["B0"]}, v8')
    def padd(j):
        t = TT[j]
        a(f'v_pk_add_f32 v[{b+4*j}:{b+4*j+1}], v[{b+4*j}:{b+4*j+1}], v[{t}:{t+1}]')
        a(f'v_pk_add_f32 v[{b+4*j+2}:{b+4*j+3}], v[{b+4*j+2}:{b+4*j+3}], v[{t+2}:{t+3}]')
    for j in range(10): padd(j)
    for x in fin_ops('own', 2, 2, pk=True): a(x)
    a('s_waitcnt lgkmcnt(4)')
    padd(10); padd(11)
    so = store_ops(PA, sXo, 60)
    st2 = store_ops2(PA, sXo, 60, waits=False)
    ls = lsum_ops('B0', 2, 'ob')
    for x in ls[:7] + so + ls[7:]: a(x)
    cv = cvt_ops('B0', PB)
    for x in cv[:8]: a(x)
    a('v_mov_b32 v3, v2')
    fill = cv[8:14] + [('at', 1), 's_waitcnt lgkmcnt(0)', st2[0]] + cv[14:19] + [('at', 2), st2[1]] + cv[19:]
    for k in range(4): fill += [('at', 3 + k), st2[2 + k]]
    fill += [('at', 8)] + fin_ops('B0', 0, 2) + [('at', 14)] + fin_ops('B0', 1, 2)
    weave(a, proj_mfmas('B0', PB), fill)
    a('s_nop 3')
    for x in fin_ops('B0', 2, 2, pk=True) + store_ops(PB, sXb, 60) + store_ops2(PB, sXb, 60): a(x)
    stamp(a, 15)
    stamp_store(a)
    a('s_endpgm')
    slow_path(a, 'h'); slow_path(a, 'o')
    gen_spare_vo(a)
    redo(a, 'own', 2, 'h'); redo(a, 'own', 2, 'oo'); redo(a, 'B0', 2, 'ob')

DOC = """;
"""

def build(path):
    a = Asm()
    a.raw(f'.globl {NAME}')
    a.raw('.p2align 8')
    a.raw(f'.type {NAME},@function')
    a.label(NAME)
    a(f's_cmp_ge_u32 s2, {NSP+NCONS}')
    a('s_cbranch_scc1 L_end')
    stamp(a, 0, True); stamp(a, 1)
    a(f'''
    s_load_dwordx8 s[4:11], s[0:1], 0
    s_load_dwordx2 s[12:13], s[0:1], 32
    s_load_dwordx4 s[44:47], s[0:1], 40
    v_lshrrev_b32 v2, 6, v0
    v_and_b32 v1, 63, v0
    v_readfirstlane_b32 s{sW}, v2
    s_mov_b32 s18, {X_BYTES}
    s_mov_b32 s19, 0x20000
    s_mov_b32 s26, {WS_BYTES}
    s_mov_b32 s27, 0x20000
    s_mov_b32 s50, 256
    s_mov_b32 s51, 0x20000
    s_waitcnt lgkmcnt(0)
    s_mov_b32 s16, s4
    s_mov_b32 s17, s5
    s_mov_b32 s24, s46
    s_mov_b32 s25, s47
    s_mov_b32 s48, s44
    s_mov_b32 s49, s45
    s_cmp_lt_u32 s2, {NSP}
    s_cbranch_scc1 L_spare
    ''')
    gen_consumer(a)
    a.label('L_end')
    a('s_endpgm')
    out = HEADER
    out += f'; @launch grid=({NSP+NCONS},1,1) block=(256,1,1) lds={LDS_TOTAL}\n'
    out += DOC
    out += '.amdgcn_target "amdgcn-amd-amdhsa--gfx950"\n.text\n'
    out += a.text()
    out += '.section .rodata,"a"\n.p2align 6\n'
    out += kd(NAME, 512, 256)
    open(path, 'w').write(out)

if __name__ == '__main__':
    for o in sys.argv[2:]:
        if '=' in o:
            k, v = o.split('=')
            OPT[k] = int(v) if v.isdigit() else v.replace('+', ' ')
        else:
            OPT[o] = True
    build(sys.argv[1] if len(sys.argv) > 1 else 'k20.s')
```

```python
import sys, math, struct
from gen import Asm, f32bits, kd, HEADER, X_BYTES, CST

NAME = 'standalone__window_attn_twins__vision_kernel'
NSP, NCONS = int(next((o.split("=")[1] for o in sys.argv if o.startswith("NSP=")), 28)), 224
OPT = dict(stamps=False, sleep=4)
PC = 1088
TILE = 6 * PC
GB = 4 * TILE
WQK_OFF = 28 * TILE
FLAG_OFF = WQK_OFF + 18432
WFLAG_OFF = FLAG_OFF + 256 * 512
WS_BYTES = WFLAG_OFF + 16 * 1024
XST = 3 * GB
QX_LDS = XST
MX_LDS = XST + 24576
WQ_LDS = XST + 49152
LK_LDS = WQ_LDS + 18432
NC_LDS = LK_LDS + 768
MERGE = 12544
MERGE0 = XST
OST = 6656
STG0 = MERGE0 + 3 * MERGE
LDS_TOTAL = NC_LDS + 256
assert STG0 + 4 * OST <= LDS_TOTAL and FLAG_OFF % 128 == 0
SPIN_MAX = 0x8000
FL = int(next((o.split('=')[1] for o in sys.argv if o.startswith('FL=')), 4))
FS = 1 << FL
WL = int(next((o.split('=')[1] for o in sys.argv if o.startswith('WL=')), 7))

vFO2 = 0; vFO = 11
vKA = [12, 13, 14, 15]; vVA = [4, 5, 6, 7]; vVB = [8, 10, 29, 30]
vDMA = 16
vL = {'own': 17, 'B0': 18, 'B1': 19, 'B2': 20}
vXO = 21; vF = 22; vZ = 24; vRB = [25, 26, 27]; vSW = 28; vHI = 9
vS = [32, 48, 64, 80]
vM = {'own': 96, 'B0': 112, 'B1': 128, 'B2': 144}
rO = {'own': ('v', 160), 'B0': ('v', 208), 'B1': ('a', 0), 'B2': ('a', 48)}
aX = {'own': 96, 'B0': 120, 'B1': 144, 'B2': 168}
aK = 192; aV = 216
sN = 4; sW = 14; sSP = 15
sCNT = 28; sT = 29; sG = [30, 31]; sDn = 33; sDp = 34; sTE = 35; sTMP = 36; sXo = 37; sXb = 38; sXB = 39; sXS = 40
sFO = 41; sD0 = 42; sK0 = 43; sU = 53; sWT = 54; sFM = 61
ST0 = 62
_used = set(range(192, 196)) | {200 + 8 * b + k for b in range(3) for k in range(3)}
DUMMY = sum(1 << (b - 192) for b in range(192, 224) if b not in _used)
LO = f32bits(2.0 ** -90); HI = f32bits(2.0 ** 90)

def rng(kind, base, n): return f'{kind}[{base}:{base+n-1}]'
def stamp(a, idx, rt=False):
    if OPT['stamps']: a(f's_mem{"real" if rt else ""}time s[{ST0+2*idx}:{ST0+1+2*idx}]')
def stamp_store(a, n=11):
    if not OPT['stamps']: return
    a('s_mov_b64 exec, -1')
    a('s_waitcnt vmcnt(0) lgkmcnt(0)')
    a(f's_memtime s[{ST0+2*(n-2)}:{ST0+1+2*(n-2)}]')
    a(f's_memrealtime s[{ST0+2*(n-1)}:{ST0+1+2*(n-1)}]')
    a('s_waitcnt lgkmcnt(0)')
    a('s_mov_b32 s26, 0x1000000')
    a('s_lshl_b32 s3, s2, 2')
    a(f's_add_u32 s3, s3, s{sW}')
    a('s_lshl_b32 s3, s3, 6')
    a('s_add_u32 s3, s3, 0x100000')
    a('v_mov_b32 v2, 0')
    for i in range(16):
        a(f'v_mov_b32 v3, s{ST0+2*i}')
        a(f'buffer_store_dword v3, v2, s[24:27], s3 offen offset:{4*i}')

def qk_mfma(tile, sbuf, s, cinit=None):
    d = rng('v', vS[sbuf], 16)
    c = d if s else (rng('v', vM[tile], 16) if cinit is None else cinit)
    return f'v_mfma_f32_32x32x16_bf16 {d}, {rng("a", aK+4*s, 4)}, {rng("a", aX[tile]+4*s, 4)}, {c}'
def pv_mfma(tile, sbuf, t, ct):
    k, b = rO[tile]
    d = rng(k, b + 16 * ct, 16)
    return f'v_mfma_f32_32x32x16_bf16 {d}, {rng("a", aV+4*(3*t+ct), 4)}, {rng("v", vS[sbuf]+8*t, 4)}, {d}'
def koff(s):
    ct, e = s >> 1, s & 1
    return 2 * PC * e + 512 * ct if ct < 2 else 4 * PC + 512 * e
def kread(reg, s):
    return f'ds_read_b128 {rng("a", aK+4*s, 4)}, v{reg} offset:{koff(s)}'
def vread(ra, rb, t, ct):
    r = aV + 4 * (3 * t + ct)
    base = (512 * ct if ct < 2 else 4 * PC) + 256 * t
    reg = ra if ct < 2 else rb
    return [f'ds_read_b64_tr_b16 a[{r+2*h}:{r+2*h+1}], v{reg} offset:{base + 128*h}' for h in range(2)]
def dma(i):
    q, p = (0, i) if i < 4 else (1, i - 4)
    return f'buffer_load_dwordx4 v{vDMA}, s[24:27], s{sG[q]} offen offset:{PC*p} sc1 lds'
def flag_load(): return f'buffer_load_dwordx2 v[{vF}:{vF+1}], v{vFO}, s[24:27], s{sFO} offen sc1'
def flag2_load(): return f'buffer_load_dwordx2 v[{vF}:{vF+1}], v{vFO2}, s[24:27], s{sFO} offen sc1'
def flag_cmp(): return f'v_cmp_ne_u64 vcc, s[{sN}:{sN+1}], v[{vF}:{vF+1}]'
def wreg(f): return rng('v', vM['own'] + 4 * f, 4) if f < 16 else rng('a', 244 + 4 * (f - 16), 4)

def spin_tail(a, lbl):
    a(f's_cbranch_vccz {lbl}_ok')
    a(f's_sleep {OPT["sleep"]}')
    a(f's_add_u32 s{sSP}, s{sSP}, 1')
    a(f's_cmp_lt_u32 s{sSP}, {SPIN_MAX:#x}')
    a(f's_cbranch_scc1 {lbl}')
    a.label(lbl + '_ok')
def nonce_spin(a, lbl):
    a.label(lbl)
    a(f'buffer_load_dwordx2 v[{vF}:{vF+1}], v{vZ}, s[48:51], 0 offen sc1')
    a('s_waitcnt vmcnt(0)')
    a(f'v_cmp_eq_u32 vcc, 0, v{vF+1}')
    spin_tail(a, lbl)
def spin(a, lbl):
    a.label(lbl)
    a(flag_load())
    a('s_waitcnt vmcnt(0)')
    a(flag_cmp())
    spin_tail(a, lbl)

def softmax_ops(tile, sbuf):
    S = vS[sbuf]; L = vL[tile]
    E = lambda i: (f'v_exp_f32 v{S+i}, v{S+i}', 2, ('E', i))
    A = lambda i: (f'v_add_f32 v{L}, v{L}, v{S+i}', 1, ('A', i))
    def C(p):
        t, j = divmod(p, 4)
        return (f'v_cvt_pk_bf16_f32 v{S+8*t+j}, v{S+2*p}, v{S+2*p+1}', 1, ('C', p))
    ops = [E(0), E(1)]
    for p in range(1, 8):
        ops += [E(2*p), A(2*p-2), E(2*p+1), A(2*p-1), C(p-1)]
    return ops + [A(14), A(15), C(7)]
def ready(op, seq):
    kind, i = op[2]
    pos = lambda tag: seq.index(tag) if tag in seq else None
    n = len(seq)
    if kind == 'A':
        p = pos(('E', i)); return p is not None and n - p >= 2
    if kind == 'C':
        for q in (2*i, 2*i+1):
            e = pos(('E', q))
            if e is None or n - e < 2 or pos(('A', q)) is None: return False
        t, j = divmod(i, 4); dst = 8*t + j
        if pos(('A', dst)) is None: return False
        if dst // 2 != i and pos(('C', dst // 2)) is None: return False
    return True
def schedule_stage(a, mfmas, shadow, mem, pre, valu, extra, carry, may_carry):
    q = list(valu) + [(t, 1, ('X', k)) for k, t in enumerate(extra)]
    cq = list(carry)
    seq = []
    ng = len(mfmas)
    total = sum(o[1] for o in q) + len(cq)
    caps = [6 - len(mem.get(g, [])) - len(pre.get(g, [])) for g in range(ng)]
    used = 0
    for g in range(ng):
        a(mfmas[g]); seq.append(None)
        if g in shadow: a(shadow[g]); seq.append(None)
        for m in pre.get(g, []) + mem.get(g, []):
            a(m); seq.append(None)
        cap = caps[g]
        while cap > 0 and cq:
            a(cq.pop(0)); seq.append(None); cap -= 1; used += 1
        rest = sum(caps[g+1:])
        while cap > 0 and q:
            remaining = sum(o[1] for o in q)
            if used >= total * (g + 1) / ng and remaining <= rest - 2 * (ng - g - 1) // 3: break
            pick = next((k for k, o in enumerate(q[:6]) if o[1] <= cap and ready(o, seq)), None)
            if pick is None: break
            o = q.pop(pick)
            a(o[0]); seq.append(o[2]); cap -= o[1]; used += o[1]
    assert not cq
    if q:
        assert may_carry and all(o[1] == 1 for o in q) and len(q) <= 6, [o[0] for o in q]
    return [o[0] for o in q]

def cost(ins): return 2 if ins.startswith(('v_exp', 'v_rcp')) else 1
def weave(a, mfmas, fill, cap=6):
    q = list(fill)
    for g, m in enumerate(mfmas):
        a(m)
        c = cap; first = True; pv = False
        while q:
            it = q[0]
            if isinstance(it, tuple):
                if it[1] > g: break
                q.pop(0); continue
            k = 0 if (it.startswith('s_') and first) else cost(it)
            if it.startswith(('ds_', 'buffer_')) and pv: break
            if k > c: break
            a(q.pop(0)); c -= k; first = False
            pv = pv or it.startswith('v_')
    for it in q:
        if not isinstance(it, tuple): a(it)

def gen_loop(a, helper):
    nm = 'h' if helper else 'o'
    B = ['B0', 'B1', 'B2'] if helper else ['B0', 'B0', 'B0']
    units = [('own', 0), (B[0], 0), ('own', 1), (B[1], 1), ('own', 2), (B[2], 2), ('own', 3)]
    sb = [0, 1, 2, 0, 1, 2, 3]
    a.raw('.p2align 6')
    a.label(f'L_loop_{nm}')
    kload = {0: 1, 2: 2, 4: 3, 5: 0}
    vload = {2: 1, 4: 2, 6: 3, 0: 0}
    adv = lambda r, s: f'v_add_u32 v{r}, s{s}, v{r}'
    carry = []
    for u in range(7):
        nxt, prv = (u + 1) % 7, (u - 1) % 7
        mf = [qk_mfma(units[nxt][0], sb[nxt], s) for s in range(6)]
        mf += [pv_mfma(units[prv][0], sb[prv], t, ct) for t in range(2) for ct in range(3)]
        shadow = {}; mem = {}; pre = {}; extra = []
        if u in kload:
            for s in range(6): mem.setdefault(s, []).append(kread(vKA[kload[u]], s))
        if u in vload:
            p = vload[u]
            for t in range(2):
                for ct in range(3): mem.setdefault(6 + 3*t + ct, []).extend(vread(vVA[p], vVB[p], t, ct))
        if prv in vload: shadow[5] = f's_waitcnt lgkmcnt({5 if u in kload else 0})'
        if u in kload: shadow[11] = f's_waitcnt lgkmcnt({10 if u in vload else 0})'
        if u == 0:
            shadow[0] = f's_cmp_lt_u32 s{sCNT}, 5'
            shadow[1] = f's_cselect_b32 s{sTMP}, 0, s{sK0}'
            shadow[2] = f's_cselect_b32 s{sTE}, s{sT}, 0x30000'
            shadow[3] = f's_sub_u32 s{sD0}, s{sDn}, s{sTMP}'
            shadow[4] = f's_add_u32 s{sT}, s{sT}, s{sDp}'
        if u == 1:
            mem.setdefault(0, []).append(flag_load())
            extra += [adv(vKA[1], sDn), adv(vVA[0], sD0), adv(vVB[0], sD0), adv(vVA[3], sDp), adv(vVB[3], sDp), adv(vKA[0], sD0)]
        if u == 3:
            shadow[0] = 's_waitcnt vmcnt(0)'
            pre[0] = ['s_barrier']
            pre[1] = [flag_cmp()]
            shadow[2] = f's_mov_b32 m0, s{sTE}'
            shadow[3] = f's_cbranch_vccnz L_slow_{nm}\nL_back_{nm}:'
            for i, g in enumerate((4, 6, 7, 8)): mem.setdefault(g, []).append(dma(i))
            shadow[9] = f's_add_u32 m0, s{sTE}, {4*PC}'
            for i, g in enumerate((10, 11)): mem.setdefault(g, []).append(dma(4 + i))
            extra += [adv(vKA[2], sDn)]
        if u == 4:
            shadow[0] = f's_add_u32 s{sFO}, s{sFO}, {32*FS}'
            shadow[1] = f's_min_u32 s{sFO}, s{sFO}, s{sFM}'
            shadow[2] = f's_add_u32 s{sG[0]}, s{sG[0]}, {GB}'
            shadow[3] = f's_add_u32 s{sG[1]}, s{sG[1]}, {GB}'
        if u == 5:
            extra += [adv(vVA[1], sDn), adv(vVB[1], sDn), adv(vKA[3], sDn), adv(vVA[2], sDn), adv(vVB[2], sDn)]
        if u == 6:
            shadow[1] = f's_add_u32 s{sTMP}, s{sDn}, s{sDp}'
            shadow[2] = f's_mov_b32 s{sDp}, s{sDn}'
            shadow[3] = f's_sub_u32 s{sDn}, 0, s{sTMP}'
            shadow[4] = f's_add_u32 s{sCNT}, s{sCNT}, 1'
            shadow[5] = f's_cmp_lt_u32 s{sCNT}, 6'
        carry = schedule_stage(a, mf, shadow, mem, pre, softmax_ops(units[u][0], sb[u]), extra, carry, u in (0, 2, 4))
    assert not carry
    a(f's_cbranch_scc1 L_loop_{nm}')

def slow_path(a, nm):
    a.label(f'L_slow_{nm}')
    spin(a, f'L_spin_{nm}')
    a(f's_branch L_back_{nm}')

def lane_addr(a, rK, rA, rB, t0, t1):
    a(f'''
    v_lshrrev_b32 v{t0}, 5, v1
    v_mul_u32_u24 v{rK}, {PC}, v{t0}
    v_and_b32 v{t1}, 31, v1
    v_lshl_add_u32 v{rK}, v{t1}, 4, v{rK}
    v_bfe_u32 v{t1}, v1, 2, 2
    v_lshl_add_u32 v{t1}, v{t0}, 2, v{t1}
    v_lshlrev_b32 v{rB}, 4, v{t1}
    v_bfe_u32 v{t1}, v1, 1, 1
    v_lshl_add_u32 v{rB}, v{t1}, 3, v{rB}
    v_and_b32 v{t1}, 1, v1
    v_mul_u32_u24 v{t1}, {PC}, v{t1}
    v_add_u32 v{rB}, v{rB}, v{t1}
    v_bfe_u32 v{t1}, v1, 4, 1
    v_mul_u32_u24 v{t0}, {2*PC}, v{t1}
    v_add_u32 v{rA}, v{rB}, v{t0}
    v_lshl_add_u32 v{rB}, v{t1}, 9, v{rB}
    ''')

def half_softmax_ops(sbuf, tile):
    S = vS[sbuf]; L = vL[tile]
    o = [f'v_exp_f32 v{S+i}, v{S+i}' for i in range(8)]
    o += [f'v_add_f32 v{L}, v{L}, v{S+i}' for i in range(8)]
    o += [f'v_cvt_pk_bf16_f32 v{S+j}, v{S+2*j}, v{S+2*j+1}' for j in range(4)]
    return o
def lsum_ops(tile, r, tag):
    L = vL[tile]
    return [f'v_mov_b32 v{r}, v{L}', 's_nop 1', f'v_permlane32_swap_b32 v{L}, v{r}', 's_nop 0',
            f'v_add_f32 v{r}, v{L}, v{r}', f'v_med3_f32 v{r+1}, v{r}, s58, v{vHI}', f'v_cmp_neq_f32 vcc, v{r+1}, v{r}',
            f's_cbranch_vccnz L_redo_{tag}', f'L_redone_{tag}:', f'v_rcp_f32 v{r}, v{r}']
def redo(a, tile, r, tag):
    k, b = rO[tile]
    L = vL[tile]; X = aX[tile]; S = vS[2]; M = vS[3]
    sd = rng('v', S, 16)
    rK, rA, rB = 12, 13, 14
    a.label(f'L_redo_{tag}')
    a('s_waitcnt vmcnt(0) lgkmcnt(0)')
    lane_addr(a, rK, rA, rB, 4, 5)
    a(f's_mul_i32 s59, s{sW}, {OST}')
    a(f's_add_u32 s59, s59, {STG0}')
    for x in (rK, rA, rB): a(f'v_add_u32 v{x}, s59, v{x}')
    a('v_mov_b32 v4, 0xff800000')
    a('s_mov_b32 s55, 0')
    def stage():
        a('s_mov_b32 m0, s59')
        a(f's_add_u32 s57, s55, {4*PC}')
        for p in range(4): a(f'buffer_load_dwordx4 v{vDMA}, s[24:27], s55 offen offset:{PC*p} sc1 lds')
        a(f's_add_u32 m0, s59, {4*PC}')
        a('s_nop 0')
        for p in range(2): a(f'buffer_load_dwordx4 v{vDMA}, s[24:27], s57 offen offset:{PC*p} sc1 lds')
        a('s_waitcnt vmcnt(0)')
        for s in range(6): a(kread(rK, s))
    def qk(c):
        a('s_waitcnt lgkmcnt(0)')
        for s in range(6):
            a(f'v_mfma_f32_32x32x16_bf16 {sd}, {rng("a", aK+4*s, 4)}, {rng("a", X+4*s, 4)}, {c if s == 0 else sd}')
        a('s_nop 15')
    def mx(n):
        for i in range(0, n, 2): a(f'v_max3_f32 v4, v4, v{S+i}, v{S+i+1}')
    a.label(f'L_redo1_{tag}')
    stage(); qk('0')
    a(f's_cmp_eq_u32 s55, {24*TILE}')
    a(f's_cbranch_scc1 L_redo1e_{tag}')
    mx(16)
    a(f's_add_u32 s55, s55, {TILE}')
    a(f's_branch L_redo1_{tag}')
    a.label(f'L_redo1e_{tag}')
    mx(8)
    a('v_mov_b32 v5, v4')
    a('s_nop 1')
    a('v_permlane32_swap_b32 v4, v5')
    a('s_nop 0')
    a('v_max_f32 v4, v4, v5')
    for i in range(16): a(f'v_sub_f32 v{M+i}, 0, v4')
    for i in range(48): a(f'v_mov_b32 v{b+i}, 0')
    a(f'v_mov_b32 v{L}, 0')
    a('s_mov_b32 s55, 0')
    def sm(n):
        for i in range(n): a(f'v_exp_f32 v{S+i}, v{S+i}')
        a('s_nop 0')
        for i in range(n): a(f'v_add_f32 v{L}, v{L}, v{S+i}')
        for p in range(n // 2):
            t, j = divmod(p, 4)
            a(f'v_cvt_pk_bf16_f32 v{S+8*t+j}, v{S+2*p}, v{S+2*p+1}')
        a('s_nop 1')
        for t in range(n // 8):
            for ct in range(3): a(pv_mfma(tile, 2, t, ct))
    a.label(f'L_redo2_{tag}')
    stage()
    for t in range(2):
        for ct in range(3):
            for x in vread(rA, rB, t, ct): a(x)
    qk(rng('v', M, 16))
    a(f's_cmp_eq_u32 s55, {24*TILE}')
    a(f's_cbranch_scc1 L_redo2e_{tag}')
    sm(16)
    a(f's_add_u32 s55, s55, {TILE}')
    a(f's_branch L_redo2_{tag}')
    a.label(f'L_redo2e_{tag}')
    sm(8)
    a(f'v_mov_b32 v{r}, v{L}')
    a('s_nop 1')
    a(f'v_permlane32_swap_b32 v{L}, v{r}')
    a('s_nop 0')
    a(f'v_add_f32 v{r}, v{L}, v{r}')
    a('s_nop 15')
    a(f's_branch L_redone_{tag}')
def cvt_ops(tile, P):
    b = rO[tile][1]
    return [f'v_cvt_pk_bf16_f32 v{P+j}, v{b+2*j}, v{b+2*j+1}' for j in range(24)]
def proj_mfmas(tile, P):
    b = rO[tile][1]; m = []
    for cot in range(3):
        d = rng('v', b + 16 * cot, 16)
        for s in range(6):
            m.append(f'v_mfma_f32_32x32x16_bf16 {d}, {wreg(6*cot+s)}, {rng("v", P+4*s, 4)}, {"0" if s == 0 else d}')
    return m
def fin_ops(tile, cot, r, pk=False):
    o = rO[tile][1] + 16 * cot
    out = []
    for j in range(8):
        if pk:
            out.append(f'v_pk_mul_f32 v[{o+2*j}:{o+2*j+1}], v[{o+2*j}:{o+2*j+1}], v[{r}:{r+1}]')
        else:
            out += [f'v_mul_f32 v{o+2*j}, v{r}, v{o+2*j}', f'v_mul_f32 v{o+2*j+1}, v{r}, v{o+2*j+1}',
                    f'v_cvt_pk_bf16_f32 v{o+j}, v{o+2*j}, v{o+2*j+1}']
    if pk: out += [f'v_cvt_pk_bf16_f32 v{o+j}, v{o+2*j}, v{o+2*j+1}' for j in range(8)]
    return out + [f'ds_write_b64 v{vSW}, v[{o+2*i}:{o+2*i+1}] offset:{64*cot+16*i}' for i in range(4)]
def store_ops(R, soff, s2):
    return ['s_waitcnt lgkmcnt(0)'] + [f'ds_read_b128 v[{R+4*j}:{R+4*j+3}], v{vRB[j%3]} offset:{(j//3)*16*208}' for j in range(6)] + [f's_add_u32 s{s2}, s{soff}, 4096']
def store_ops2(R, soff, s2, waits=True):
    o = []
    for j in range(6):
        if waits: o.append(f's_waitcnt lgkmcnt({5-j})')
        o.append(f'buffer_store_dwordx4 v[{R+4*j}:{R+4*j+3}], v{vDMA}, s[20:23], s{soff if j < 4 else s2} offen offset:{1024*(j%4)} nt')
    return o

def code_prefetch(a):
    a('s_getpc_b64 s[58:59]')
    a.label('L_pc')
    a(f's_sub_u32 s58, s58, L_pc-{NAME}')
    a('s_subb_u32 s59, s59, 0')
    a('v_lshlrev_b32 v6, 7, v1')
    for k in range(3):
        a(f'v_min_u32 v7, L_end-{NAME}, v6')
        a('v_mov_b32 v5, s59')
        a('v_add_co_u32 v4, vcc, s58, v7')
        a('v_addc_co_u32 v5, vcc, 0, v5, vcc')
        a(f'global_load_dword a{252+k}, v[4:5], off')
        if k < 2: a('v_add_u32 v6, 0x2000, v6')

def gen_spare(a):
    a.label('L_spare')
    a(f'''
    s_cmp_gt_u32 s{sW}, 1
    s_cbranch_scc1 L_end
    s_cmp_gt_u32 s2, 27
    s_cbranch_scc1 L_end
    s_cmp_eq_u32 s2, 27
    s_cbranch_scc1 L_sp_nonce
    s_mul_i32 s28, s2, 57
    s_lshr_b32 s28, s28, 9
    s_mul_i32 s28, s28, 9
    s_sub_u32 s28, s2, s28
    s_mov_b32 s56, s8
    s_mov_b32 s57, s9
    s_mov_b32 s58, 36864
    s_mov_b32 s59, 0x20000
    v_and_b32 v3, 31, v1
    v_lshrrev_b32 v4, 5, v1
    v_mul_u32_u24 v6, 384, v3
    v_lshl_add_u32 v6, v4, 4, v6
    s_mul_i32 s29, s28, 11
    s_lshr_b32 s29, s29, 5
    s_mul_i32 s30, s29, 3
    s_sub_u32 s30, s28, s30
    s_cmp_eq_u32 s{sW}, 1
    s_cbranch_scc1 L_sp_vo
    s_mov_b32 s52, s6
    s_mov_b32 s53, s7
    s_mov_b32 s54, 18432
    s_mov_b32 s55, 0x20000
    v_mul_u32_u24 v5, 192, v3
    v_lshl_add_u32 v5, v4, 4, v5
    s_mul_i32 s31, s29, {32*192}
    s_mul_i32 s32, s30, {32*384}
    ''')
    for s in range(6):
        a(f'buffer_load_dwordx4 v[{8+4*s}:{11+4*s}], v5, s[52:55], s31 offen offset:{32*s}')
        a(f'buffer_load_dwordx4 v[{32+4*s}:{35+4*s}], v6, s[56:59], s32 offen offset:{32*s}')
    a(f'''
    v_lshlrev_b32 v7, 4, v3
    v_lshl_add_u32 v7, v4, 3, v7
    s_mul_i32 s33, s30, 6
    s_lshl_b32 s34, s29, 1
    s_add_u32 s33, s33, s34
    s_lshl_b32 s33, s33, 10
    s_add_u32 s33, s33, {WQK_OFF}
    s_mov_b32 s35, 0x{f32bits(CST):08x}
    s_lshl_b32 s36, s28, {WL}
    s_add_u32 s36, s36, {WFLAG_OFF}
    ''')
    for s in range(6):
        a(f's_waitcnt vmcnt({10-2*s})')
        a(f'v_mfma_f32_32x32x16_bf16 v[64:79], v[{8+4*s}:{11+4*s}], v[{32+4*s}:{35+4*s}], {"0" if s == 0 else "v[64:79]"}')
    a('s_nop 15')
    for r in range(16): a(f'v_mul_f32 v{64+r}, s35, v{64+r}')
    for r in range(8): a(f'v_cvt_pk_bf16_f32 v{80+r}, v{64+2*r}, v{65+2*r}')
    for i in range(4):
        a(f'buffer_store_dwordx2 v[{80+2*i}:{81+2*i}], v7, s[24:27], s33 offen offset:{(i>>1)*1024 + (i&1)*512} sc1')
    a.label('L_sp_flag')
    a(f'''
    v_mov_b32 v{vZ}, 0
    s_mov_b32 s{sSP}, 0
    ''')
    nonce_spin(a, 'L_sp_n')
    a(f'''
    s_mov_b64 exec, 1
    buffer_store_dwordx2 v[{vF}:{vF+1}], v{vZ}, s[24:27], s36 offen sc1
    s_endpgm
    ''')
    a.label('L_sp_nonce')
    a(f'''
    s_cmp_lg_u32 s{sW}, 0
    s_cbranch_scc1 L_end
    s_memrealtime s[28:29]
    v_mov_b32 v4, 0
    s_waitcnt lgkmcnt(0)
    s_or_b32 s29, s29, 0x40000000
    v_mov_b32 v2, s28
    v_mov_b32 v3, s29
    s_mov_b64 exec, 1
    buffer_store_dwordx2 v[2:3], v4, s[48:51], 0 offen sc1
    s_mov_b32 exec_lo, 0x{DUMMY & 0xffffffff:08x}
    s_mov_b32 exec_hi, 0
    v_lshlrev_b32 v4, {FL}, v1
    s_mov_b32 s30, {FLAG_OFF + 192*FS}
    buffer_store_dwordx2 v[2:3], v4, s[24:27], s30 offen sc1
    s_endpgm
    ''')
def gen_spare_vo(a):
    a.label('L_sp_vo')
    a(f'''
    s_cmp_gt_u32 s2, 8
    s_cbranch_scc1 L_end
    s_mov_b32 s20, s10
    s_mov_b32 s21, s11
    s_mov_b32 s22, 18432
    s_mov_b32 s23, 0x20000
    v_lshlrev_b32 v7, 4, v1
    v_lshrrev_b32 v56, 2, v1
    v_and_b32 v57, 3, v1
    v_mul_u32_u24 v56, 192, v56
    v_lshl_add_u32 v56, v57, 4, v56
    s_lshl_b32 s31, s30, 6
    s_mov_b32 s34, 0
    ''')
    for p in range(6):
        a('s_mov_b32 m0, s34')
        a('s_add_u32 s34, s34, 1024')
        a('buffer_load_dwordx4 v56, s[20:23], s31 offen lds')
        a(f's_add_u32 s31, s31, {16*192}')
    a(f's_mul_i32 s32, s29, {32*384}')
    for s in range(6):
        a(f'buffer_load_dwordx4 v[{8+4*s}:{11+4*s}], v6, s[56:59], s32 offen offset:{192+32*s}')
    a(f'''
    v_bfe_u32 v56, v1, 2, 2
    v_lshl_add_u32 v56, v4, 3, v56
    v_lshlrev_b32 v56, 6, v56
    v_bfe_u32 v58, v1, 4, 1
    v_lshl_add_u32 v56, v58, 5, v56
    v_lshl_add_u32 v56, v57, 3, v56
    s_mul_i32 s33, s30, {TILE}
    s_mul_i32 s34, s29, {2*PC}
    s_add_u32 s33, s33, s34
    s_add_u32 s33, s33, {25*TILE}
    s_lshl_b32 s36, s30, 3
    s_add_u32 s36, s36, s29
    s_add_u32 s36, s36, 200
    s_lshl_b32 s36, s36, {FL}
    s_add_u32 s36, s36, {FLAG_OFF}
    s_waitcnt vmcnt(6)
    ''')
    for s in range(6):
        for half in range(2):
            a(f'ds_read_b64_tr_b16 v[{32+4*s+2*half}:{33+4*s+2*half}], v56 offset:{s*1024 + half*256}')
    a('s_waitcnt vmcnt(0) lgkmcnt(0)')
    for s in range(6):
        a(f'v_mfma_f32_32x32x16_bf16 v[64:79], v[{8+4*s}:{11+4*s}], v[{32+4*s}:{35+4*s}], {"0" if s == 0 else "v[64:79]"}')
    a('s_nop 15')
    for r in range(8): a(f'v_cvt_pk_bf16_f32 v{80+r}, v{64+2*r}, v{65+2*r}')
    for k in range(2):
        a(f'buffer_store_dwordx4 v[{80+4*k}:{83+4*k}], v7, s[24:27], s33 offen offset:{PC*k} sc1')
    a('s_branch L_sp_flag')

def gen_consumer(a):
    a(f'''
    s_sub_u32 s3, s2, {NSP}
    v_lshlrev_b32 v{vDMA}, 4, v1
    s_lshr_b32 s55, s3, 3
    s_and_b32 s56, s3, 7
    s_mul_i32 s{sXB}, s55, 344064
    s_mul_i32 s57, s56, 6144
    s_mov_b32 s{sXS}, 43008
    s_cmp_eq_u32 s56, 7
    s_cselect_b32 s57, {7*43008}, s57
    s_cselect_b32 s{sXS}, 6144, s{sXS}
    s_add_u32 s{sXB}, s{sXB}, s57
    s_cmp_eq_u32 s{sW}, 3
    s_cbranch_scc1 L_x_w3
    s_cmp_ge_u32 s3, {OPT.get("early", 120)}
    s_cbranch_scc1 L_cons2
    ''')
    def x_dma(done):
        a(f'''
        s_mul_i32 s6, s{sW}, 3
        s_mul_i32 s7, s6, 6144
        s_mul_i32 s6, s6, s{sXS}
        s_add_u32 s6, s6, s{sXB}
        s_add_u32 s7, s7, {XST}
        s_mov_b32 m0, s7
        s_add_u32 s8, s6, 4096
        ''')
        for t in range(3):
            for p in range(4): a(f'buffer_load_dwordx4 v{vDMA}, s[16:19], s6 offen offset:{1024*p} nt lds')
            a(f's_add_u32 m0, s7, {6144*t + 4096}')
            a(f's_add_u32 s6, s6, s{sXS}')
            for p in range(2): a(f'buffer_load_dwordx4 v{vDMA}, s[16:19], s8 offen offset:{1024*p} nt lds')
            if t < 2:
                a(f's_add_u32 m0, s7, {6144*(t+1)}')
                a(f's_add_u32 s8, s8, s{sXS}')
            if t == 1:
                a(f's_cmp_eq_u32 s{sW}, 2')
                a(f's_cbranch_scc1 {done}')
    x_dma('L_cons2')
    a('s_branch L_cons2')
    gen_spare(a)
    a.label('L_x_w3')
    code_prefetch(a)
    a(f'v_mov_b32 v2, {NC_LDS}')
    for i in range(4): a(f'v_mov_b32 v{4+i}, 0')
    a('ds_write_b128 v2, v[4:7]')
    a('s_waitcnt lgkmcnt(0)')
    a.label('L_cons2')
    a('s_barrier')
    def late_dma():
        a(f's_cmp_eq_u32 s{sW}, 3')
        a('s_cbranch_scc1 L_x2')
        a(f's_cmp_lt_u32 s3, {OPT.get("early", 120)}')
        a('s_cbranch_scc1 L_x2')
        x_dma('L_x2')
        a.label('L_x2')
    lp = OPT.get('lpos', 2)
    if lp == 0: late_dma()
    a(f'''
    s_mul_i32 s{sU}, s55, 7
    s_add_u32 s{sU}, s{sU}, s56
    s_mul_i32 s{sWT}, s{sW}, {TILE}
    v_mov_b32 v{vZ}, 0
    v_mov_b32 v2, {NC_LDS}
    s_mov_b32 s{sSP}, 0
    v_and_b32 v3, 31, v1
    v_lshrrev_b32 v4, 5, v1
    v_mul_u32_u24 v{vXO}, 192, v3
    v_lshl_add_u32 v{vXO}, v4, 4, v{vXO}
    s_mul_i32 s{sXo}, s{sW}, s{sXS}
    s_add_u32 s{sXo}, s{sXo}, s{sXB}
    s_lshl_b32 s57, s{sXS}, 2
    s_add_u32 s{sXb}, s{sXo}, s57
    s_mov_b32 s20, s12
    s_mov_b32 s21, s13
    s_mov_b32 s22, {X_BYTES}
    s_mov_b32 s23, 0x20000
    s_mov_b32 s{sCNT}, 0
    s_add_u32 s{sT}, s{sWT}, {2*GB}
    s_add_u32 s{sG[0]}, s{sWT}, {2*GB}
    s_add_u32 s{sG[1]}, s{sWT}, {2*GB + 4*PC}
    s_mov_b32 s{sDn}, {GB}
    s_mov_b32 s{sDp}, {(-2*GB) & 0xffffffff}
    s_lshl_b32 s{sFM}, s{sW}, {FL+3}
    s_add_u32 s{sFM}, s{sFM}, {FLAG_OFF + 192*FS}
    s_sub_u32 s{sFO}, s{sFM}, {192*FS}
    s_mul_i32 s57, s{sW}, {OST}
    s_add_u32 s57, s57, {STG0}
    v_mul_u32_u24 v{vSW}, 208, v3
    v_lshl_add_u32 v{vSW}, v4, 3, v{vSW}
    v_add_u32 v{vSW}, s57, v{vSW}
    ''')
    for j in range(3):
        a(f'v_add_u32 v5, {64*j}, v1')
        a('v_mul_u32_u24 v6, 171, v5')
        a('v_lshrrev_b32 v6, 11, v6')
        a('v_add_u32 v5, v5, v6')
        a('v_lshlrev_b32 v5, 4, v5')
        a(f'v_add_u32 v{vRB[j]}, s57, v5')
    a(f'''
    v_lshrrev_b32 v9, 4, v1
    v_and_b32 v10, 15, v1
    v_lshrrev_b32 v6, 2, v10
    v_lshl_add_u32 v6, v9, 3, v6
    v_mul_u32_u24 v5, 192, v6
    v_and_b32 v8, 3, v1
    v_lshl_add_u32 v5, v8, 3, v5
    s_lshl_b32 s57, s{sW}, 6
    s_add_u32 s57, s57, {XST}
    v_add_u32 v5, s57, v5
    v_cmp_eq_u32 vcc, v9, v10
    v_mov_b32 v6, 0x3f803f80
    v_lshlrev_b32 v8, 4, v8
    v_cndmask_b32 v{vS[3]}, 0, v6, vcc
    v_cndmask_b32 v{vS[3]+1}, 0, v6, vcc
    v_cndmask_b32 v{vS[3]+2}, 0, v6, vcc
    v_cndmask_b32 v{vS[3]+3}, 0, v6, vcc
    v_lshl_add_u32 v8, v4, 6, v8
    v_add_u32 v8, {LK_LDS}, v8
    v_and_b32 v3, 1, v9
    v_lshrrev_b32 v7, 1, v9
    v_lshlrev_b32 v29, 4, v10
    v_lshl_add_u32 v29, v7, 3, v29
    v_mul_u32_u24 v6, {PC}, v3
    v_add_u32 v6, v6, v29
    v_lshl_add_u32 v29, v3, 6, v29
    s_lshl_b32 s57, s{sW}, 8
    s_add_u32 s57, s57, {LK_LDS}
    v_add_u32 v29, s57, v29
    s_lshr_b32 s57, s{sU}, 3
    s_mul_i32 s57, s57, {TILE}
    s_and_b32 s58, s{sU}, 7
    s_lshl_b32 s58, s58, 6
    s_add_u32 s59, s57, s58
    s_lshl_b32 s58, s{sW}, 9
    s_mov_b32 s60, {2*PC}
    s_cmp_eq_u32 s{sW}, 2
    s_cselect_b32 s58, {4*PC}, s58
    s_cselect_b32 s60, 512, s60
    s_add_u32 s59, s59, s58
    s_add_u32 s57, s59, s60
    s_mul_i32 s58, s{sW}, 6144
    s_add_u32 s58, s58, {XST}
    v_add_u32 v30, s58, v{vXO}
    v_add_u32 v31, s58, v{vDMA}
    v_and_b32 v{vFO}, 7, v1
    v_lshlrev_b32 v{vFO}, {FL}, v{vFO}
    v_mov_b32 v3, 1
    ''')
    if lp == 1: late_dma()
    for t in vL: a(f'v_mov_b32 v{vL[t]}, 0')
    for t in ('own', 'B0'):
        for i in range(48): a(f'v_mov_b32 v{rO[t][1]+i}, 0')
    def xfrags(n):
        for s in range(6): a(f'ds_read_b128 {rng("a", aX["B1"]+4*s, 4)}, v30 offset:{32*s}')
        if n > 1:
            for s in range(6): a(f'ds_read_b128 {rng("a", aX["B2"]+4*s, 4)}, v30 offset:{4*6144+32*s}')
    warm = [f'buffer_load_dword a240, v{vZ}, s[20:23], s{sXo} offen', f'buffer_load_dword a241, v{vZ}, s[20:23], s{sXb} offen']
    if lp == 2: late_dma()
    a(f's_cmp_eq_u32 s{sW}, 3')
    a('s_cbranch_scc1 L_w3')
    for x in warm: a(x)
    a(f'buffer_load_dwordx2 v[{vF}:{vF+1}], v{vZ}, s[48:51], 0 offen sc1')
    stamp(a, 2)
    a('s_waitcnt vmcnt(3)')
    a('s_mov_b64 exec, 1')
    a('ds_add_u32 v2, v3')
    a('s_mov_b64 exec, -1')
    a.label('L_xw')
    a('ds_read_b32 v4, v2')
    a('s_waitcnt lgkmcnt(0)')
    a('v_cmp_ne_u32 vcc, 3, v4')
    a('s_cbranch_vccnz L_xw')
    stamp(a, 3)
    if OPT.get('pd'): a(f's_mov_b32 s{ST0+14}, 0')
    F = vM['own']
    def trr(row):
        for c in range(2):
            for half in range(2):
                d = F + (row * 2 + c) * 4 + 2 * half
                a(f'ds_read_b64_tr_b16 v[{d}:{d+1}], v5 offset:{row*6144 + half*768 + c*32}')
    IND = rng('v', vS[3], 4)
    D = vS[0]
    for row in range(3): trr(row)
    for row in range(8):
        a(f's_waitcnt lgkmcnt({4*min(2, 7-row)})')
        for c in range(2):
            f = rng('v', F + (row * 2 + c) * 4, 4)
            d1 = rng('v', D + 8 * (row & 1) + 4 * c, 4)
            a(f'v_mfma_f32_16x16x32_bf16 {d1}, {f}, {IND}, {"0" if row < 2 else d1}')
        if row + 3 < 8: trr(row + 3)
    a('s_mov_b32 s60, 0x3c800000')
    a('v_cmp_gt_u32 vcc, 4, v10')
    xfrags(2)
    for r in range(8): a(f'v_add_f32 v{D+r}, v{D+r}, v{D+8+r}')
    for r in range(8): a(f'v_mul_f32 v{D+r}, s60, v{D+r}')
    for r in range(4): a(f'v_cvt_pk_bf16_f32 v{D+16+r}, v{D+2*r}, v{D+2*r+1}')
    a('s_cmp_eq_u32 s56, 7')
    a('s_mov_b64 exec, vcc')
    a('s_cbranch_scc1 L_nostore')
    a(f'buffer_store_dwordx2 v[{D+16}:{D+17}], v6, s[24:27], s59 offen sc1')
    a(f'buffer_store_dwordx2 v[{D+18}:{D+19}], v6, s[24:27], s57 offen sc1')
    a.label('L_nostore')
    for c in range(2): a(f'ds_write_b64 v29, v[{D+16+2*c}:{D+17+2*c}] offset:{128*c}')
    a('s_mov_b64 exec, -1')
    stamp(a, 4)
    a('s_cbranch_scc1 L_nw0')
    a('s_waitcnt vmcnt(2)')
    a('s_branch L_nw1')
    a.label('L_nw0')
    a('s_waitcnt vmcnt(0)')
    a.label('L_nw1')
    a(f'v_cmp_eq_u32 vcc, 0, v{vF+1}')
    a('s_cbranch_vccz L_nonce_ok')
    nonce_spin(a, 'L_nonce')
    a(f'v_readfirstlane_b32 s{sN}, v{vF}')
    a(f'v_readfirstlane_b32 s{sN+1}, v{vF+1}')

    def g_dma(g):
        for q in range(6):
            a(f's_mov_b32 s60, {g*GB + q*4*PC}')
            a('s_mov_b32 m0, s60')
            a('s_nop 0')
            for p in range(4): a(f'buffer_load_dwordx4 v{vDMA}, s[24:27], s60 offen offset:{PC*p} sc1 lds')
    def publish(tag):
        a(f'''
        s_lshl_b32 s60, s{sU}, {FL}
        s_add_u32 s60, s60, {FLAG_OFF}
        v_mov_b32 v6, s{sN}
        v_mov_b32 v7, s{sN+1}
        s_waitcnt vmcnt(0)
        s_mov_b64 exec, 1
        ds_add_rtn_u32 v5, v2, v3 offset:12
        s_waitcnt lgkmcnt(0)
        v_cmp_eq_u32 vcc, 2, v5
        s_cmp_eq_u32 s56, 7
        s_cbranch_scc1 L_noflag{tag}
        s_cbranch_vccz L_noflag{tag}
        buffer_store_dwordx2 v[6:7], v{vZ}, s[24:27], s60 offen sc1
        ''')
        if OPT.get('pd'): stamp(a, 7, True)
        a.label(f'L_noflag{tag}')
        a('s_mov_b64 exec, -1')
        a('s_mov_b32 s59, 1')
    def ready_poll(lbl, n):
        a('s_mov_b32 s57, 0')
        a.label(lbl)
        a('ds_read2_b32 v[4:5], v2 offset0:1 offset1:2')
        a('s_waitcnt lgkmcnt(0)')
        a('v_add_u32 v4, v4, v5')
        a('v_cmp_ne_u32 vcc, 4, v4')
        a('s_cbranch_vccz L_q')
        a('s_add_u32 s57, s57, 1')
        a(f's_cmp_lt_u32 s57, {n}')
        a(f's_cbranch_scc1 {lbl}')
    a(f'''
    s_waitcnt lgkmcnt(0)
    s_mov_b64 exec, 1
    ds_add_u32 v2, v3 offset:4
    s_mov_b64 exec, -1
    s_mov_b32 s59, 0
    s_mov_b32 s55, 0
    ''')
    ready_poll('L_pq', 5)
    publish('a')
    a.label('L_pw')
    ready_poll('L_pw1', 64)
    a('s_branch L_pw')
    a.label('L_w3')
    a(warm[0])
    for i in range(96): a(f'v_accvgpr_write_b32 a{i}, 0')
    stamp(a, 2)
    a('v_min_u32 v4, 8, v1')
    a(f'v_lshlrev_b32 v4, {WL}, v4')
    a(f's_mov_b32 s57, {WFLAG_OFF}')
    a.label('L_wq')
    a(f'buffer_load_dwordx2 v[6:7], v{vZ}, s[48:51], 0 offen sc1')
    a(f'buffer_load_dwordx2 v[{vF}:{vF+1}], v4, s[24:27], s57 offen sc1')
    a('s_waitcnt vmcnt(0)')
    a('v_cmp_eq_u32 s[58:59], 0, v7')
    a(f'v_cmp_ne_u64 vcc, v[6:7], v[{vF}:{vF+1}]')
    a('s_or_b64 vcc, vcc, s[58:59]')
    spin_tail(a, 'L_wq')
    a(f'v_readfirstlane_b32 s{sN}, v6')
    a(f'v_readfirstlane_b32 s{sN+1}, v7')
    stamp(a, 3)
    a(f's_mov_b32 s57, {WQK_OFF}')
    a(f's_mov_b32 s58, {WQ_LDS}')
    for q in range(5):
        a('s_mov_b32 m0, s58')
        a('s_add_u32 s58, s58, 4096')
        for p in range(4 if q < 4 else 2): a(f'buffer_load_dwordx4 v{vDMA}, s[24:27], s57 offen offset:{1024*p} sc1 lds')
        a('s_add_u32 s57, s57, 4096')
    stamp(a, 4, True)
    a.label('L_w3x')
    a('ds_read_b32 v4, v2')
    a('s_waitcnt lgkmcnt(0)')
    a('v_cmp_ne_u32 vcc, 3, v4')
    a('s_cbranch_vccnz L_w3x')
    xfrags(1)
    a('s_waitcnt vmcnt(0) lgkmcnt(0)')
    a('ds_write_b32 v2, v3 offset:8')
    a(f'v_lshlrev_b32 v{vFO2}, {FL}, v1')
    a(f's_mov_b32 s57, {FLAG_OFF}')
    f64 = f'buffer_load_dwordx2 v[{vF}:{vF+1}], v{vFO2}, s[24:27], s57 offen sc1'
    a.label('L_w3p')
    a('ds_read_b32 v4, v2 offset:4')
    a('s_waitcnt lgkmcnt(0)')
    a('v_cmp_ne_u32 vcc, 3, v4')
    a('s_cbranch_vccnz L_w3p')
    a('s_branch L_q3')
    a.label('L_q')
    stamp(a, 5)
    def q_reads():
        a(f'v_add_u32 v4, {WQ_LDS}, v{vDMA}')
        for f in range(18): a(f'ds_read_b128 {wreg(f)}, v4 offset:{1024*f}')
        for s in range(6): a(f'ds_read_b128 {rng("a", aV+4*s, 4)}, v8 offset:{128*s}')
    q_reads()
    blocks = [(ti, ct) for ti in range(2) for ct in range(3)]
    def qfin(n):
        ti, ct = blocks[n]; S = vS[n % 4]; X = aX['own' if ti == 0 else 'B0'] + 8 * ct
        out = [f'v_cvt_pk_bf16_f32 v{S+j}, v{S+2*j}, v{S+2*j+1}' for j in range(8)]
        out += [f'v_accvgpr_write_b32 a{X+j}, v{S+j}' for j in range(8)]
        if ti == 1: out += [f'ds_write_b128 v31, v[{S+4*k}:{S+4*k+3}] offset:{(2*ct+k)*1024}' for k in range(2)]
        return out
    def blk(n):
        ti, ct = blocks[n]; d = rng('v', vS[n % 4], 16); X = aX['B1' if ti == 0 else 'B2']
        return [f'v_mfma_f32_32x32x16_bf16 {d}, {wreg(6*ct+s)}, {rng("a", X+4*s, 4)}, {"0" if s == 0 else d}' for s in range(6)]
    def lqk(t, sbuf):
        d = rng('v', vS[sbuf], 16)
        return [f'v_mfma_f32_32x32x16_bf16 {d}, {rng("a", aV+4*s, 4)}, {rng("a", aX[t]+4*s, 4)}, {"0" if s == 0 else d}' for s in range(6)]
    def mops(t, sbuf):
        S = vS[sbuf]
        return [f'v_max3_f32 v9, v{S}, v{S+1}, v{S+2}', f'v_max_f32 v9, v9, v{S+3}'] + [f'v_sub_f32 v{vM[t]+i}, 0, v9' for i in range(16)]
    m0_, m1_, m2_ = blk(0), blk(1), blk(2)
    m0_[0] = 's_waitcnt lgkmcnt(15)\n' + m0_[0]
    m1_[0] = 's_waitcnt lgkmcnt(12)\n' + m1_[0]
    m2_[0] = 's_waitcnt lgkmcnt(6)\n' + m2_[0]
    def addr_setup():
        lane_addr(a, vKA[3], vVA[3], vVB[3], 21, 31)
        for i in range(4):
            a(f's_add_u32 s60, s{sW}, {1+i}')
            a('s_and_b32 s60, s60, 3')
            a(f's_mul_i32 s60, s60, {TILE}')
            if i == 0: a(f's_mov_b32 s{sK0}, s60')
            a(f'v_add_u32 v{vKA[i]}, s60, v{vKA[3]}')
            if i == 3: a(f's_add_u32 s60, s60, {2*GB}')
            a(f'v_add_u32 v{vVA[i]}, s60, v{vVA[3]}')
            a(f'v_add_u32 v{vVB[i]}, s60, v{vVB[3]}')
        for i in range(24): a(f'v_accvgpr_write_b32 a{aV+i}, 0')
    def zero_p():
        for i in range(4):
            a(f'v_mov_b32 v{vS[3]+i}, 0')
            a(f'v_mov_b32 v{vS[3]+8+i}, 0')
        a(f'v_mov_b32 v{vHI}, 0x{HI:08x}')
        a(f's_add_u32 s{sFO}, s{sFO}, {64*FS}')
    weave(a, m0_ + m1_, [('at', 8)] + qfin(0))
    a('s_cmp_eq_u32 s59, 1')
    a('s_cbranch_scc1 L_pub_done')
    publish('b')
    a.label('L_pub_done')
    l0 = lqk('own', 2)
    b3_ = blk(3)
    b3_[0] = 's_waitcnt lgkmcnt(0)\n' + b3_[0]
    a(f's_lshl_b32 s60, s{sW}, 10')
    a(f's_add_u32 s60, s60, {MX_LDS}')
    a(f'v_add_u32 v3, s60, v{vDMA}')
    weave(a, m2_ + b3_ + blk(4) + blk(5) + l0 + lqk('B0', 3),
          [('at', 2)] + qfin(1) + [('at', 8)] + qfin(2) + [('at', 14)] + qfin(3) + [('at', 20)] + qfin(4) + [('at', 26)] + qfin(5)
          + [('at', 32)] + mops('own', 2))
    stamp(a, 6)
    if not OPT.get('pd'): stamp(a, 7)
    addr_setup()
    for x in mops('B0', 3): a(x)
    a(f'ds_write_b128 v3, {rng("v", vM["B0"], 4)}')
    zero_p()
    a('s_waitcnt lgkmcnt(0)')
    a('s_barrier')
    stamp(a, 8)
    for s in range(6): a(kread(vKA[0], s))
    a('s_branch L_owner')
    a.label('L_q3')
    stamp(a, 5)
    q_reads()
    pa = OPT.get('pollat', 0)
    if pa == 0: a(f64)
    l0 = lqk('own', 3)
    l0[0] = 's_waitcnt lgkmcnt(0)\ns_nop 1\n' + l0[0]
    weave(a, m0_ + m1_ + m2_, ([('at', 6), f64] if pa == 1 else []) + [('at', 8)] + qfin(0) + ([('at', 13), f64] if pa == 2 else []) + [('at', 14)] + qfin(1))
    if pa == 3: a(f64)
    a('s_nop 11')
    for x in qfin(2): a(x)
    for x in l0: a(x)
    if pa == 4: a(f64)
    stamp(a, 6)
    a('s_mov_b32 s55, 0')
    a.label('L_gw')
    a('s_waitcnt vmcnt(0)')
    a(flag_cmp())
    a('s_cmp_eq_u32 s55, 1')
    a('s_mov_b64 s[58:59], vcc')
    a('s_cbranch_scc1 L_gw1')
    a('s_cmp_lg_u32 s58, 0')
    a('s_cbranch_scc1 L_gwn')
    a.label('L_gw0')
    if OPT.get('pd'): stamp(a, 2, True)
    g_dma(0)
    a('s_mov_b32 s55, 1')
    a.label('L_gw1')
    a('s_cmp_eq_u32 s59, 0')
    a('s_cbranch_scc1 L_gw2')
    a.label('L_gwn')
    a(f64)
    a(f's_add_u32 s{sSP}, s{sSP}, 1')
    a(f's_cmp_lt_u32 s{sSP}, {SPIN_MAX:#x}')
    a('s_cbranch_scc1 L_gw')
    a('s_mov_b32 s59, 0')
    a('s_cmp_eq_u32 s55, 0')
    a('s_cbranch_scc1 L_gw0')
    a.label('L_gw2')
    if OPT.get('pd'): stamp(a, 3, True)
    g_dma(1)
    stamp(a, 7)
    addr_setup()
    for x in mops('own', 3): a(x)
    zero_p()
    a(f'v_add_u32 v2, {QX_LDS}, v{vDMA}')
    a('s_waitcnt vmcnt(24)')
    a('s_barrier')
    stamp(a, 8)
    for s in range(6): a(kread(vKA[0], s))

    def first_qk(extra, nwait):
        a(f's_waitcnt lgkmcnt({nwait})')
        weave(a, [qk_mfma('own', 0, s) for s in range(6)], extra)
        a('s_waitcnt lgkmcnt(0)')
        a('s_nop 9')
        stamp(a, 11); stamp(a, 12, True)
        if OPT['stamps']: a('s_waitcnt lgkmcnt(0)')
    vhalf = [vread(vVA[0], vVB[0], 0, ct) for ct in range(3)]
    wv = [f'ds_read_b128 {wreg(f)}, v{vDMA} offset:{(1 + f//6)*TILE + (f%6)*PC}' for f in range(18)]
    PA, PB = vS[0], vS[2]

    ex = []
    for e, t in enumerate(('B0', 'B1', 'B2')):
        ex += [f'ds_read_b128 {rng("a", aX[t]+4*s, 4)}, v2 offset:{e*6144 + 1024*s}' for s in range(6)]
        ex += [f'ds_read_b128 {rng("v", vM[t]+4*k, 4)}, v2 offset:{24576 + 1024*e}' for k in range(4)]
    for x in ex[:6]: a(x)
    first_qk(ex[6:], 6)
    gen_loop(a, True)
    stamp(a, 13); stamp(a, 14, True)
    a(f'v_add_u32 v5, {MERGE0}, v{vDMA}')
    a('v_lshlrev_b32 v2, 2, v1')
    a(f'v_add_u32 v2, {MERGE0}, v2')
    a(f's_mov_b32 s58, 0x{LO:08x}')
    a('s_waitcnt lgkmcnt(0)')
    wr = []
    for e, t in enumerate(('B0', 'B1', 'B2')):
        k, b = rO[t]
        wr += [f'ds_write_b128 v5, {rng(k, b+4*j, 4)} offset:{e*MERGE + 1024*j}' for j in range(12)]
        wr += [f'ds_write_b32 v2, v{vL[t]} offset:{e*MERGE + 12288}']
    mf = [pv_mfma('own', 3, t, ct) for t in range(2) for ct in range(3)]
    hs = half_softmax_ops(0, 'own')
    k = 0
    for n, x in enumerate(wr):
        a(x)
        if n % 6 == 1 and n // 6 < 6:
            a(mf[n // 6])
            if n // 6 < 3:
                for y in vhalf[n // 6]: a(y)
        elif k < len(hs) and n >= 3:
            a(hs[k]); k += 1
    for x in hs[k:]: a(x)
    a('s_waitcnt lgkmcnt(0)')
    a('s_barrier')
    weave(a, [pv_mfma('own', 0, 0, ct) for ct in range(3)], wv)
    for x in lsum_ops('own', 2, 'h'): a(x)
    cv = cvt_ops('own', PA)
    a('s_nop 1')
    a('v_mov_b32 v3, v2')
    for x in cv[:8]: a(x)
    a('s_waitcnt lgkmcnt(0)')
    weave(a, proj_mfmas('own', PA), cv[8:] + [('at', 8)] + fin_ops('own', 0, 2) + [('at', 14)] + fin_ops('own', 1, 2))
    a('s_nop 7')
    for x in fin_ops('own', 2, 2, pk=True) + store_ops(PB, sXo, 60) + store_ops2(PB, sXo, 60): a(x)
    stamp(a, 15)
    stamp_store(a)
    a('s_endpgm')
    a.label('L_owner')
    first_qk([], 0)
    gen_loop(a, False)
    stamp(a, 13); stamp(a, 14, True)
    a(f's_mul_i32 s60, s{sW}, {MERGE}')
    a(f's_add_u32 s60, s60, {MERGE0}')
    a(f'v_add_u32 v6, s60, v{vDMA}')
    a('v_lshlrev_b32 v7, 2, v1')
    a('v_add_u32 v7, s60, v7')
    a(f's_mov_b32 s58, 0x{LO:08x}')
    a('s_waitcnt lgkmcnt(0)')
    mf = [qk_mfma('B0', 1, s) for s in range(6)] + [pv_mfma('own', 3, t, ct) for t in range(2) for ct in range(3)]
    hs = half_softmax_ops(0, 'own')
    fill = wv[0:4] + wv[8:10] + [('at', 1)] + wv[4:8] + wv[10:12] + [('at', 2)] + wv[12:18] + [('at', 3)] + hs[:9]
    fill += [('at', 6)] + vhalf[0] + hs[9:13] + [('at', 7)] + vhalf[1] + hs[13:17] + [('at', 8)] + vhalf[2] + hs[17:]
    hb = half_softmax_ops(1, 'B0')
    fill += [('at', 9)] + hb[:10]
    weave(a, mf, fill)
    a('s_waitcnt lgkmcnt(0)')
    mf = [pv_mfma('own', 0, 0, ct) for ct in range(3)] + [pv_mfma('B0', 1, 0, ct) for ct in range(3)]
    ls = lsum_ops('own', 2, 'oo')
    weave(a, mf, hb[10:] + [('at', 3)] + ls[:7])
    for x in ls[7:]: a(x)
    cv = cvt_ops('own', PA)
    for x in cv[:8]: a(x)
    a('v_mov_b32 v3, v2')
    b = rO['B0'][1]
    TT = [56 + 4 * j for j in range(10)]
    rdm = [f'ds_read_b128 v[{TT[j]}:{TT[j]+3}], v6 offset:{1024*j}' for j in range(10)]
    f0 = fin_ops('own', 0, 2); f1 = fin_ops('own', 1, 2)
    fill = cv[8:] + [('at', 8)] + f0[:24] + [('at', 12), 's_barrier'] + f0[24:] + ['ds_read_b32 v8, v7 offset:12288'] + rdm[:1]
    fill += [('at', 13)] + rdm[1:7] + [('at', 14)] + rdm[7:] + f1
    weave(a, proj_mfmas('own', PA), fill)
    for j in (10, 11): a(f'ds_read_b128 v[{PA+4*(j-10)}:{PA+4*(j-10)+3}], v6 offset:{1024*j}')
    TT += [PA, PA + 4]
    a('s_waitcnt lgkmcnt(6)')
    a(f'v_add_f32 v{vL["B0"]}, v{vL["B0"]}, v8')
    def padd(j):
        t = TT[j]
        a(f'v_pk_add_f32 v[{b+4*j}:{b+4*j+1}], v[{b+4*j}:{b+4*j+1}], v[{t}:{t+1}]')
        a(f'v_pk_add_f32 v[{b+4*j+2}:{b+4*j+3}], v[{b+4*j+2}:{b+4*j+3}], v[{t+2}:{t+3}]')
    for j in range(10): padd(j)
    for x in fin_ops('own', 2, 2, pk=True): a(x)
    a('s_waitcnt lgkmcnt(4)')
    padd(10); padd(11)
    so = store_ops(PA, sXo, 60)
    st2 = store_ops2(PA, sXo, 60, waits=False)
    ls = lsum_ops('B0', 2, 'ob')
    for x in ls[:7] + so + ls[7:]: a(x)
    cv = cvt_ops('B0', PB)
    for x in cv[:8]: a(x)
    a('v_mov_b32 v3, v2')
    fill = cv[8:14] + [('at', 1), 's_waitcnt lgkmcnt(0)', st2[0]] + cv[14:19] + [('at', 2), st2[1]] + cv[19:]
    for k in range(4): fill += [('at', 3 + k), st2[2 + k]]
    fill += [('at', 8)] + fin_ops('B0', 0, 2) + [('at', 14)] + fin_ops('B0', 1, 2)
    weave(a, proj_mfmas('B0', PB), fill)
    a('s_nop 3')
    for x in fin_ops('B0', 2, 2, pk=True) + store_ops(PB, sXb, 60) + store_ops2(PB, sXb, 60): a(x)
    stamp(a, 15)
    stamp_store(a)
    a('s_endpgm')
    slow_path(a, 'h'); slow_path(a, 'o')
    gen_spare_vo(a)
    redo(a, 'own', 2, 'h'); redo(a, 'own', 2, 'oo'); redo(a, 'B0', 2, 'ob')

DOC = """;
"""

def build(path):
    a = Asm()
    a.raw(f'.globl {NAME}')
    a.raw('.p2align 8')
    a.raw(f'.type {NAME},@function')
    a.label(NAME)
    a(f's_cmp_ge_u32 s2, {NSP+NCONS}')
    a('s_cbranch_scc1 L_end')
    stamp(a, 0, True); stamp(a, 1)
    a(f'''
    s_load_dwordx8 s[4:11], s[0:1], 0
    s_load_dwordx2 s[12:13], s[0:1], 32
    s_load_dwordx4 s[44:47], s[0:1], 40
    v_lshrrev_b32 v2, 6, v0
    v_and_b32 v1, 63, v0
    v_readfirstlane_b32 s{sW}, v2
    s_mov_b32 s18, {X_BYTES}
    s_mov_b32 s19, 0x20000
    s_mov_b32 s26, {WS_BYTES}
    s_mov_b32 s27, 0x20000
    s_mov_b32 s50, 256
    s_mov_b32 s51, 0x20000
    s_waitcnt lgkmcnt(0)
    s_mov_b32 s16, s4
    s_mov_b32 s17, s5
    s_mov_b32 s24, s46
    s_mov_b32 s25, s47
    s_mov_b32 s48, s44
    s_mov_b32 s49, s45
    s_cmp_lt_u32 s2, {NSP}
    s_cbranch_scc1 L_spare
    ''')
    gen_consumer(a)
    a.label('L_end')
    a('s_endpgm')
    out = HEADER
    out += f'; @launch grid=({NSP+NCONS},1,1) block=(256,1,1) lds={LDS_TOTAL}\n'
    out += DOC
    out += '.amdgcn_target "amdgcn-amd-amdhsa--gfx950"\n.text\n'
    out += a.text()
    out += '.section .rodata,"a"\n.p2align 6\n'
    out += kd(NAME, 512, 256)
    open(path, 'w').write(out)

if __name__ == '__main__':
    for o in sys.argv[2:]:
        if '=' in o:
            k, v = o.split('=')
            OPT[k] = int(v) if v.isdigit() else v.replace('+', ' ')
        else:
            OPT[o] = True
    build(sys.argv[1] if len(sys.argv) > 1 else 'k24.s')
```

```python
import sys, math, struct
from gen import Asm, f32bits, kd, HEADER, X_BYTES, CST

NAME = 'standalone__window_attn_twins__vision_kernel'
NSP, NCONS = int(next((o.split("=")[1] for o in sys.argv if o.startswith("NSP=")), 28)), 224
OPT = dict(stamps=False, sleep=4)
PC = 1088
TILE = 6 * PC
GB = 4 * TILE
WQK_OFF = 28 * TILE
FLAG_OFF = WQK_OFF + 18432
WFLAG_OFF = FLAG_OFF + 256 * 512
WS_BYTES = WFLAG_OFF + 16 * 1024
XST = 3 * GB
QX_LDS = XST
MX_LDS = XST + 24576
WQ_LDS = XST + 49152
LK_LDS = WQ_LDS + 18432
NC_LDS = LK_LDS + 768
MERGE = 12544
MERGE0 = XST
OST = 6656
STG0 = MERGE0 + 3 * MERGE
LDS_TOTAL = NC_LDS + 256
assert STG0 + 4 * OST <= LDS_TOTAL and FLAG_OFF % 128 == 0
SPIN_MAX = 0x8000
FL = int(next((o.split('=')[1] for o in sys.argv if o.startswith('FL=')), 4))
FS = 1 << FL
WL = int(next((o.split('=')[1] for o in sys.argv if o.startswith('WL=')), 7))

vFO2 = 0; vFO = 11
vKA = [12, 13, 14, 15]; vVA = [4, 5, 6, 7]; vVB = [8, 10, 29, 30]
vDMA = 16
vL = {'own': 17, 'B0': 18, 'B1': 19, 'B2': 20}
vXO = 21; vF = 22; vZ = 24; vRB = [25, 26, 27]; vSW = 28; vHI = 9
vS = [32, 48, 64, 80]
vM = {'own': 96, 'B0': 112, 'B1': 128, 'B2': 144}
rO = {'own': ('v', 160), 'B0': ('v', 208), 'B1': ('a', 0), 'B2': ('a', 48)}
aX = {'own': 96, 'B0': 120, 'B1': 144, 'B2': 168}
aK = 192; aV = 216
sN = 4; sW = 14; sSP = 15
sCNT = 28; sT = 29; sG = [30, 31]; sDn = 33; sDp = 34; sTE = 35; sTMP = 36; sXo = 37; sXb = 38; sXB = 39; sXS = 40
sFO = 41; sD0 = 42; sK0 = 43; sU = 53; sWT = 54; sFM = 61
ST0 = 62
_used = set(range(192, 196)) | {200 + 8 * b + k for b in range(3) for k in range(3)}
DUMMY = sum(1 << (b - 192) for b in range(192, 224) if b not in _used)
LO = f32bits(2.0 ** -90); HI = f32bits(2.0 ** 90)

def rng(kind, base, n): return f'{kind}[{base}:{base+n-1}]'
def stamp(a, idx, rt=False):
    if OPT['stamps']: a(f's_mem{"real" if rt else ""}time s[{ST0+2*idx}:{ST0+1+2*idx}]')
def stamp_store(a, n=11):
    if not OPT['stamps']: return
    a('s_mov_b64 exec, -1')
    a('s_waitcnt vmcnt(0) lgkmcnt(0)')
    a(f's_memtime s[{ST0+2*(n-2)}:{ST0+1+2*(n-2)}]')
    a(f's_memrealtime s[{ST0+2*(n-1)}:{ST0+1+2*(n-1)}]')
    a('s_waitcnt lgkmcnt(0)')
    a('s_mov_b32 s26, 0x1000000')
    a('s_lshl_b32 s3, s2, 2')
    a(f's_add_u32 s3, s3, s{sW}')
    a('s_lshl_b32 s3, s3, 6')
    a('s_add_u32 s3, s3, 0x100000')
    a('v_mov_b32 v2, 0')
    for i in range(16):
        a(f'v_mov_b32 v3, s{ST0+2*i}')
        a(f'buffer_store_dword v3, v2, s[24:27], s3 offen offset:{4*i}')

def qk_mfma(tile, sbuf, s, cinit=None):
    d = rng('v', vS[sbuf], 16)
    c = d if s else (rng('v', vM[tile], 16) if cinit is None else cinit)
    return f'v_mfma_f32_32x32x16_bf16 {d}, {rng("a", aK+4*s, 4)}, {rng("a", aX[tile]+4*s, 4)}, {c}'
def pv_mfma(tile, sbuf, t, ct):
    k, b = rO[tile]
    d = rng(k, b + 16 * ct, 16)
    return f'v_mfma_f32_32x32x16_bf16 {d}, {rng("a", aV+4*(3*t+ct), 4)}, {rng("v", vS[sbuf]+8*t, 4)}, {d}'
def koff(s):
    ct, e = s >> 1, s & 1
    return 2 * PC * e + 512 * ct if ct < 2 else 4 * PC + 512 * e
def kread(reg, s):
    return f'ds_read_b128 {rng("a", aK+4*s, 4)}, v{reg} offset:{koff(s)}'
def vread(ra, rb, t, ct):
    r = aV + 4 * (3 * t + ct)
    base = (512 * ct if ct < 2 else 4 * PC) + 256 * t
    reg = ra if ct < 2 else rb
    return [f'ds_read_b64_tr_b16 a[{r+2*h}:{r+2*h+1}], v{reg} offset:{base + 128*h}' for h in range(2)]
def dma(i):
    q, p = (0, i) if i < 4 else (1, i - 4)
    return f'buffer_load_dwordx4 v{vDMA}, s[24:27], s{sG[q]} offen offset:{PC*p} sc1 lds'
def flag_load(): return f'buffer_load_dwordx2 v[{vF}:{vF+1}], v{vFO}, s[24:27], s{sFO} offen sc1'
def flag2_load(): return f'buffer_load_dwordx2 v[{vF}:{vF+1}], v{vFO2}, s[24:27], s{sFO} offen sc1'
def flag_cmp(): return f'v_cmp_ne_u64 vcc, s[{sN}:{sN+1}], v[{vF}:{vF+1}]'
def wreg(f): return rng('v', vM['own'] + 4 * f, 4) if f < 16 else rng('a', 244 + 4 * (f - 16), 4)

def spin_tail(a, lbl):
    a(f's_cbranch_vccz {lbl}_ok')
    a(f's_sleep {OPT["sleep"]}')
    a(f's_add_u32 s{sSP}, s{sSP}, 1')
    a(f's_cmp_lt_u32 s{sSP}, {SPIN_MAX:#x}')
    a(f's_cbranch_scc1 {lbl}')
    a.label(lbl + '_ok')
def nonce_spin(a, lbl):
    a.label(lbl)
    a(f'buffer_load_dwordx2 v[{vF}:{vF+1}], v{vZ}, s[48:51], 0 offen sc1')
    a('s_waitcnt vmcnt(0)')
    a(f'v_cmp_eq_u32 vcc, 0, v{vF+1}')
    spin_tail(a, lbl)
def spin(a, lbl):
    a.label(lbl)
    a(flag_load())
    a('s_waitcnt vmcnt(0)')
    a(flag_cmp())
    spin_tail(a, lbl)

def softmax_ops(tile, sbuf):
    S = vS[sbuf]; L = vL[tile]
    E = lambda i: (f'v_exp_f32 v{S+i}, v{S+i}', 2, ('E', i))
    A = lambda i: (f'v_add_f32 v{L}, v{L}, v{S+i}', 1, ('A', i))
    def C(p):
        t, j = divmod(p, 4)
        return (f'v_cvt_pk_bf16_f32 v{S+8*t+j}, v{S+2*p}, v{S+2*p+1}', 1, ('C', p))
    ops = [E(0), E(1)]
    for p in range(1, 8):
        ops += [E(2*p), A(2*p-2), E(2*p+1), A(2*p-1), C(p-1)]
    return ops + [A(14), A(15), C(7)]
def ready(op, seq):
    kind, i = op[2]
    pos = lambda tag: seq.index(tag) if tag in seq else None
    n = len(seq)
    if kind == 'A':
        p = pos(('E', i)); return p is not None and n - p >= 2
    if kind == 'C':
        for q in (2*i, 2*i+1):
            e = pos(('E', q))
            if e is None or n - e < 2 or pos(('A', q)) is None: return False
        t, j = divmod(i, 4); dst = 8*t + j
        if pos(('A', dst)) is None: return False
        if dst // 2 != i and pos(('C', dst // 2)) is None: return False
    return True
def schedule_stage(a, mfmas, shadow, mem, pre, valu, extra, carry, may_carry):
    q = list(valu) + [(t, 1, ('X', k)) for k, t in enumerate(extra)]
    cq = list(carry)
    seq = []
    ng = len(mfmas)
    total = sum(o[1] for o in q) + len(cq)
    caps = [6 - len(mem.get(g, [])) - len(pre.get(g, [])) for g in range(ng)]
    used = 0
    for g in range(ng):
        a(mfmas[g]); seq.append(None)
        if g in shadow: a(shadow[g]); seq.append(None)
        for m in pre.get(g, []) + mem.get(g, []):
            a(m); seq.append(None)
        cap = caps[g]
        while cap > 0 and cq:
            a(cq.pop(0)); seq.append(None); cap -= 1; used += 1
        rest = sum(caps[g+1:])
        while cap > 0 and q:
            remaining = sum(o[1] for o in q)
            if used >= total * (g + 1) / ng and remaining <= rest - 2 * (ng - g - 1) // 3: break
            pick = next((k for k, o in enumerate(q[:6]) if o[1] <= cap and ready(o, seq)), None)
            if pick is None: break
            o = q.pop(pick)
            a(o[0]); seq.append(o[2]); cap -= o[1]; used += o[1]
    assert not cq
    if q:
        assert may_carry and all(o[1] == 1 for o in q) and len(q) <= 6, [o[0] for o in q]
    return [o[0] for o in q]

def cost(ins): return 2 if ins.startswith(('v_exp', 'v_rcp')) else 1
def weave(a, mfmas, fill, cap=6):
    q = list(fill)
    for g, m in enumerate(mfmas):
        a(m)
        c = cap; first = True; pv = False
        while q:
            it = q[0]
            if isinstance(it, tuple):
                if it[1] > g: break
                q.pop(0); continue
            k = 0 if (it.startswith('s_') and first) else cost(it)
            if it.startswith(('ds_', 'buffer_')) and pv: break
            if k > c: break
            a(q.pop(0)); c -= k; first = False
            pv = pv or it.startswith('v_')
    for it in q:
        if not isinstance(it, tuple): a(it)

def gen_loop(a, helper):
    nm = 'h' if helper else 'o'
    B = ['B0', 'B1', 'B2'] if helper else ['B0', 'B0', 'B0']
    units = [('own', 0), (B[0], 0), ('own', 1), (B[1], 1), ('own', 2), (B[2], 2), ('own', 3)]
    sb = [0, 1, 2, 0, 1, 2, 3]
    a.raw('.p2align 6')
    a.label(f'L_loop_{nm}')
    kload = {0: 1, 2: 2, 4: 3, 5: 0}
    vload = {2: 1, 4: 2, 6: 3, 0: 0}
    adv = lambda r, s: f'v_add_u32 v{r}, s{s}, v{r}'
    carry = []
    for u in range(7):
        nxt, prv = (u + 1) % 7, (u - 1) % 7
        mf = [qk_mfma(units[nxt][0], sb[nxt], s) for s in range(6)]
        mf += [pv_mfma(units[prv][0], sb[prv], t, ct) for t in range(2) for ct in range(3)]
        shadow = {}; mem = {}; pre = {}; extra = []
        if u in kload:
            for s in range(6): mem.setdefault(s, []).append(kread(vKA[kload[u]], s))
        if u in vload:
            p = vload[u]
            for t in range(2):
                for ct in range(3): mem.setdefault(6 + 3*t + ct, []).extend(vread(vVA[p], vVB[p], t, ct))
        if prv in vload: shadow[5] = f's_waitcnt lgkmcnt({5 if u in kload else 0})'
        if u in kload: shadow[11] = f's_waitcnt lgkmcnt({10 if u in vload else 0})'
        if u == 0:
            shadow[0] = f's_cmp_lt_u32 s{sCNT}, 5'
            shadow[1] = f's_cselect_b32 s{sTMP}, 0, s{sK0}'
            shadow[2] = f's_cselect_b32 s{sTE}, s{sT}, 0x30000'
            shadow[3] = f's_sub_u32 s{sD0}, s{sDn}, s{sTMP}'
            shadow[4] = f's_add_u32 s{sT}, s{sT}, s{sDp}'
        if u == 1:
            mem.setdefault(0, []).append(flag_load())
            extra += [adv(vKA[1], sDn), adv(vVA[0], sD0), adv(vVB[0], sD0), adv(vVA[3], sDp), adv(vVB[3], sDp), adv(vKA[0], sD0)]
        if u == 3:
            shadow[0] = 's_waitcnt vmcnt(0)'
            pre[0] = ['s_barrier']
            pre[1] = [flag_cmp()]
            shadow[2] = f's_mov_b32 m0, s{sTE}'
            shadow[3] = f's_cbranch_vccnz L_slow_{nm}\nL_back_{nm}:'
            for i, g in enumerate((4, 6, 7, 8)): mem.setdefault(g, []).append(dma(i))
            shadow[9] = f's_add_u32 m0, s{sTE}, {4*PC}'
            for i, g in enumerate((10, 11)): mem.setdefault(g, []).append(dma(4 + i))
            extra += [adv(vKA[2], sDn)]
        if u == 4:
            shadow[0] = f's_add_u32 s{sFO}, s{sFO}, {32*FS}'
            shadow[1] = f's_min_u32 s{sFO}, s{sFO}, s{sFM}'
            shadow[2] = f's_add_u32 s{sG[0]}, s{sG[0]}, {GB}'
            shadow[3] = f's_add_u32 s{sG[1]}, s{sG[1]}, {GB}'
        if u == 5:
            extra += [adv(vVA[1], sDn), adv(vVB[1], sDn), adv(vKA[3], sDn), adv(vVA[2], sDn), adv(vVB[2], sDn)]
        if u == 6:
            shadow[1] = f's_add_u32 s{sTMP}, s{sDn}, s{sDp}'
            shadow[2] = f's_mov_b32 s{sDp}, s{sDn}'
            shadow[3] = f's_sub_u32 s{sDn}, 0, s{sTMP}'
            shadow[4] = f's_add_u32 s{sCNT}, s{sCNT}, 1'
            shadow[5] = f's_cmp_lt_u32 s{sCNT}, 6'
        carry = schedule_stage(a, mf, shadow, mem, pre, softmax_ops(units[u][0], sb[u]), extra, carry, u in (0, 2, 4))
    assert not carry
    a(f's_cbranch_scc1 L_loop_{nm}')

def slow_path(a, nm):
    a.label(f'L_slow_{nm}')
    spin(a, f'L_spin_{nm}')
    a(f's_branch L_back_{nm}')

def lane_addr(a, rK, rA, rB, t0, t1):
    a(f'''
    v_lshrrev_b32 v{t0}, 5, v1
    v_mul_u32_u24 v{rK}, {PC}, v{t0}
    v_and_b32 v{t1}, 31, v1
    v_lshl_add_u32 v{rK}, v{t1}, 4, v{rK}
    v_bfe_u32 v{t1}, v1, 2, 2
    v_lshl_add_u32 v{t1}, v{t0}, 2, v{t1}
    v_lshlrev_b32 v{rB}, 4, v{t1}
    v_bfe_u32 v{t1}, v1, 1, 1
    v_lshl_add_u32 v{rB}, v{t1}, 3, v{rB}
    v_and_b32 v{t1}, 1, v1
    v_mul_u32_u24 v{t1}, {PC}, v{t1}
    v_add_u32 v{rB}, v{rB}, v{t1}
    v_bfe_u32 v{t1}, v1, 4, 1
    v_mul_u32_u24 v{t0}, {2*PC}, v{t1}
    v_add_u32 v{rA}, v{rB}, v{t0}
    v_lshl_add_u32 v{rB}, v{t1}, 9, v{rB}
    ''')

def half_softmax_ops(sbuf, tile):
    S = vS[sbuf]; L = vL[tile]
    o = [f'v_exp_f32 v{S+i}, v{S+i}' for i in range(8)]
    o += [f'v_add_f32 v{L}, v{L}, v{S+i}' for i in range(8)]
    o += [f'v_cvt_pk_bf16_f32 v{S+j}, v{S+2*j}, v{S+2*j+1}' for j in range(4)]
    return o
def lsum_ops(tile, r, tag):
    L = vL[tile]
    return [f'v_mov_b32 v{r}, v{L}', 's_nop 1', f'v_permlane32_swap_b32 v{L}, v{r}', 's_nop 0',
            f'v_add_f32 v{r}, v{L}, v{r}', f'v_med3_f32 v{r+1}, v{r}, s58, v{vHI}', f'v_cmp_neq_f32 vcc, v{r+1}, v{r}',
            f's_cbranch_vccnz L_redo_{tag}', f'L_redone_{tag}:', f'v_rcp_f32 v{r}, v{r}']
def redo(a, tile, r, tag):
    k, b = rO[tile]
    L = vL[tile]; X = aX[tile]; S = vS[2]; M = vS[3]
    sd = rng('v', S, 16)
    rK, rA, rB = 12, 13, 14
    a.label(f'L_redo_{tag}')
    a('s_waitcnt vmcnt(0) lgkmcnt(0)')
    lane_addr(a, rK, rA, rB, 4, 5)
    a(f's_mul_i32 s59, s{sW}, {OST}')
    a(f's_add_u32 s59, s59, {STG0}')
    for x in (rK, rA, rB): a(f'v_add_u32 v{x}, s59, v{x}')
    a('v_mov_b32 v4, 0xff800000')
    a('s_mov_b32 s55, 0')
    def stage():
        a('s_mov_b32 m0, s59')
        a(f's_add_u32 s57, s55, {4*PC}')
        for p in range(4): a(f'buffer_load_dwordx4 v{vDMA}, s[24:27], s55 offen offset:{PC*p} sc1 lds')
        a(f's_add_u32 m0, s59, {4*PC}')
        a('s_nop 0')
        for p in range(2): a(f'buffer_load_dwordx4 v{vDMA}, s[24:27], s57 offen offset:{PC*p} sc1 lds')
        a('s_waitcnt vmcnt(0)')
        for s in range(6): a(kread(rK, s))
    def qk(c):
        a('s_waitcnt lgkmcnt(0)')
        for s in range(6):
            a(f'v_mfma_f32_32x32x16_bf16 {sd}, {rng("a", aK+4*s, 4)}, {rng("a", X+4*s, 4)}, {c if s == 0 else sd}')
        a('s_nop 15')
    def mx(n):
        for i in range(0, n, 2): a(f'v_max3_f32 v4, v4, v{S+i}, v{S+i+1}')
    a.label(f'L_redo1_{tag}')
    stage(); qk('0')
    a(f's_cmp_eq_u32 s55, {24*TILE}')
    a(f's_cbranch_scc1 L_redo1e_{tag}')
    mx(16)
    a(f's_add_u32 s55, s55, {TILE}')
    a(f's_branch L_redo1_{tag}')
    a.label(f'L_redo1e_{tag}')
    mx(8)
    a('v_mov_b32 v5, v4')
    a('s_nop 1')
    a('v_permlane32_swap_b32 v4, v5')
    a('s_nop 0')
    a('v_max_f32 v4, v4, v5')
    for i in range(16): a(f'v_sub_f32 v{M+i}, 0, v4')
    for i in range(48): a(f'v_mov_b32 v{b+i}, 0')
    a(f'v_mov_b32 v{L}, 0')
    a('s_mov_b32 s55, 0')
    def sm(n):
        for i in range(n): a(f'v_exp_f32 v{S+i}, v{S+i}')
        a('s_nop 0')
        for i in range(n): a(f'v_add_f32 v{L}, v{L}, v{S+i}')
        for p in range(n // 2):
            t, j = divmod(p, 4)
            a(f'v_cvt_pk_bf16_f32 v{S+8*t+j}, v{S+2*p}, v{S+2*p+1}')
        a('s_nop 1')
        for t in range(n // 8):
            for ct in range(3): a(pv_mfma(tile, 2, t, ct))
    a.label(f'L_redo2_{tag}')
    stage()
    for t in range(2):
        for ct in range(3):
            for x in vread(rA, rB, t, ct): a(x)
    qk(rng('v', M, 16))
    a(f's_cmp_eq_u32 s55, {24*TILE}')
    a(f's_cbranch_scc1 L_redo2e_{tag}')
    sm(16)
    a(f's_add_u32 s55, s55, {TILE}')
    a(f's_branch L_redo2_{tag}')
    a.label(f'L_redo2e_{tag}')
    sm(8)
    a(f'v_mov_b32 v{r}, v{L}')
    a('s_nop 1')
    a(f'v_permlane32_swap_b32 v{L}, v{r}')
    a('s_nop 0')
    a(f'v_add_f32 v{r}, v{L}, v{r}')
    a('s_nop 15')
    a(f's_branch L_redone_{tag}')
def cvt_ops(tile, P):
    b = rO[tile][1]
    return [f'v_cvt_pk_bf16_f32 v{P+j}, v{b+2*j}, v{b+2*j+1}' for j in range(24)]
def proj_mfmas(tile, P):
    b = rO[tile][1]; m = []
    for cot in range(3):
        d = rng('v', b + 16 * cot, 16)
        for s in range(6):
            m.append(f'v_mfma_f32_32x32x16_bf16 {d}, {wreg(6*cot+s)}, {rng("v", P+4*s, 4)}, {"0" if s == 0 else d}')
    return m
def fin_ops(tile, cot, r, pk=False):
    o = rO[tile][1] + 16 * cot
    out = []
    for j in range(8):
        if pk:
            out.append(f'v_pk_mul_f32 v[{o+2*j}:{o+2*j+1}], v[{o+2*j}:{o+2*j+1}], v[{r}:{r+1}]')
        else:
            out += [f'v_mul_f32 v{o+2*j}, v{r}, v{o+2*j}', f'v_mul_f32 v{o+2*j+1}, v{r}, v{o+2*j+1}',
                    f'v_cvt_pk_bf16_f32 v{o+j}, v{o+2*j}, v{o+2*j+1}']
    if pk: out += [f'v_cvt_pk_bf16_f32 v{o+j}, v{o+2*j}, v{o+2*j+1}' for j in range(8)]
    return out + [f'ds_write_b64 v{vSW}, v[{o+2*i}:{o+2*i+1}] offset:{64*cot+16*i}' for i in range(4)]
def store_ops(R, soff, s2):
    return ['s_waitcnt lgkmcnt(0)'] + [f'ds_read_b128 v[{R+4*j}:{R+4*j+3}], v{vRB[j%3]} offset:{(j//3)*16*208}' for j in range(6)] + [f's_add_u32 s{s2}, s{soff}, 4096']
def store_ops2(R, soff, s2, waits=True):
    o = []
    for j in range(6):
        if waits: o.append(f's_waitcnt lgkmcnt({5-j})')
        o.append(f'buffer_store_dwordx4 v[{R+4*j}:{R+4*j+3}], v{vDMA}, s[20:23], s{soff if j < 4 else s2} offen offset:{1024*(j%4)} nt')
    return o

def probe(a, where):
    if OPT.get('probe') != where: return
    lab = f'L_probe{len(a.lines)}'
    a.label(lab)
    a('s_memrealtime s[98:99]')
    a('s_waitcnt lgkmcnt(0)')
    a('s_sub_u32 s98, s98, s100')
    a(f's_cmp_lt_u32 s98, {OPT["D"]}')
    a(f's_cbranch_scc1 {lab}')

def code_prefetch(a):
    a('s_getpc_b64 s[58:59]')
    a.label('L_pc')
    a(f's_sub_u32 s58, s58, L_pc-{NAME}')
    a('s_subb_u32 s59, s59, 0')
    a('v_lshlrev_b32 v6, 7, v1')
    for k in range(3):
        a(f'v_min_u32 v7, L_end-{NAME}, v6')
        a('v_mov_b32 v5, s59')
        a('v_add_co_u32 v4, vcc, s58, v7')
        a('v_addc_co_u32 v5, vcc, 0, v5, vcc')
        a(f'global_load_dword a{252+k}, v[4:5], off')
        if k < 2: a('v_add_u32 v6, 0x2000, v6')

def gen_spare(a):
    a.label('L_spare')
    a(f'''
    s_cmp_gt_u32 s{sW}, 1
    s_cbranch_scc1 L_end
    s_cmp_gt_u32 s2, 27
    s_cbranch_scc1 L_end
    s_cmp_eq_u32 s2, 27
    s_cbranch_scc1 L_sp_nonce
    s_mul_i32 s28, s2, 57
    s_lshr_b32 s28, s28, 9
    s_mul_i32 s28, s28, 9
    s_sub_u32 s28, s2, s28
    s_mov_b32 s56, s8
    s_mov_b32 s57, s9
    s_mov_b32 s58, 36864
    s_mov_b32 s59, 0x20000
    v_and_b32 v3, 31, v1
    v_lshrrev_b32 v4, 5, v1
    v_mul_u32_u24 v6, 384, v3
    v_lshl_add_u32 v6, v4, 4, v6
    s_mul_i32 s29, s28, 11
    s_lshr_b32 s29, s29, 5
    s_mul_i32 s30, s29, 3
    s_sub_u32 s30, s28, s30
    s_cmp_eq_u32 s{sW}, 1
    s_cbranch_scc1 L_sp_vo
    s_mov_b32 s52, s6
    s_mov_b32 s53, s7
    s_mov_b32 s54, 18432
    s_mov_b32 s55, 0x20000
    v_mul_u32_u24 v5, 192, v3
    v_lshl_add_u32 v5, v4, 4, v5
    s_mul_i32 s31, s29, {32*192}
    s_mul_i32 s32, s30, {32*384}
    ''')
    for s in range(6):
        a(f'buffer_load_dwordx4 v[{8+4*s}:{11+4*s}], v5, s[52:55], s31 offen offset:{32*s}')
        a(f'buffer_load_dwordx4 v[{32+4*s}:{35+4*s}], v6, s[56:59], s32 offen offset:{32*s}')
    a(f'''
    v_lshlrev_b32 v7, 4, v3
    v_lshl_add_u32 v7, v4, 3, v7
    s_mul_i32 s33, s30, 6
    s_lshl_b32 s34, s29, 1
    s_add_u32 s33, s33, s34
    s_lshl_b32 s33, s33, 10
    s_add_u32 s33, s33, {WQK_OFF}
    s_mov_b32 s35, 0x{f32bits(CST):08x}
    s_lshl_b32 s36, s28, {WL}
    s_add_u32 s36, s36, {WFLAG_OFF}
    ''')
    for s in range(6):
        a(f's_waitcnt vmcnt({10-2*s})')
        a(f'v_mfma_f32_32x32x16_bf16 v[64:79], v[{8+4*s}:{11+4*s}], v[{32+4*s}:{35+4*s}], {"0" if s == 0 else "v[64:79]"}')
    a('s_nop 15')
    for r in range(16): a(f'v_mul_f32 v{64+r}, s35, v{64+r}')
    for r in range(8): a(f'v_cvt_pk_bf16_f32 v{80+r}, v{64+2*r}, v{65+2*r}')
    for i in range(4):
        a(f'buffer_store_dwordx2 v[{80+2*i}:{81+2*i}], v7, s[24:27], s33 offen offset:{(i>>1)*1024 + (i&1)*512} sc1')
    a.label('L_sp_flag')
    a(f'''
    v_mov_b32 v{vZ}, 0
    s_mov_b32 s{sSP}, 0
    ''')
    nonce_spin(a, 'L_sp_n')
    a(f'''
    s_mov_b64 exec, 1
    buffer_store_dwordx2 v[{vF}:{vF+1}], v{vZ}, s[24:27], s36 offen sc1
    s_endpgm
    ''')
    a.label('L_sp_nonce')
    a(f'''
    s_cmp_lg_u32 s{sW}, 0
    s_cbranch_scc1 L_end
    s_memrealtime s[28:29]
    v_mov_b32 v4, 0
    s_waitcnt lgkmcnt(0)
    s_or_b32 s29, s29, 0x40000000
    v_mov_b32 v2, s28
    v_mov_b32 v3, s29
    s_mov_b64 exec, 1
    buffer_store_dwordx2 v[2:3], v4, s[48:51], 0 offen sc1
    s_mov_b32 exec_lo, 0x{DUMMY & 0xffffffff:08x}
    s_mov_b32 exec_hi, 0
    v_lshlrev_b32 v4, {FL}, v1
    s_mov_b32 s30, {FLAG_OFF + 192*FS}
    buffer_store_dwordx2 v[2:3], v4, s[24:27], s30 offen sc1
    s_endpgm
    ''')
def gen_spare_vo(a):
    a.label('L_sp_vo')
    a(f'''
    s_cmp_gt_u32 s2, 8
    s_cbranch_scc1 L_end
    s_mov_b32 s20, s10
    s_mov_b32 s21, s11
    s_mov_b32 s22, 18432
    s_mov_b32 s23, 0x20000
    v_lshlrev_b32 v7, 4, v1
    v_lshrrev_b32 v56, 2, v1
    v_and_b32 v57, 3, v1
    v_mul_u32_u24 v56, 192, v56
    v_lshl_add_u32 v56, v57, 4, v56
    s_lshl_b32 s31, s30, 6
    s_mov_b32 s34, 0
    ''')
    for p in range(6):
        a('s_mov_b32 m0, s34')
        a('s_add_u32 s34, s34, 1024')
        a('buffer_load_dwordx4 v56, s[20:23], s31 offen lds')
        a(f's_add_u32 s31, s31, {16*192}')
    a(f's_mul_i32 s32, s29, {32*384}')
    for s in range(6):
        a(f'buffer_load_dwordx4 v[{8+4*s}:{11+4*s}], v6, s[56:59], s32 offen offset:{192+32*s}')
    a(f'''
    v_bfe_u32 v56, v1, 2, 2
    v_lshl_add_u32 v56, v4, 3, v56
    v_lshlrev_b32 v56, 6, v56
    v_bfe_u32 v58, v1, 4, 1
    v_lshl_add_u32 v56, v58, 5, v56
    v_lshl_add_u32 v56, v57, 3, v56
    s_mul_i32 s33, s30, {TILE}
    s_mul_i32 s34, s29, {2*PC}
    s_add_u32 s33, s33, s34
    s_add_u32 s33, s33, {25*TILE}
    s_lshl_b32 s36, s30, 3
    s_add_u32 s36, s36, s29
    s_add_u32 s36, s36, 200
    s_lshl_b32 s36, s36, {FL}
    s_add_u32 s36, s36, {FLAG_OFF}
    s_waitcnt vmcnt(6)
    ''')
    for s in range(6):
        for half in range(2):
            a(f'ds_read_b64_tr_b16 v[{32+4*s+2*half}:{33+4*s+2*half}], v56 offset:{s*1024 + half*256}')
    a('s_waitcnt vmcnt(0) lgkmcnt(0)')
    for s in range(6):
        a(f'v_mfma_f32_32x32x16_bf16 v[64:79], v[{8+4*s}:{11+4*s}], v[{32+4*s}:{35+4*s}], {"0" if s == 0 else "v[64:79]"}')
    a('s_nop 15')
    for r in range(8): a(f'v_cvt_pk_bf16_f32 v{80+r}, v{64+2*r}, v{65+2*r}')
    for k in range(2):
        a(f'buffer_store_dwordx4 v[{80+4*k}:{83+4*k}], v7, s[24:27], s33 offen offset:{PC*k} sc1')
    a('s_branch L_sp_flag')

def gen_consumer(a):
    a(f'''
    s_sub_u32 s3, s2, {NSP}
    v_lshlrev_b32 v{vDMA}, 4, v1
    s_lshr_b32 s55, s3, 3
    s_and_b32 s56, s3, 7
    s_mul_i32 s{sXB}, s55, 344064
    s_mul_i32 s57, s56, 6144
    s_mov_b32 s{sXS}, 43008
    s_cmp_eq_u32 s56, 7
    s_cselect_b32 s57, {7*43008}, s57
    s_cselect_b32 s{sXS}, 6144, s{sXS}
    s_add_u32 s{sXB}, s{sXB}, s57
    s_cmp_eq_u32 s{sW}, 3
    s_cbranch_scc1 L_x_w3
    s_cmp_ge_u32 s3, {OPT.get("early", 120)}
    s_cbranch_scc1 L_cons2
    ''')
    def x_dma(done):
        a(f'''
        s_mul_i32 s6, s{sW}, 3
        s_mul_i32 s7, s6, 6144
        s_mul_i32 s6, s6, s{sXS}
        s_add_u32 s6, s6, s{sXB}
        s_add_u32 s7, s7, {XST}
        s_mov_b32 m0, s7
        s_add_u32 s8, s6, 4096
        ''')
        for t in range(3):
            for p in range(4): a(f'buffer_load_dwordx4 v{vDMA}, s[16:19], s6 offen offset:{1024*p} nt lds')
            a(f's_add_u32 m0, s7, {6144*t + 4096}')
            a(f's_add_u32 s6, s6, s{sXS}')
            for p in range(2): a(f'buffer_load_dwordx4 v{vDMA}, s[16:19], s8 offen offset:{1024*p} nt lds')
            if t < 2:
                a(f's_add_u32 m0, s7, {6144*(t+1)}')
                a(f's_add_u32 s8, s8, s{sXS}')
            if t == 1:
                a(f's_cmp_eq_u32 s{sW}, 2')
                a(f's_cbranch_scc1 {done}')
    x_dma('L_cons2')
    a('s_branch L_cons2')
    gen_spare(a)
    a.label('L_x_w3')
    code_prefetch(a)
    a(f'v_mov_b32 v2, {NC_LDS}')
    for i in range(4): a(f'v_mov_b32 v{4+i}, 0')
    a('ds_write_b128 v2, v[4:7]')
    a('s_waitcnt lgkmcnt(0)')
    a.label('L_cons2')
    a('s_barrier')
    def late_dma():
        a(f's_cmp_eq_u32 s{sW}, 3')
        a('s_cbranch_scc1 L_x2')
        a(f's_cmp_lt_u32 s3, {OPT.get("early", 120)}')
        a('s_cbranch_scc1 L_x2')
        x_dma('L_x2')
        a.label('L_x2')
    lp = OPT.get('lpos', 2)
    if lp == 0: late_dma()
    a(f'''
    s_mul_i32 s{sU}, s55, 7
    s_add_u32 s{sU}, s{sU}, s56
    s_mul_i32 s{sWT}, s{sW}, {TILE}
    v_mov_b32 v{vZ}, 0
    v_mov_b32 v2, {NC_LDS}
    s_mov_b32 s{sSP}, 0
    v_and_b32 v3, 31, v1
    v_lshrrev_b32 v4, 5, v1
    v_mul_u32_u24 v{vXO}, 192, v3
    v_lshl_add_u32 v{vXO}, v4, 4, v{vXO}
    s_mul_i32 s{sXo}, s{sW}, s{sXS}
    s_add_u32 s{sXo}, s{sXo}, s{sXB}
    s_lshl_b32 s57, s{sXS}, 2
    s_add_u32 s{sXb}, s{sXo}, s57
    s_mov_b32 s20, s12
    s_mov_b32 s21, s13
    s_mov_b32 s22, {X_BYTES}
    s_mov_b32 s23, 0x20000
    s_mov_b32 s{sCNT}, 0
    s_add_u32 s{sT}, s{sWT}, {2*GB}
    s_add_u32 s{sG[0]}, s{sWT}, {2*GB}
    s_add_u32 s{sG[1]}, s{sWT}, {2*GB + 4*PC}
    s_mov_b32 s{sDn}, {GB}
    s_mov_b32 s{sDp}, {(-2*GB) & 0xffffffff}
    s_lshl_b32 s{sFM}, s{sW}, {FL+3}
    s_add_u32 s{sFM}, s{sFM}, {FLAG_OFF + 192*FS}
    s_sub_u32 s{sFO}, s{sFM}, {192*FS}
    s_mul_i32 s57, s{sW}, {OST}
    s_add_u32 s57, s57, {STG0}
    v_mul_u32_u24 v{vSW}, 208, v3
    v_lshl_add_u32 v{vSW}, v4, 3, v{vSW}
    v_add_u32 v{vSW}, s57, v{vSW}
    ''')
    for j in range(3):
        a(f'v_add_u32 v5, {64*j}, v1')
        a('v_mul_u32_u24 v6, 171, v5')
        a('v_lshrrev_b32 v6, 11, v6')
        a('v_add_u32 v5, v5, v6')
        a('v_lshlrev_b32 v5, 4, v5')
        a(f'v_add_u32 v{vRB[j]}, s57, v5')
    a(f'''
    v_lshrrev_b32 v9, 4, v1
    v_and_b32 v10, 15, v1
    v_lshrrev_b32 v6, 2, v10
    v_lshl_add_u32 v6, v9, 3, v6
    v_mul_u32_u24 v5, 192, v6
    v_and_b32 v8, 3, v1
    v_lshl_add_u32 v5, v8, 3, v5
    s_lshl_b32 s57, s{sW}, 6
    s_add_u32 s57, s57, {XST}
    v_add_u32 v5, s57, v5
    v_cmp_eq_u32 vcc, v9, v10
    v_mov_b32 v6, 0x3f803f80
    v_lshlrev_b32 v8, 4, v8
    v_cndmask_b32 v{vS[3]}, 0, v6, vcc
    v_cndmask_b32 v{vS[3]+1}, 0, v6, vcc
    v_cndmask_b32 v{vS[3]+2}, 0, v6, vcc
    v_cndmask_b32 v{vS[3]+3}, 0, v6, vcc
    v_lshl_add_u32 v8, v4, 6, v8
    v_add_u32 v8, {LK_LDS}, v8
    v_and_b32 v3, 1, v9
    v_lshrrev_b32 v7, 1, v9
    v_lshlrev_b32 v29, 4, v10
    v_lshl_add_u32 v29, v7, 3, v29
    v_mul_u32_u24 v6, {PC}, v3
    v_add_u32 v6, v6, v29
    v_lshl_add_u32 v29, v3, 6, v29
    s_lshl_b32 s57, s{sW}, 8
    s_add_u32 s57, s57, {LK_LDS}
    v_add_u32 v29, s57, v29
    s_lshr_b32 s57, s{sU}, 3
    s_mul_i32 s57, s57, {TILE}
    s_and_b32 s58, s{sU}, 7
    s_lshl_b32 s58, s58, 6
    s_add_u32 s59, s57, s58
    s_lshl_b32 s58, s{sW}, 9
    s_mov_b32 s60, {2*PC}
    s_cmp_eq_u32 s{sW}, 2
    s_cselect_b32 s58, {4*PC}, s58
    s_cselect_b32 s60, 512, s60
    s_add_u32 s59, s59, s58
    s_add_u32 s57, s59, s60
    s_mul_i32 s58, s{sW}, 6144
    s_add_u32 s58, s58, {XST}
    v_add_u32 v30, s58, v{vXO}
    v_add_u32 v31, s58, v{vDMA}
    v_and_b32 v{vFO}, 7, v1
    v_lshlrev_b32 v{vFO}, {FL}, v{vFO}
    v_mov_b32 v3, 1
    ''')
    if lp == 1: late_dma()
    for t in vL: a(f'v_mov_b32 v{vL[t]}, 0')
    for t in ('own', 'B0'):
        for i in range(48): a(f'v_mov_b32 v{rO[t][1]+i}, 0')
    def xfrags(n):
        for s in range(6): a(f'ds_read_b128 {rng("a", aX["B1"]+4*s, 4)}, v30 offset:{32*s}')
        if n > 1:
            for s in range(6): a(f'ds_read_b128 {rng("a", aX["B2"]+4*s, 4)}, v30 offset:{4*6144+32*s}')
    warm = [f'buffer_load_dword a240, v{vZ}, s[20:23], s{sXo} offen', f'buffer_load_dword a241, v{vZ}, s[20:23], s{sXb} offen']
    if lp == 2: late_dma()
    a(f's_cmp_eq_u32 s{sW}, 3')
    a('s_cbranch_scc1 L_w3')
    for x in warm: a(x)
    a(f'buffer_load_dwordx2 v[{vF}:{vF+1}], v{vZ}, s[48:51], 0 offen sc1')
    stamp(a, 2)
    a('s_waitcnt vmcnt(3)')
    a('s_mov_b64 exec, 1')
    a('ds_add_u32 v2, v3')
    a('s_mov_b64 exec, -1')
    a.label('L_xw')
    a('ds_read_b32 v4, v2')
    a('s_waitcnt lgkmcnt(0)')
    a('v_cmp_ne_u32 vcc, 3, v4')
    a('s_cbranch_vccnz L_xw')
    stamp(a, 3)
    if OPT.get('pd'): a(f's_mov_b32 s{ST0+14}, 0')
    F = vM['own']
    def trr(row):
        for c in range(2):
            for half in range(2):
                d = F + (row * 2 + c) * 4 + 2 * half
                a(f'ds_read_b64_tr_b16 v[{d}:{d+1}], v5 offset:{row*6144 + half*768 + c*32}')
    IND = rng('v', vS[3], 4)
    D = vS[0]
    for row in range(3): trr(row)
    for row in range(8):
        a(f's_waitcnt lgkmcnt({4*min(2, 7-row)})')
        for c in range(2):
            f = rng('v', F + (row * 2 + c) * 4, 4)
            d1 = rng('v', D + 8 * (row & 1) + 4 * c, 4)
            a(f'v_mfma_f32_16x16x32_bf16 {d1}, {f}, {IND}, {"0" if row < 2 else d1}')
        if row + 3 < 8: trr(row + 3)
    a('s_mov_b32 s60, 0x3c800000')
    a('v_cmp_gt_u32 vcc, 4, v10')
    xfrags(2)
    for r in range(8): a(f'v_add_f32 v{D+r}, v{D+r}, v{D+8+r}')
    for r in range(8): a(f'v_mul_f32 v{D+r}, s60, v{D+r}')
    for r in range(4): a(f'v_cvt_pk_bf16_f32 v{D+16+r}, v{D+2*r}, v{D+2*r+1}')
    a('s_cmp_eq_u32 s56, 7')
    a('s_mov_b64 exec, vcc')
    a('s_cbranch_scc1 L_nostore')
    a(f'buffer_store_dwordx2 v[{D+16}:{D+17}], v6, s[24:27], s59 offen sc1')
    a(f'buffer_store_dwordx2 v[{D+18}:{D+19}], v6, s[24:27], s57 offen sc1')
    a.label('L_nostore')
    for c in range(2): a(f'ds_write_b64 v29, v[{D+16+2*c}:{D+17+2*c}] offset:{128*c}')
    a('s_mov_b64 exec, -1')
    stamp(a, 4)
    a('s_cbranch_scc1 L_nw0')
    a('s_waitcnt vmcnt(2)')
    a('s_branch L_nw1')
    a.label('L_nw0')
    a('s_waitcnt vmcnt(0)')
    a.label('L_nw1')
    a(f'v_cmp_eq_u32 vcc, 0, v{vF+1}')
    a('s_cbranch_vccz L_nonce_ok')
    nonce_spin(a, 'L_nonce')
    a(f'v_readfirstlane_b32 s{sN}, v{vF}')
    a(f'v_readfirstlane_b32 s{sN+1}, v{vF+1}')

    def g_dma(g):
        for q in range(6):
            a(f's_mov_b32 s60, {g*GB + q*4*PC}')
            a('s_mov_b32 m0, s60')
            a('s_nop 0')
            for p in range(4): a(f'buffer_load_dwordx4 v{vDMA}, s[24:27], s60 offen offset:{PC*p} sc1 lds')
    def publish(tag):
        a(f'''
        s_lshl_b32 s60, s{sU}, {FL}
        s_add_u32 s60, s60, {FLAG_OFF}
        v_mov_b32 v6, s{sN}
        v_mov_b32 v7, s{sN+1}
        s_waitcnt vmcnt(0)
        s_mov_b64 exec, 1
        ds_add_rtn_u32 v5, v2, v3 offset:12
        s_waitcnt lgkmcnt(0)
        v_cmp_eq_u32 vcc, 2, v5
        s_cmp_eq_u32 s56, 7
        s_cbranch_scc1 L_noflag{tag}
        s_cbranch_vccz L_noflag{tag}
        buffer_store_dwordx2 v[6:7], v{vZ}, s[24:27], s60 offen sc1
        ''')
        if OPT.get('pd'): stamp(a, 7, True)
        a.label(f'L_noflag{tag}')
        a('s_mov_b64 exec, -1')
        a('s_mov_b32 s59, 1')
    def ready_poll(lbl, n):
        a('s_mov_b32 s57, 0')
        a.label(lbl)
        a('ds_read2_b32 v[4:5], v2 offset0:1 offset1:2')
        a('s_waitcnt lgkmcnt(0)')
        a('v_add_u32 v4, v4, v5')
        a('v_cmp_ne_u32 vcc, 4, v4')
        a('s_cbranch_vccz L_q')
        a('s_add_u32 s57, s57, 1')
        a(f's_cmp_lt_u32 s57, {n}')
        a(f's_cbranch_scc1 {lbl}')
    a(f'''
    s_waitcnt lgkmcnt(0)
    s_mov_b64 exec, 1
    ds_add_u32 v2, v3 offset:4
    s_mov_b64 exec, -1
    s_mov_b32 s59, 0
    s_mov_b32 s55, 0
    ''')
    ready_poll('L_pq', 5)
    publish('a')
    a.label('L_pw')
    ready_poll('L_pw1', 64)
    a('s_branch L_pw')
    a.label('L_w3')
    a(warm[0])
    for i in range(96): a(f'v_accvgpr_write_b32 a{i}, 0')
    stamp(a, 2)
    a('v_min_u32 v4, 8, v1')
    a(f'v_lshlrev_b32 v4, {WL}, v4')
    a(f's_mov_b32 s57, {WFLAG_OFF}')
    a.label('L_wq')
    a(f'buffer_load_dwordx2 v[6:7], v{vZ}, s[48:51], 0 offen sc1')
    a(f'buffer_load_dwordx2 v[{vF}:{vF+1}], v4, s[24:27], s57 offen sc1')
    a('s_waitcnt vmcnt(0)')
    a('v_cmp_eq_u32 s[58:59], 0, v7')
    a(f'v_cmp_ne_u64 vcc, v[6:7], v[{vF}:{vF+1}]')
    a('s_or_b64 vcc, vcc, s[58:59]')
    spin_tail(a, 'L_wq')
    a(f'v_readfirstlane_b32 s{sN}, v6')
    a(f'v_readfirstlane_b32 s{sN+1}, v7')
    stamp(a, 3)
    a(f's_mov_b32 s57, {WQK_OFF}')
    a(f's_mov_b32 s58, {WQ_LDS}')
    for q in range(5):
        a('s_mov_b32 m0, s58')
        a('s_add_u32 s58, s58, 4096')
        for p in range(4 if q < 4 else 2): a(f'buffer_load_dwordx4 v{vDMA}, s[24:27], s57 offen offset:{1024*p} sc1 lds')
        a('s_add_u32 s57, s57, 4096')
    stamp(a, 4, True)
    a.label('L_w3x')
    a('ds_read_b32 v4, v2')
    a('s_waitcnt lgkmcnt(0)')
    a('v_cmp_ne_u32 vcc, 3, v4')
    a('s_cbranch_vccnz L_w3x')
    xfrags(1)
    a('s_waitcnt vmcnt(0) lgkmcnt(0)')
    a('ds_write_b32 v2, v3 offset:8')
    a(f'v_lshlrev_b32 v{vFO2}, {FL}, v1')
    a(f's_mov_b32 s57, {FLAG_OFF}')
    f64 = f'buffer_load_dwordx2 v[{vF}:{vF+1}], v{vFO2}, s[24:27], s57 offen sc1'
    a.label('L_w3p')
    a('ds_read_b32 v4, v2 offset:4')
    a('s_waitcnt lgkmcnt(0)')
    a('v_cmp_ne_u32 vcc, 3, v4')
    a('s_cbranch_vccnz L_w3p')
    a('s_branch L_q3')
    a.label('L_q')
    stamp(a, 5)
    def q_reads():
        a(f'v_add_u32 v4, {WQ_LDS}, v{vDMA}')
        for f in range(18): a(f'ds_read_b128 {wreg(f)}, v4 offset:{1024*f}')
        for s in range(6): a(f'ds_read_b128 {rng("a", aV+4*s, 4)}, v8 offset:{128*s}')
    q_reads()
    blocks = [(ti, ct) for ti in range(2) for ct in range(3)]
    def qfin(n):
        ti, ct = blocks[n]; S = vS[n % 4]; X = aX['own' if ti == 0 else 'B0'] + 8 * ct
        out = [f'v_cvt_pk_bf16_f32 v{S+j}, v{S+2*j}, v{S+2*j+1}' for j in range(8)]
        out += [f'v_accvgpr_write_b32 a{X+j}, v{S+j}' for j in range(8)]
        if ti == 1: out += [f'ds_write_b128 v31, v[{S+4*k}:{S+4*k+3}] offset:{(2*ct+k)*1024}' for k in range(2)]
        return out
    def blk(n):
        ti, ct = blocks[n]; d = rng('v', vS[n % 4], 16); X = aX['B1' if ti == 0 else 'B2']
        return [f'v_mfma_f32_32x32x16_bf16 {d}, {wreg(6*ct+s)}, {rng("a", X+4*s, 4)}, {"0" if s == 0 else d}' for s in range(6)]
    def lqk(t, sbuf):
        d = rng('v', vS[sbuf], 16)
        return [f'v_mfma_f32_32x32x16_bf16 {d}, {rng("a", aV+4*s, 4)}, {rng("a", aX[t]+4*s, 4)}, {"0" if s == 0 else d}' for s in range(6)]
    def mops(t, sbuf):
        S = vS[sbuf]
        return [f'v_max3_f32 v9, v{S}, v{S+1}, v{S+2}', f'v_max_f32 v9, v9, v{S+3}'] + [f'v_sub_f32 v{vM[t]+i}, 0, v9' for i in range(16)]
    m0_, m1_, m2_ = blk(0), blk(1), blk(2)
    m0_[0] = 's_waitcnt lgkmcnt(15)\n' + m0_[0]
    m1_[0] = 's_waitcnt lgkmcnt(12)\n' + m1_[0]
    m2_[0] = 's_waitcnt lgkmcnt(6)\n' + m2_[0]
    def addr_setup():
        lane_addr(a, vKA[3], vVA[3], vVB[3], 21, 31)
        for i in range(4):
            a(f's_add_u32 s60, s{sW}, {1+i}')
            a('s_and_b32 s60, s60, 3')
            a(f's_mul_i32 s60, s60, {TILE}')
            if i == 0: a(f's_mov_b32 s{sK0}, s60')
            a(f'v_add_u32 v{vKA[i]}, s60, v{vKA[3]}')
            if i == 3: a(f's_add_u32 s60, s60, {2*GB}')
            a(f'v_add_u32 v{vVA[i]}, s60, v{vVA[3]}')
            a(f'v_add_u32 v{vVB[i]}, s60, v{vVB[3]}')
        for i in range(24): a(f'v_accvgpr_write_b32 a{aV+i}, 0')
    def zero_p():
        for i in range(4):
            a(f'v_mov_b32 v{vS[3]+i}, 0')
            a(f'v_mov_b32 v{vS[3]+8+i}, 0')
        a(f'v_mov_b32 v{vHI}, 0x{HI:08x}')
        a(f's_add_u32 s{sFO}, s{sFO}, {64*FS}')
    weave(a, m0_ + m1_, [('at', 8)] + qfin(0))
    a('s_cmp_eq_u32 s59, 1')
    a('s_cbranch_scc1 L_pub_done')
    publish('b')
    a.label('L_pub_done')
    l0 = lqk('own', 2)
    b3_ = blk(3)
    b3_[0] = 's_waitcnt lgkmcnt(0)\n' + b3_[0]
    a(f's_lshl_b32 s60, s{sW}, 10')
    a(f's_add_u32 s60, s60, {MX_LDS}')
    a(f'v_add_u32 v3, s60, v{vDMA}')
    weave(a, m2_ + b3_ + blk(4) + blk(5) + l0 + lqk('B0', 3),
          [('at', 2)] + qfin(1) + [('at', 8)] + qfin(2) + [('at', 14)] + qfin(3) + [('at', 20)] + qfin(4) + [('at', 26)] + qfin(5)
          + [('at', 32)] + mops('own', 2))
    stamp(a, 6)
    if not OPT.get('pd'): stamp(a, 7)
    addr_setup()
    for x in mops('B0', 3): a(x)
    a(f'ds_write_b128 v3, {rng("v", vM["B0"], 4)}')
    zero_p()
    a('s_waitcnt lgkmcnt(0)')
    a('s_barrier')
    stamp(a, 8)
    for s in range(6): a(kread(vKA[0], s))
    a('s_branch L_owner')
    a.label('L_q3')
    stamp(a, 5)
    q_reads()
    pa = OPT.get('pollat', 0)
    if pa == 0: a(f64)
    l0 = lqk('own', 3)
    l0[0] = 's_waitcnt lgkmcnt(0)\ns_nop 1\n' + l0[0]
    weave(a, m0_ + m1_ + m2_, ([('at', 6), f64] if pa == 1 else []) + [('at', 8)] + qfin(0) + ([('at', 13), f64] if pa == 2 else []) + [('at', 14)] + qfin(1))
    if pa == 3: a(f64)
    a('s_nop 11')
    for x in qfin(2): a(x)
    for x in l0: a(x)
    if pa == 4: a(f64)
    stamp(a, 6)
    a('s_mov_b32 s55, 0')
    a.label('L_gw')
    a('s_waitcnt vmcnt(0)')
    a(flag_cmp())
    a('s_cmp_eq_u32 s55, 1')
    a('s_mov_b64 s[58:59], vcc')
    a('s_cbranch_scc1 L_gw1')
    a('s_cmp_lg_u32 s58, 0')
    a('s_cbranch_scc1 L_gwn')
    a.label('L_gw0')
    if OPT.get('pd'): stamp(a, 2, True)
    g_dma(0)
    a('s_mov_b32 s55, 1')
    a.label('L_gw1')
    a('s_cmp_eq_u32 s59, 0')
    a('s_cbranch_scc1 L_gw2')
    a.label('L_gwn')
    a(f64)
    a(f's_add_u32 s{sSP}, s{sSP}, 1')
    a(f's_cmp_lt_u32 s{sSP}, {SPIN_MAX:#x}')
    a('s_cbranch_scc1 L_gw')
    a('s_mov_b32 s59, 0')
    a('s_cmp_eq_u32 s55, 0')
    a('s_cbranch_scc1 L_gw0')
    a.label('L_gw2')
    if OPT.get('pd'): stamp(a, 3, True)
    g_dma(1)
    stamp(a, 7)
    addr_setup()
    for x in mops('own', 3): a(x)
    zero_p()
    a(f'v_add_u32 v2, {QX_LDS}, v{vDMA}')
    a('s_waitcnt vmcnt(24)')
    probe(a, 'b3')
    a('s_barrier')
    stamp(a, 8)
    for s in range(6): a(kread(vKA[0], s))

    def first_qk(extra, nwait):
        a(f's_waitcnt lgkmcnt({nwait})')
        weave(a, [qk_mfma('own', 0, s) for s in range(6)], extra)
        a('s_waitcnt lgkmcnt(0)')
        a('s_nop 9')
        stamp(a, 11); stamp(a, 12, True)
        if OPT['stamps']: a('s_waitcnt lgkmcnt(0)')
    vhalf = [vread(vVA[0], vVB[0], 0, ct) for ct in range(3)]
    wv = [f'ds_read_b128 {wreg(f)}, v{vDMA} offset:{(1 + f//6)*TILE + (f%6)*PC}' for f in range(18)]
    PA, PB = vS[0], vS[2]

    ex = []
    for e, t in enumerate(('B0', 'B1', 'B2')):
        ex += [f'ds_read_b128 {rng("a", aX[t]+4*s, 4)}, v2 offset:{e*6144 + 1024*s}' for s in range(6)]
        ex += [f'ds_read_b128 {rng("v", vM[t]+4*k, 4)}, v2 offset:{24576 + 1024*e}' for k in range(4)]
    for x in ex[:6]: a(x)
    first_qk(ex[6:], 6)
    gen_loop(a, True)
    stamp(a, 13); stamp(a, 14, True)
    a(f'v_add_u32 v5, {MERGE0}, v{vDMA}')
    a('v_lshlrev_b32 v2, 2, v1')
    a(f'v_add_u32 v2, {MERGE0}, v2')
    a(f's_mov_b32 s58, 0x{LO:08x}')
    a('s_waitcnt lgkmcnt(0)')
    wr = []
    for e, t in enumerate(('B0', 'B1', 'B2')):
        k, b = rO[t]
        wr += [f'ds_write_b128 v5, {rng(k, b+4*j, 4)} offset:{e*MERGE + 1024*j}' for j in range(12)]
        wr += [f'ds_write_b32 v2, v{vL[t]} offset:{e*MERGE + 12288}']
    mf = [pv_mfma('own', 3, t, ct) for t in range(2) for ct in range(3)]
    hs = half_softmax_ops(0, 'own')
    k = 0
    for n, x in enumerate(wr):
        a(x)
        if n % 6 == 1 and n // 6 < 6:
            a(mf[n // 6])
            if n // 6 < 3:
                for y in vhalf[n // 6]: a(y)
        elif k < len(hs) and n >= 3:
            a(hs[k]); k += 1
    for x in hs[k:]: a(x)
    a('s_waitcnt lgkmcnt(0)')
    probe(a, 'mg')
    a('s_barrier')
    weave(a, [pv_mfma('own', 0, 0, ct) for ct in range(3)], wv)
    for x in lsum_ops('own', 2, 'h'): a(x)
    cv = cvt_ops('own', PA)
    a('s_nop 1')
    a('v_mov_b32 v3, v2')
    for x in cv[:8]: a(x)
    a('s_waitcnt lgkmcnt(0)')
    weave(a, proj_mfmas('own', PA), cv[8:] + [('at', 8)] + fin_ops('own', 0, 2) + [('at', 14)] + fin_ops('own', 1, 2))
    a('s_nop 7')
    for x in fin_ops('own', 2, 2, pk=True) + store_ops(PB, sXo, 60) + store_ops2(PB, sXo, 60): a(x)
    stamp(a, 15)
    stamp_store(a)
    a('s_endpgm')
    a.label('L_owner')
    first_qk([], 0)
    gen_loop(a, False)
    stamp(a, 13); stamp(a, 14, True)
    a(f's_mul_i32 s60, s{sW}, {MERGE}')
    a(f's_add_u32 s60, s60, {MERGE0}')
    a(f'v_add_u32 v6, s60, v{vDMA}')
    a('v_lshlrev_b32 v7, 2, v1')
    a('v_add_u32 v7, s60, v7')
    a(f's_mov_b32 s58, 0x{LO:08x}')
    a('s_waitcnt lgkmcnt(0)')
    mf = [qk_mfma('B0', 1, s) for s in range(6)] + [pv_mfma('own', 3, t, ct) for t in range(2) for ct in range(3)]
    hs = half_softmax_ops(0, 'own')
    fill = wv[0:4] + wv[8:10] + [('at', 1)] + wv[4:8] + wv[10:12] + [('at', 2)] + wv[12:18] + [('at', 3)] + hs[:9]
    fill += [('at', 6)] + vhalf[0] + hs[9:13] + [('at', 7)] + vhalf[1] + hs[13:17] + [('at', 8)] + vhalf[2] + hs[17:]
    hb = half_softmax_ops(1, 'B0')
    fill += [('at', 9)] + hb[:10]
    weave(a, mf, fill)
    a('s_waitcnt lgkmcnt(0)')
    mf = [pv_mfma('own', 0, 0, ct) for ct in range(3)] + [pv_mfma('B0', 1, 0, ct) for ct in range(3)]
    ls = lsum_ops('own', 2, 'oo')
    weave(a, mf, hb[10:] + [('at', 3)] + ls[:7])
    for x in ls[7:]: a(x)
    cv = cvt_ops('own', PA)
    for x in cv[:8]: a(x)
    a('v_mov_b32 v3, v2')
    b = rO['B0'][1]
    TT = [56 + 4 * j for j in range(10)]
    rdm = [f'ds_read_b128 v[{TT[j]}:{TT[j]+3}], v6 offset:{1024*j}' for j in range(10)]
    f0 = fin_ops('own', 0, 2); f1 = fin_ops('own', 1, 2)
    fill = cv[8:] + [('at', 8)] + f0[:24] + [('at', 12), 's_barrier'] + f0[24:] + ['ds_read_b32 v8, v7 offset:12288'] + rdm[:1]
    fill += [('at', 13)] + rdm[1:7] + [('at', 14)] + rdm[7:] + f1
    weave(a, proj_mfmas('own', PA), fill)
    for j in (10, 11): a(f'ds_read_b128 v[{PA+4*(j-10)}:{PA+4*(j-10)+3}], v6 offset:{1024*j}')
    TT += [PA, PA + 4]
    a('s_waitcnt lgkmcnt(6)')
    a(f'v_add_f32 v{vL["B0"]}, v{vL["B0"]}, v8')
    def padd(j):
        t = TT[j]
        a(f'v_pk_add_f32 v[{b+4*j}:{b+4*j+1}], v[{b+4*j}:{b+4*j+1}], v[{t}:{t+1}]')
        a(f'v_pk_add_f32 v[{b+4*j+2}:{b+4*j+3}], v[{b+4*j+2}:{b+4*j+3}], v[{t+2}:{t+3}]')
    for j in range(10): padd(j)
    for x in fin_ops('own', 2, 2, pk=True): a(x)
    a('s_waitcnt lgkmcnt(4)')
    padd(10); padd(11)
    so = store_ops(PA, sXo, 60)
    st2 = store_ops2(PA, sXo, 60, waits=False)
    ls = lsum_ops('B0', 2, 'ob')
    for x in ls[:7] + so + ls[7:]: a(x)
    cv = cvt_ops('B0', PB)
    for x in cv[:8]: a(x)
    a('v_mov_b32 v3, v2')
    fill = cv[8:14] + [('at', 1), 's_waitcnt lgkmcnt(0)', st2[0]] + cv[14:19] + [('at', 2), st2[1]] + cv[19:]
    for k in range(4): fill += [('at', 3 + k), st2[2 + k]]
    fill += [('at', 8)] + fin_ops('B0', 0, 2) + [('at', 14)] + fin_ops('B0', 1, 2)
    weave(a, proj_mfmas('B0', PB), fill)
    a('s_nop 3')
    for x in fin_ops('B0', 2, 2, pk=True) + store_ops(PB, sXb, 60) + store_ops2(PB, sXb, 60): a(x)
    stamp(a, 15)
    stamp_store(a)
    a('s_endpgm')
    slow_path(a, 'h'); slow_path(a, 'o')
    gen_spare_vo(a)
    redo(a, 'own', 2, 'h'); redo(a, 'own', 2, 'oo'); redo(a, 'B0', 2, 'ob')

DOC = """;
"""

def build(path):
    a = Asm()
    a.raw(f'.globl {NAME}')
    a.raw('.p2align 8')
    a.raw(f'.type {NAME},@function')
    a.label(NAME)
    a(f's_cmp_ge_u32 s2, {NSP+NCONS}')
    a('s_cbranch_scc1 L_end')
    stamp(a, 0, True); stamp(a, 1)
    if OPT.get('probe'): a('s_memrealtime s[100:101]')
    a(f'''
    s_load_dwordx8 s[4:11], s[0:1], 0
    s_load_dwordx2 s[12:13], s[0:1], 32
    s_load_dwordx4 s[44:47], s[0:1], 40
    v_lshrrev_b32 v2, 6, v0
    v_and_b32 v1, 63, v0
    v_readfirstlane_b32 s{sW}, v2
    s_mov_b32 s18, {X_BYTES}
    s_mov_b32 s19, 0x20000
    s_mov_b32 s26, {WS_BYTES}
    s_mov_b32 s27, 0x20000
    s_mov_b32 s50, 256
    s_mov_b32 s51, 0x20000
    s_waitcnt lgkmcnt(0)
    s_mov_b32 s16, s4
    s_mov_b32 s17, s5
    s_mov_b32 s24, s46
    s_mov_b32 s25, s47
    s_mov_b32 s48, s44
    s_mov_b32 s49, s45
    s_cmp_lt_u32 s2, {NSP}
    s_cbranch_scc1 L_spare
    ''')
    gen_consumer(a)
    a.label('L_end')
    a('s_endpgm')
    out = HEADER
    out += f'; @launch grid=({NSP+NCONS},1,1) block=(256,1,1) lds={LDS_TOTAL}\n'
    out += DOC
    out += '.amdgcn_target "amdgcn-amd-amdhsa--gfx950"\n.text\n'
    out += a.text()
    out += '.section .rodata,"a"\n.p2align 6\n'
    out += kd(NAME, 512, 256)
    open(path, 'w').write(out)

if __name__ == '__main__':
    for o in sys.argv[2:]:
        if '=' in o:
            k, v = o.split('=')
            OPT[k] = int(v) if v.isdigit() else v.replace('+', ' ')
        else:
            OPT[o] = True
    build(sys.argv[1] if len(sys.argv) > 1 else 'k24.s')
```

```python
import sys, math, struct
from gen import Asm, f32bits, kd, HEADER, X_BYTES, CST

NAME = 'standalone__window_attn_twins__vision_kernel'
NSP, NCONS = 32, 224
OPT = dict(stamps=False, sleep=4)
PC = 1088
TILE = 6 * PC
GB = 4 * TILE
WQK_OFF = 28 * TILE
FLAG_OFF = WQK_OFF + 18432
WFLAG_OFF = FLAG_OFF + 256 * 512
WS_BYTES = WFLAG_OFF + 16 * 1024
XST = 3 * GB
QX_LDS = XST
MX_LDS = XST + 24576
WQ_LDS = XST + 49152
LK_LDS = WQ_LDS + 18432
NC_LDS = LK_LDS + 768
MERGE = 12544
MERGE0 = XST
OST = 6656
STG0 = MERGE0 + 3 * MERGE
LDS_TOTAL = NC_LDS + 256
assert STG0 + 4 * OST <= LDS_TOTAL and FLAG_OFF % 128 == 0
SPIN_MAX = 0x8000
FL = int(next((o.split('=')[1] for o in sys.argv if o.startswith('FL=')), 4))
FS = 1 << FL
WL = int(next((o.split('=')[1] for o in sys.argv if o.startswith('WL=')), 7))

vFO2 = 0; vFO = 11
vKA = [12, 13, 14, 15]; vVA = [4, 5, 6, 7]; vVB = [8, 10, 29, 30]
vDMA = 16
vL = {'own': 17, 'B0': 18, 'B1': 19, 'B2': 20}
vXO = 21; vF = 22; vZ = 24; vRB = [25, 26, 27]; vSW = 28; vHI = 9
vS = [32, 48, 64, 80]
vM = {'own': 96, 'B0': 112, 'B1': 128, 'B2': 144}
rO = {'own': ('v', 160), 'B0': ('v', 208), 'B1': ('a', 0), 'B2': ('a', 48)}
aX = {'own': 96, 'B0': 120, 'B1': 144, 'B2': 168}
aK = 192; aV = 216
sN = 4; sW = 14; sSP = 15
sCNT = 28; sT = 29; sG = [30, 31]; sDn = 33; sDp = 34; sTE = 35; sTMP = 36; sXo = 37; sXb = 38; sXB = 39; sXS = 40
sFO = 41; sD0 = 42; sK0 = 43; sU = 53; sWT = 54; sFM = 61
ST0 = 62
_used = set(range(192, 196)) | {200 + 8 * b + k for b in range(3) for k in range(3)}
DUMMY = sum(1 << (b - 192) for b in range(192, 224) if b not in _used)
LO = f32bits(2.0 ** -90); HI = f32bits(2.0 ** 90)

def rng(kind, base, n): return f'{kind}[{base}:{base+n-1}]'
def stamp(a, idx, rt=False):
    if OPT['stamps']: a(f's_mem{"real" if rt else ""}time s[{ST0+2*idx}:{ST0+1+2*idx}]')
def stamp_store(a, n=11):
    if not OPT['stamps']: return
    a('s_mov_b64 exec, -1')
    a('s_waitcnt vmcnt(0) lgkmcnt(0)')
    a(f's_memtime s[{ST0+2*(n-2)}:{ST0+1+2*(n-2)}]')
    a(f's_memrealtime s[{ST0+2*(n-1)}:{ST0+1+2*(n-1)}]')
    a('s_waitcnt lgkmcnt(0)')
    a('s_mov_b32 s26, 0x1000000')
    a('s_lshl_b32 s3, s2, 2')
    a(f's_add_u32 s3, s3, s{sW}')
    a('s_lshl_b32 s3, s3, 6')
    a('s_add_u32 s3, s3, 0x100000')
    a('v_mov_b32 v2, 0')
    for i in range(16):
        a(f'v_mov_b32 v3, s{ST0+2*i}')
        a(f'buffer_store_dword v3, v2, s[24:27], s3 offen offset:{4*i}')

def qk_mfma(tile, sbuf, s, cinit=None):
    d = rng('v', vS[sbuf], 16)
    c = d if s else (rng('v', vM[tile], 16) if cinit is None else cinit)
    return f'v_mfma_f32_32x32x16_bf16 {d}, {rng("a", aK+4*s, 4)}, {rng("a", aX[tile]+4*s, 4)}, {c}'
def pv_mfma(tile, sbuf, t, ct):
    k, b = rO[tile]
    d = rng(k, b + 16 * ct, 16)
    return f'v_mfma_f32_32x32x16_bf16 {d}, {rng("a", aV+4*(3*t+ct), 4)}, {rng("v", vS[sbuf]+8*t, 4)}, {d}'
def koff(s):
    ct, e = s >> 1, s & 1
    return 2 * PC * e + 512 * ct if ct < 2 else 4 * PC + 512 * e
def kread(reg, s):
    return f'ds_read_b128 {rng("a", aK+4*s, 4)}, v{reg} offset:{koff(s)}'
def vread(ra, rb, t, ct):
    r = aV + 4 * (3 * t + ct)
    base = (512 * ct if ct < 2 else 4 * PC) + 256 * t
    reg = ra if ct < 2 else rb
    return [f'ds_read_b64_tr_b16 a[{r+2*h}:{r+2*h+1}], v{reg} offset:{base + 128*h}' for h in range(2)]
def dma(i):
    q, p = (0, i) if i < 4 else (1, i - 4)
    return f'buffer_load_dwordx4 v{vDMA}, s[24:27], s{sG[q]} offen offset:{PC*p} sc1 lds'
def flag_load(): return f'buffer_load_dwordx2 v[{vF}:{vF+1}], v{vFO}, s[24:27], s{sFO} offen sc1'
def flag2_load(): return f'buffer_load_dwordx2 v[{vF}:{vF+1}], v{vFO2}, s[24:27], s{sFO} offen sc1'
def flag_cmp(): return f'v_cmp_ne_u64 vcc, s[{sN}:{sN+1}], v[{vF}:{vF+1}]'
def wreg(f): return rng('v', vM['own'] + 4 * f, 4) if f < 16 else rng('a', 244 + 4 * (f - 16), 4)

def spin_tail(a, lbl):
    a(f's_cbranch_vccz {lbl}_ok')
    a(f's_sleep {OPT["sleep"]}')
    a(f's_add_u32 s{sSP}, s{sSP}, 1')
    a(f's_cmp_lt_u32 s{sSP}, {SPIN_MAX:#x}')
    a(f's_cbranch_scc1 {lbl}')
    a.label(lbl + '_ok')
def nonce_spin(a, lbl):
    a.label(lbl)
    a(f'buffer_load_dwordx2 v[{vF}:{vF+1}], v{vZ}, s[48:51], 0 offen sc1')
    a('s_waitcnt vmcnt(0)')
    a(f'v_cmp_eq_u32 vcc, 0, v{vF+1}')
    spin_tail(a, lbl)
def spin(a, lbl):
    a.label(lbl)
    a(flag_load())
    a('s_waitcnt vmcnt(0)')
    a(flag_cmp())
    spin_tail(a, lbl)

def softmax_ops(tile, sbuf):
    S = vS[sbuf]; L = vL[tile]
    E = lambda i: (f'v_exp_f32 v{S+i}, v{S+i}', 2, ('E', i))
    A = lambda i: (f'v_add_f32 v{L}, v{L}, v{S+i}', 1, ('A', i))
    def C(p):
        t, j = divmod(p, 4)
        return (f'v_cvt_pk_bf16_f32 v{S+8*t+j}, v{S+2*p}, v{S+2*p+1}', 1, ('C', p))
    ops = [E(0), E(1)]
    for p in range(1, 8):
        ops += [E(2*p), A(2*p-2), E(2*p+1), A(2*p-1), C(p-1)]
    return ops + [A(14), A(15), C(7)]
def ready(op, seq):
    kind, i = op[2]
    pos = lambda tag: seq.index(tag) if tag in seq else None
    n = len(seq)
    if kind == 'A':
        p = pos(('E', i)); return p is not None and n - p >= 2
    if kind == 'C':
        for q in (2*i, 2*i+1):
            e = pos(('E', q))
            if e is None or n - e < 2 or pos(('A', q)) is None: return False
        t, j = divmod(i, 4); dst = 8*t + j
        if pos(('A', dst)) is None: return False
        if dst // 2 != i and pos(('C', dst // 2)) is None: return False
    return True
def schedule_stage(a, mfmas, shadow, mem, pre, valu, extra, carry, may_carry):
    q = list(valu) + [(t, 1, ('X', k)) for k, t in enumerate(extra)]
    cq = list(carry)
    seq = []
    ng = len(mfmas)
    total = sum(o[1] for o in q) + len(cq)
    caps = [6 - len(mem.get(g, [])) - len(pre.get(g, [])) for g in range(ng)]
    used = 0
    for g in range(ng):
        a(mfmas[g]); seq.append(None)
        if g in shadow: a(shadow[g]); seq.append(None)
        for m in pre.get(g, []) + mem.get(g, []):
            a(m); seq.append(None)
        cap = caps[g]
        while cap > 0 and cq:
            a(cq.pop(0)); seq.append(None); cap -= 1; used += 1
        rest = sum(caps[g+1:])
        while cap > 0 and q:
            remaining = sum(o[1] for o in q)
            if used >= total * (g + 1) / ng and remaining <= rest - 2 * (ng - g - 1) // 3: break
            pick = next((k for k, o in enumerate(q[:6]) if o[1] <= cap and ready(o, seq)), None)
            if pick is None: break
            o = q.pop(pick)
            a(o[0]); seq.append(o[2]); cap -= o[1]; used += o[1]
    assert not cq
    if q:
        assert may_carry and all(o[1] == 1 for o in q) and len(q) <= 6, [o[0] for o in q]
    return [o[0] for o in q]

def cost(ins): return 2 if ins.startswith(('v_exp', 'v_rcp')) else 1
def weave(a, mfmas, fill, cap=6):
    q = list(fill)
    for g, m in enumerate(mfmas):
        a(m)
        c = cap; first = True; pv = False
        while q:
            it = q[0]
            if isinstance(it, tuple):
                if it[1] > g: break
                q.pop(0); continue
            k = 0 if (it.startswith('s_') and first) else cost(it)
            if it.startswith(('ds_', 'buffer_')) and pv: break
            if k > c: break
            a(q.pop(0)); c -= k; first = False
            pv = pv or it.startswith('v_')
    for it in q:
        if not isinstance(it, tuple): a(it)

def part_writes(e):
    t = ('B0', 'B1', 'B2')[e]
    k, b = rO[t]
    return [f'ds_write_b128 v31, {rng(k, b+4*j, 4)} offset:{e*MERGE + 1024*j}' for j in range(12)] + \
           [f'ds_write_b32 v21, v{vL[t]} offset:{e*MERGE + 12288}']

def gen_loop(a, helper, last=False):
    WALL = part_writes(0) + part_writes(1) + part_writes(2)
    nm = 'h' if helper else 'o'
    B = ['B0', 'B1', 'B2'] if helper else ['B0', 'B0', 'B0']
    units = [('own', 0), (B[0], 0), ('own', 1), (B[1], 1), ('own', 2), (B[2], 2), ('own', 3)]
    sb = [0, 1, 2, 0, 1, 2, 3]
    if not last:
        a.raw('.p2align 6')
        a.label(f'L_loop_{nm}')
    kload = {0: 1, 2: 2, 4: 3, 5: 0}
    vload = {2: 1, 4: 2, 6: 3, 0: 0}
    adv = lambda r, s: f'v_add_u32 v{r}, s{s}, v{r}'
    carry = []
    for u in range(7):
        nxt, prv = (u + 1) % 7, (u - 1) % 7
        mf = [qk_mfma(units[nxt][0], sb[nxt], s) for s in range(6)]
        mf += [pv_mfma(units[prv][0], sb[prv], t, ct) for t in range(2) for ct in range(3)]
        shadow = {}; mem = {}; pre = {}; extra = []
        if u in kload:
            for s in range(6): mem.setdefault(s, []).append(kread(vKA[kload[u]], s))
        if u in vload:
            p = vload[u]
            for t in range(2):
                for ct in range(3): mem.setdefault(6 + 3*t + ct, []).extend(vread(vVA[p], vVB[p], t, ct))
        if prv in vload: shadow[5] = f's_waitcnt lgkmcnt({5 if u in kload else 0})'
        if u in kload: shadow[11] = f's_waitcnt lgkmcnt({10 if u in vload else 0})'
        if last:
            if u == 0:
                shadow[0] = f's_sub_u32 s{sD0}, s{sDn}, s{sK0}'
            if u == 1:
                extra += [adv(vVA[0], sD0), adv(vVB[0], sD0), adv(vVA[3], sDp), adv(vVB[3], sDp), adv(vKA[0], sD0),
                          f'v_add_u32 v31, {MERGE0}, v{vDMA}', 'v_lshlrev_b32 v21, 2, v1', f'v_add_u32 v21, {MERGE0}, v21']
            if u == 3:
                shadow[0] = 's_waitcnt vmcnt(0)'
                pre[0] = ['s_barrier']
                for i, g in enumerate((6, 6, 7, 7, 8, 8, 9, 9, 10, 10, 11)): mem.setdefault(g, []).append(WALL[i])
            if u == 5:
                for i, g in enumerate((6, 7, 8, 9, 10, 11)): mem.setdefault(g, []).append(WALL[11 + i])
                shadow[11] = 's_waitcnt lgkmcnt(5)'
            if u == 6:
                for i, g in enumerate((0, 2, 4)): mem.setdefault(g, []).append(WALL[17 + i])
        else:
            if u == 0:
                shadow[0] = f's_cmp_lt_u32 s{sCNT}, 5'
                shadow[1] = f's_cselect_b32 s{sTMP}, 0, s{sK0}'
                shadow[2] = f's_cselect_b32 s{sTE}, s{sT}, 0x30000'
                shadow[3] = f's_sub_u32 s{sD0}, s{sDn}, s{sTMP}'
                shadow[4] = f's_add_u32 s{sT}, s{sT}, s{sDp}'
            if u == 1:
                mem.setdefault(0, []).append(flag_load())
                extra += [adv(vKA[1], sDn), adv(vVA[0], sD0), adv(vVB[0], sD0), adv(vVA[3], sDp), adv(vVB[3], sDp), adv(vKA[0], sD0)]
            if u == 3:
                shadow[0] = 's_waitcnt vmcnt(0)'
                pre[0] = ['s_barrier']
                pre[1] = [flag_cmp()]
                shadow[2] = f's_mov_b32 m0, s{sTE}'
                shadow[3] = f's_cbranch_vccnz L_slow_{nm}\nL_back_{nm}:'
                for i, g in enumerate((4, 6, 7, 8)): mem.setdefault(g, []).append(dma(i))
                shadow[9] = f's_add_u32 m0, s{sTE}, {4*PC}'
                for i, g in enumerate((10, 11)): mem.setdefault(g, []).append(dma(4 + i))
                extra += [adv(vKA[2], sDn)]
            if u == 4:
                shadow[0] = f's_add_u32 s{sFO}, s{sFO}, {32*FS}'
                shadow[1] = f's_min_u32 s{sFO}, s{sFO}, s{sFM}'
                shadow[2] = f's_add_u32 s{sG[0]}, s{sG[0]}, {GB}'
                shadow[3] = f's_add_u32 s{sG[1]}, s{sG[1]}, {GB}'
            if u == 5:
                extra += [adv(vVA[1], sDn), adv(vVB[1], sDn), adv(vKA[3], sDn), adv(vVA[2], sDn), adv(vVB[2], sDn)]
            if u == 6:
                shadow[1] = f's_add_u32 s{sTMP}, s{sDn}, s{sDp}'
                shadow[2] = f's_mov_b32 s{sDp}, s{sDn}'
                shadow[3] = f's_sub_u32 s{sDn}, 0, s{sTMP}'
                shadow[4] = f's_add_u32 s{sCNT}, s{sCNT}, 1'
                shadow[5] = f's_cmp_lt_u32 s{sCNT}, {5 if helper else 6}'
        carry = schedule_stage(a, mf, shadow, mem, pre, softmax_ops(units[u][0], sb[u]), extra, carry, u in (0, 2, 4))
    assert not carry
    if not last: a(f's_cbranch_scc1 L_loop_{nm}')

def slow_path(a, nm):
    a.label(f'L_slow_{nm}')
    spin(a, f'L_spin_{nm}')
    a(f's_branch L_back_{nm}')

def lane_addr(a, rK, rA, rB, t0, t1):
    a(f'''
    v_lshrrev_b32 v{t0}, 5, v1
    v_mul_u32_u24 v{rK}, {PC}, v{t0}
    v_and_b32 v{t1}, 31, v1
    v_lshl_add_u32 v{rK}, v{t1}, 4, v{rK}
    v_bfe_u32 v{t1}, v1, 2, 2
    v_lshl_add_u32 v{t1}, v{t0}, 2, v{t1}
    v_lshlrev_b32 v{rB}, 4, v{t1}
    v_bfe_u32 v{t1}, v1, 1, 1
    v_lshl_add_u32 v{rB}, v{t1}, 3, v{rB}
    v_and_b32 v{t1}, 1, v1
    v_mul_u32_u24 v{t1}, {PC}, v{t1}
    v_add_u32 v{rB}, v{rB}, v{t1}
    v_bfe_u32 v{t1}, v1, 4, 1
    v_mul_u32_u24 v{t0}, {2*PC}, v{t1}
    v_add_u32 v{rA}, v{rB}, v{t0}
    v_lshl_add_u32 v{rB}, v{t1}, 9, v{rB}
    ''')

def half_softmax_ops(sbuf, tile):
    S = vS[sbuf]; L = vL[tile]
    o = [f'v_exp_f32 v{S+i}, v{S+i}' for i in range(8)]
    o += [f'v_add_f32 v{L}, v{L}, v{S+i}' for i in range(8)]
    o += [f'v_cvt_pk_bf16_f32 v{S+j}, v{S+2*j}, v{S+2*j+1}' for j in range(4)]
    return o
def lsum_ops(tile, r, tag):
    L = vL[tile]
    return [f'v_mov_b32 v{r}, v{L}', 's_nop 1', f'v_permlane32_swap_b32 v{L}, v{r}', 's_nop 0',
            f'v_add_f32 v{r}, v{L}, v{r}', f'v_med3_f32 v{r+1}, v{r}, s58, v{vHI}', f'v_cmp_neq_f32 vcc, v{r+1}, v{r}',
            f's_cbranch_vccnz L_redo_{tag}', f'L_redone_{tag}:', f'v_rcp_f32 v{r}, v{r}']
def redo(a, tile, r, tag):
    k, b = rO[tile]
    L = vL[tile]; X = aX[tile]; S = vS[2]; M = vS[3]
    sd = rng('v', S, 16)
    rK, rA, rB = 12, 13, 14
    a.label(f'L_redo_{tag}')
    a('s_waitcnt vmcnt(0) lgkmcnt(0)')
    lane_addr(a, rK, rA, rB, 4, 5)
    a(f's_mul_i32 s59, s{sW}, {OST}')
    a(f's_add_u32 s59, s59, {STG0}')
    for x in (rK, rA, rB): a(f'v_add_u32 v{x}, s59, v{x}')
    a('v_mov_b32 v4, 0xff800000')
    a('s_mov_b32 s55, 0')
    def stage():
        a('s_mov_b32 m0, s59')
        a(f's_add_u32 s57, s55, {4*PC}')
        for p in range(4): a(f'buffer_load_dwordx4 v{vDMA}, s[24:27], s55 offen offset:{PC*p} sc1 lds')
        a(f's_add_u32 m0, s59, {4*PC}')
        a('s_nop 0')
        for p in range(2): a(f'buffer_load_dwordx4 v{vDMA}, s[24:27], s57 offen offset:{PC*p} sc1 lds')
        a('s_waitcnt vmcnt(0)')
        for s in range(6): a(kread(rK, s))
    def qk(c):
        a('s_waitcnt lgkmcnt(0)')
        for s in range(6):
            a(f'v_mfma_f32_32x32x16_bf16 {sd}, {rng("a", aK+4*s, 4)}, {rng("a", X+4*s, 4)}, {c if s == 0 else sd}')
        a('s_nop 15')
    def mx(n):
        for i in range(0, n, 2): a(f'v_max3_f32 v4, v4, v{S+i}, v{S+i+1}')
    a.label(f'L_redo1_{tag}')
    stage(); qk('0')
    a(f's_cmp_eq_u32 s55, {24*TILE}')
    a(f's_cbranch_scc1 L_redo1e_{tag}')
    mx(16)
    a(f's_add_u32 s55, s55, {TILE}')
    a(f's_branch L_redo1_{tag}')
    a.label(f'L_redo1e_{tag}')
    mx(8)
    a('v_mov_b32 v5, v4')
    a('s_nop 1')
    a('v_permlane32_swap_b32 v4, v5')
    a('s_nop 0')
    a('v_max_f32 v4, v4, v5')
    for i in range(16): a(f'v_sub_f32 v{M+i}, 0, v4')
    for i in range(48): a(f'v_mov_b32 v{b+i}, 0')
    a(f'v_mov_b32 v{L}, 0')
    a('s_mov_b32 s55, 0')
    def sm(n):
        for i in range(n): a(f'v_exp_f32 v{S+i}, v{S+i}')
        a('s_nop 0')
        for i in range(n): a(f'v_add_f32 v{L}, v{L}, v{S+i}')
        for p in range(n // 2):
            t, j = divmod(p, 4)
            a(f'v_cvt_pk_bf16_f32 v{S+8*t+j}, v{S+2*p}, v{S+2*p+1}')
        a('s_nop 1')
        for t in range(n // 8):
            for ct in range(3): a(pv_mfma(tile, 2, t, ct))
    a.label(f'L_redo2_{tag}')
    stage()
    for t in range(2):
        for ct in range(3):
            for x in vread(rA, rB, t, ct): a(x)
    qk(rng('v', M, 16))
    a(f's_cmp_eq_u32 s55, {24*TILE}')
    a(f's_cbranch_scc1 L_redo2e_{tag}')
    sm(16)
    a(f's_add_u32 s55, s55, {TILE}')
    a(f's_branch L_redo2_{tag}')
    a.label(f'L_redo2e_{tag}')
    sm(8)
    a(f'v_mov_b32 v{r}, v{L}')
    a('s_nop 1')
    a(f'v_permlane32_swap_b32 v{L}, v{r}')
    a('s_nop 0')
    a(f'v_add_f32 v{r}, v{L}, v{r}')
    a('s_nop 15')
    a(f's_branch L_redone_{tag}')
def cvt_ops(tile, P):
    b = rO[tile][1]
    return [f'v_cvt_pk_bf16_f32 v{P+j}, v{b+2*j}, v{b+2*j+1}' for j in range(24)]
def proj_mfmas(tile, P):
    b = rO[tile][1]; m = []
    for cot in range(3):
        d = rng('v', b + 16 * cot, 16)
        for s in range(6):
            m.append(f'v_mfma_f32_32x32x16_bf16 {d}, {wreg(6*cot+s)}, {rng("v", P+4*s, 4)}, {"0" if s == 0 else d}')
    return m
def fin_ops(tile, cot, r, pk=False):
    o = rO[tile][1] + 16 * cot
    out = []
    for j in range(8):
        if pk:
            out.append(f'v_pk_mul_f32 v[{o+2*j}:{o+2*j+1}], v[{o+2*j}:{o+2*j+1}], v[{r}:{r+1}]')
        else:
            out += [f'v_mul_f32 v{o+2*j}, v{r}, v{o+2*j}', f'v_mul_f32 v{o+2*j+1}, v{r}, v{o+2*j+1}',
                    f'v_cvt_pk_bf16_f32 v{o+j}, v{o+2*j}, v{o+2*j+1}']
    if pk: out += [f'v_cvt_pk_bf16_f32 v{o+j}, v{o+2*j}, v{o+2*j+1}' for j in range(8)]
    return out + [f'ds_write_b64 v{vSW}, v[{o+2*i}:{o+2*i+1}] offset:{64*cot+16*i}' for i in range(4)]
def store_ops(R, soff, s2):
    return ['s_waitcnt lgkmcnt(0)'] + [f'ds_read_b128 v[{R+4*j}:{R+4*j+3}], v{vRB[j%3]} offset:{(j//3)*16*208}' for j in range(6)] + [f's_add_u32 s{s2}, s{soff}, 4096']
def store_ops2(R, soff, s2, waits=True):
    o = []
    for j in range(6):
        if waits: o.append(f's_waitcnt lgkmcnt({5-j})')
        o.append(f'buffer_store_dwordx4 v[{R+4*j}:{R+4*j+3}], v{vDMA}, s[20:23], s{soff if j < 4 else s2} offen offset:{1024*(j%4)} nt')
    return o

def code_prefetch(a):
    a('s_getpc_b64 s[58:59]')
    a.label('L_pc')
    a(f's_sub_u32 s58, s58, L_pc-{NAME}')
    a('s_subb_u32 s59, s59, 0')
    a('v_lshlrev_b32 v6, 7, v1')
    for k in range(3):
        a(f'v_min_u32 v7, L_end-{NAME}, v6')
        a('v_mov_b32 v5, s59')
        a('v_add_co_u32 v4, vcc, s58, v7')
        a('v_addc_co_u32 v5, vcc, 0, v5, vcc')
        a(f'global_load_dword a{252+k}, v[4:5], off')
        if k < 2: a('v_add_u32 v6, 0x2000, v6')

def gen_spare(a):
    a.label('L_spare')
    a(f'''
    s_cmp_gt_u32 s{sW}, 1
    s_cbranch_scc1 L_end
    s_cmp_gt_u32 s2, 27
    s_cbranch_scc1 L_end
    s_cmp_eq_u32 s2, 27
    s_cbranch_scc1 L_sp_nonce
    s_mul_i32 s28, s2, 57
    s_lshr_b32 s28, s28, 9
    s_mul_i32 s28, s28, 9
    s_sub_u32 s28, s2, s28
    s_mov_b32 s56, s8
    s_mov_b32 s57, s9
    s_mov_b32 s58, 36864
    s_mov_b32 s59, 0x20000
    v_and_b32 v3, 31, v1
    v_lshrrev_b32 v4, 5, v1
    v_mul_u32_u24 v6, 384, v3
    v_lshl_add_u32 v6, v4, 4, v6
    s_mul_i32 s29, s28, 11
    s_lshr_b32 s29, s29, 5
    s_mul_i32 s30, s29, 3
    s_sub_u32 s30, s28, s30
    s_cmp_eq_u32 s{sW}, 1
    s_cbranch_scc1 L_sp_vo
    s_mov_b32 s52, s6
    s_mov_b32 s53, s7
    s_mov_b32 s54, 18432
    s_mov_b32 s55, 0x20000
    v_mul_u32_u24 v5, 192, v3
    v_lshl_add_u32 v5, v4, 4, v5
    s_mul_i32 s31, s29, {32*192}
    s_mul_i32 s32, s30, {32*384}
    ''')
    for s in range(6):
        a(f'buffer_load_dwordx4 v[{8+4*s}:{11+4*s}], v5, s[52:55], s31 offen offset:{32*s}')
        a(f'buffer_load_dwordx4 v[{32+4*s}:{35+4*s}], v6, s[56:59], s32 offen offset:{32*s}')
    a(f'''
    v_lshlrev_b32 v7, 4, v3
    v_lshl_add_u32 v7, v4, 3, v7
    s_mul_i32 s33, s30, 6
    s_lshl_b32 s34, s29, 1
    s_add_u32 s33, s33, s34
    s_lshl_b32 s33, s33, 10
    s_add_u32 s33, s33, {WQK_OFF}
    s_mov_b32 s35, 0x{f32bits(CST):08x}
    s_lshl_b32 s36, s28, {WL}
    s_add_u32 s36, s36, {WFLAG_OFF}
    ''')
    for s in range(6):
        a(f's_waitcnt vmcnt({10-2*s})')
        a(f'v_mfma_f32_32x32x16_bf16 v[64:79], v[{8+4*s}:{11+4*s}], v[{32+4*s}:{35+4*s}], {"0" if s == 0 else "v[64:79]"}')
    a('s_nop 15')
    for r in range(16): a(f'v_mul_f32 v{64+r}, s35, v{64+r}')
    for r in range(8): a(f'v_cvt_pk_bf16_f32 v{80+r}, v{64+2*r}, v{65+2*r}')
    for i in range(4):
        a(f'buffer_store_dwordx2 v[{80+2*i}:{81+2*i}], v7, s[24:27], s33 offen offset:{(i>>1)*1024 + (i&1)*512} sc1')
    a.label('L_sp_flag')
    a(f'''
    v_mov_b32 v{vZ}, 0
    s_mov_b32 s{sSP}, 0
    ''')
    nonce_spin(a, 'L_sp_n')
    a(f'''
    s_mov_b64 exec, 1
    buffer_store_dwordx2 v[{vF}:{vF+1}], v{vZ}, s[24:27], s36 offen sc1
    s_endpgm
    ''')
    a.label('L_sp_nonce')
    a(f'''
    s_cmp_lg_u32 s{sW}, 0
    s_cbranch_scc1 L_end
    s_memrealtime s[28:29]
    v_mov_b32 v4, 0
    s_waitcnt lgkmcnt(0)
    s_or_b32 s29, s29, 0x40000000
    v_mov_b32 v2, s28
    v_mov_b32 v3, s29
    s_mov_b64 exec, 1
    buffer_store_dwordx2 v[2:3], v4, s[48:51], 0 offen sc1
    s_mov_b32 exec_lo, 0x{DUMMY & 0xffffffff:08x}
    s_mov_b32 exec_hi, 0
    v_lshlrev_b32 v4, {FL}, v1
    s_mov_b32 s30, {FLAG_OFF + 192*FS}
    buffer_store_dwordx2 v[2:3], v4, s[24:27], s30 offen sc1
    s_endpgm
    ''')
def gen_spare_vo(a):
    a.label('L_sp_vo')
    a(f'''
    s_cmp_gt_u32 s2, 8
    s_cbranch_scc1 L_end
    s_mov_b32 s20, s10
    s_mov_b32 s21, s11
    s_mov_b32 s22, 18432
    s_mov_b32 s23, 0x20000
    v_lshlrev_b32 v7, 4, v1
    v_lshrrev_b32 v56, 2, v1
    v_and_b32 v57, 3, v1
    v_mul_u32_u24 v56, 192, v56
    v_lshl_add_u32 v56, v57, 4, v56
    s_lshl_b32 s31, s30, 6
    s_mov_b32 s34, 0
    ''')
    for p in range(6):
        a('s_mov_b32 m0, s34')
        a('s_add_u32 s34, s34, 1024')
        a('buffer_load_dwordx4 v56, s[20:23], s31 offen lds')
        a(f's_add_u32 s31, s31, {16*192}')
    a(f's_mul_i32 s32, s29, {32*384}')
    for s in range(6):
        a(f'buffer_load_dwordx4 v[{8+4*s}:{11+4*s}], v6, s[56:59], s32 offen offset:{192+32*s}')
    a(f'''
    v_bfe_u32 v56, v1, 2, 2
    v_lshl_add_u32 v56, v4, 3, v56
    v_lshlrev_b32 v56, 6, v56
    v_bfe_u32 v58, v1, 4, 1
    v_lshl_add_u32 v56, v58, 5, v56
    v_lshl_add_u32 v56, v57, 3, v56
    s_mul_i32 s33, s30, {TILE}
    s_mul_i32 s34, s29, {2*PC}
    s_add_u32 s33, s33, s34
    s_add_u32 s33, s33, {25*TILE}
    s_lshl_b32 s36, s30, 3
    s_add_u32 s36, s36, s29
    s_add_u32 s36, s36, 200
    s_lshl_b32 s36, s36, {FL}
    s_add_u32 s36, s36, {FLAG_OFF}
    s_waitcnt vmcnt(6)
    ''')
    for s in range(6):
        for half in range(2):
            a(f'ds_read_b64_tr_b16 v[{32+4*s+2*half}:{33+4*s+2*half}], v56 offset:{s*1024 + half*256}')
    a('s_waitcnt vmcnt(0) lgkmcnt(0)')
    for s in range(6):
        a(f'v_mfma_f32_32x32x16_bf16 v[64:79], v[{8+4*s}:{11+4*s}], v[{32+4*s}:{35+4*s}], {"0" if s == 0 else "v[64:79]"}')
    a('s_nop 15')
    for r in range(8): a(f'v_cvt_pk_bf16_f32 v{80+r}, v{64+2*r}, v{65+2*r}')
    for k in range(2):
        a(f'buffer_store_dwordx4 v[{80+4*k}:{83+4*k}], v7, s[24:27], s33 offen offset:{PC*k} sc1')
    a('s_branch L_sp_flag')

def gen_consumer(a):
    a(f'''
    s_sub_u32 s3, s2, {NSP}
    v_lshlrev_b32 v{vDMA}, 4, v1
    s_lshr_b32 s55, s3, 3
    s_and_b32 s56, s3, 7
    s_mul_i32 s{sXB}, s55, 344064
    s_mul_i32 s57, s56, 6144
    s_mov_b32 s{sXS}, 43008
    s_cmp_eq_u32 s56, 7
    s_cselect_b32 s57, {7*43008}, s57
    s_cselect_b32 s{sXS}, 6144, s{sXS}
    s_add_u32 s{sXB}, s{sXB}, s57
    s_cmp_eq_u32 s{sW}, 3
    s_cbranch_scc1 L_x_w3
    s_mul_i32 s57, s{sW}, 3
    s_mul_i32 s58, s57, 6144
    s_mul_i32 s57, s57, s{sXS}
    s_add_u32 s57, s57, s{sXB}
    s_add_u32 s58, s58, {XST}
    s_mov_b32 m0, s58
    s_add_u32 s59, s57, 4096
    ''')
    for t in range(3):
        for p in range(4): a(f'buffer_load_dwordx4 v{vDMA}, s[16:19], s57 offen offset:{1024*p} nt lds')
        a(f's_add_u32 m0, s58, {6144*t + 4096}')
        a(f's_add_u32 s57, s57, s{sXS}')
        for p in range(2): a(f'buffer_load_dwordx4 v{vDMA}, s[16:19], s59 offen offset:{1024*p} nt lds')
        if t < 2:
            a(f's_add_u32 m0, s58, {6144*(t+1)}')
            a(f's_add_u32 s59, s59, s{sXS}')
        if t == 1:
            a(f's_cmp_eq_u32 s{sW}, 2')
            a('s_cbranch_scc1 L_cons2')
    a('s_branch L_cons2')
    gen_spare(a)
    a.label('L_x_w3')
    code_prefetch(a)
    a(f'v_mov_b32 v2, {NC_LDS}')
    for i in range(4): a(f'v_mov_b32 v{4+i}, 0')
    a('ds_write_b128 v2, v[4:7]')
    a('s_waitcnt lgkmcnt(0)')
    a.label('L_cons2')
    a('s_barrier')
    a(f'''
    s_mul_i32 s{sU}, s55, 7
    s_add_u32 s{sU}, s{sU}, s56
    s_mul_i32 s{sWT}, s{sW}, {TILE}
    v_mov_b32 v{vZ}, 0
    v_mov_b32 v2, {NC_LDS}
    s_mov_b32 s{sSP}, 0
    v_and_b32 v3, 31, v1
    v_lshrrev_b32 v4, 5, v1
    v_mul_u32_u24 v{vXO}, 192, v3
    v_lshl_add_u32 v{vXO}, v4, 4, v{vXO}
    s_mul_i32 s{sXo}, s{sW}, s{sXS}
    s_add_u32 s{sXo}, s{sXo}, s{sXB}
    s_lshl_b32 s57, s{sXS}, 2
    s_add_u32 s{sXb}, s{sXo}, s57
    s_mov_b32 s20, s12
    s_mov_b32 s21, s13
    s_mov_b32 s22, {X_BYTES}
    s_mov_b32 s23, 0x20000
    buffer_load_dword a240, v{vZ}, s[20:23], s{sXo} offen
    buffer_load_dword a241, v{vZ}, s[20:23], s{sXb} offen
    s_mov_b32 s{sCNT}, 0
    s_add_u32 s{sT}, s{sWT}, {2*GB}
    s_add_u32 s{sG[0]}, s{sWT}, {2*GB}
    s_add_u32 s{sG[1]}, s{sWT}, {2*GB + 4*PC}
    s_mov_b32 s{sDn}, {GB}
    s_mov_b32 s{sDp}, {(-2*GB) & 0xffffffff}
    s_lshl_b32 s{sFM}, s{sW}, {FL+3}
    s_add_u32 s{sFM}, s{sFM}, {FLAG_OFF + 192*FS}
    s_sub_u32 s{sFO}, s{sFM}, {192*FS}
    s_mul_i32 s57, s{sW}, {OST}
    s_add_u32 s57, s57, {STG0}
    v_mul_u32_u24 v{vSW}, 208, v3
    v_lshl_add_u32 v{vSW}, v4, 3, v{vSW}
    v_add_u32 v{vSW}, s57, v{vSW}
    ''')
    for j in range(3):
        a(f'v_add_u32 v5, {64*j}, v1')
        a('v_mul_u32_u24 v6, 171, v5')
        a('v_lshrrev_b32 v6, 11, v6')
        a('v_add_u32 v5, v5, v6')
        a('v_lshlrev_b32 v5, 4, v5')
        a(f'v_add_u32 v{vRB[j]}, s57, v5')
    a(f'''
    v_lshrrev_b32 v9, 4, v1
    v_and_b32 v10, 15, v1
    v_lshrrev_b32 v6, 2, v10
    v_lshl_add_u32 v6, v9, 3, v6
    v_mul_u32_u24 v5, 192, v6
    v_and_b32 v8, 3, v1
    v_lshl_add_u32 v5, v8, 3, v5
    s_lshl_b32 s57, s{sW}, 6
    s_add_u32 s57, s57, {XST}
    v_add_u32 v5, s57, v5
    v_cmp_eq_u32 vcc, v9, v10
    v_mov_b32 v6, 0x3f803f80
    v_lshlrev_b32 v8, 4, v8
    v_cndmask_b32 v{vS[3]}, 0, v6, vcc
    v_cndmask_b32 v{vS[3]+1}, 0, v6, vcc
    v_cndmask_b32 v{vS[3]+2}, 0, v6, vcc
    v_cndmask_b32 v{vS[3]+3}, 0, v6, vcc
    v_lshl_add_u32 v8, v4, 6, v8
    v_add_u32 v8, {LK_LDS}, v8
    v_and_b32 v3, 1, v9
    v_lshrrev_b32 v7, 1, v9
    v_lshlrev_b32 v29, 4, v10
    v_lshl_add_u32 v29, v7, 3, v29
    v_mul_u32_u24 v6, {PC}, v3
    v_add_u32 v6, v6, v29
    v_lshl_add_u32 v29, v3, 6, v29
    s_lshl_b32 s57, s{sW}, 8
    s_add_u32 s57, s57, {LK_LDS}
    v_add_u32 v29, s57, v29
    s_lshr_b32 s57, s{sU}, 3
    s_mul_i32 s57, s57, {TILE}
    s_and_b32 s58, s{sU}, 7
    s_lshl_b32 s58, s58, 6
    s_add_u32 s59, s57, s58
    s_lshl_b32 s58, s{sW}, 9
    s_mov_b32 s60, {2*PC}
    s_cmp_eq_u32 s{sW}, 2
    s_cselect_b32 s58, {4*PC}, s58
    s_cselect_b32 s60, 512, s60
    s_add_u32 s59, s59, s58
    s_add_u32 s57, s59, s60
    s_mul_i32 s58, s{sW}, 6144
    s_add_u32 s58, s58, {XST}
    v_add_u32 v30, s58, v{vXO}
    v_add_u32 v31, s58, v{vDMA}
    v_and_b32 v{vFO}, 7, v1
    v_lshlrev_b32 v{vFO}, {FL}, v{vFO}
    v_mov_b32 v3, 1
    ''')
    for t in vL: a(f'v_mov_b32 v{vL[t]}, 0')
    for t in ('own', 'B0'):
        for i in range(48): a(f'v_mov_b32 v{rO[t][1]+i}, 0')
    def xfrags(n):
        for s in range(6): a(f'ds_read_b128 {rng("a", aX["B1"]+4*s, 4)}, v30 offset:{32*s}')
        if n > 1:
            for s in range(6): a(f'ds_read_b128 {rng("a", aX["B2"]+4*s, 4)}, v30 offset:{4*6144+32*s}')
    a(f's_cmp_eq_u32 s{sW}, 3')
    a('s_cbranch_scc1 L_w3')
    a(f'buffer_load_dwordx2 v[{vF}:{vF+1}], v{vZ}, s[48:51], 0 offen sc1')
    stamp(a, 2)
    a('s_waitcnt vmcnt(3)')
    a('s_mov_b64 exec, 1')
    a('ds_add_u32 v2, v3')
    a('s_mov_b64 exec, -1')
    a.label('L_xw')
    a('ds_read_b32 v4, v2')
    a('s_waitcnt lgkmcnt(0)')
    a('v_cmp_ne_u32 vcc, 3, v4')
    a('s_cbranch_vccnz L_xw')
    stamp(a, 3)
    F = vM['own']
    def trr(row):
        for c in range(2):
            for half in range(2):
                d = F + (row * 2 + c) * 4 + 2 * half
                a(f'ds_read_b64_tr_b16 v[{d}:{d+1}], v5 offset:{row*6144 + half*768 + c*32}')
    IND = rng('v', vS[3], 4)
    D = vS[0]
    for row in range(3): trr(row)
    for row in range(8):
        a(f's_waitcnt lgkmcnt({4*min(2, 7-row)})')
        for c in range(2):
            f = rng('v', F + (row * 2 + c) * 4, 4)
            d1 = rng('v', D + 8 * (row & 1) + 4 * c, 4)
            a(f'v_mfma_f32_16x16x32_bf16 {d1}, {f}, {IND}, {"0" if row < 2 else d1}')
        if row + 3 < 8: trr(row + 3)
    a('s_mov_b32 s60, 0x3c800000')
    a('v_cmp_gt_u32 vcc, 4, v10')
    xfrags(2)
    for r in range(8): a(f'v_add_f32 v{D+r}, v{D+r}, v{D+8+r}')
    for r in range(8): a(f'v_mul_f32 v{D+r}, s60, v{D+r}')
    for r in range(4): a(f'v_cvt_pk_bf16_f32 v{D+16+r}, v{D+2*r}, v{D+2*r+1}')
    a('s_cmp_eq_u32 s56, 7')
    a('s_mov_b64 exec, vcc')
    a('s_cbranch_scc1 L_nostore')
    a(f'buffer_store_dwordx2 v[{D+16}:{D+17}], v6, s[24:27], s59 offen sc1')
    a(f'buffer_store_dwordx2 v[{D+18}:{D+19}], v6, s[24:27], s57 offen sc1')
    a.label('L_nostore')
    for c in range(2): a(f'ds_write_b64 v29, v[{D+16+2*c}:{D+17+2*c}] offset:{128*c}')
    a('s_mov_b64 exec, -1')
    stamp(a, 4)
    a('s_cbranch_scc1 L_nw0')
    a('s_waitcnt vmcnt(2)')
    a('s_branch L_nw1')
    a.label('L_nw0')
    a('s_waitcnt vmcnt(0)')
    a.label('L_nw1')
    a(f'v_cmp_eq_u32 vcc, 0, v{vF+1}')
    a('s_cbranch_vccz L_nonce_ok')
    nonce_spin(a, 'L_nonce')
    a(f'v_readfirstlane_b32 s{sN}, v{vF}')
    a(f'v_readfirstlane_b32 s{sN+1}, v{vF+1}')

    def g_dma(g):
        for q in range(6):
            a(f's_mov_b32 s60, {g*GB + q*4*PC}')
            a('s_mov_b32 m0, s60')
            a('s_nop 0')
            for p in range(4): a(f'buffer_load_dwordx4 v{vDMA}, s[24:27], s60 offen offset:{PC*p} sc1 lds')
    def publish(tag):
        a(f'''
        s_lshl_b32 s60, s{sU}, {FL}
        s_add_u32 s60, s60, {FLAG_OFF}
        v_mov_b32 v6, s{sN}
        v_mov_b32 v7, s{sN+1}
        s_waitcnt vmcnt(0)
        s_mov_b64 exec, 1
        ds_add_rtn_u32 v5, v2, v3 offset:12
        s_waitcnt lgkmcnt(0)
        v_cmp_eq_u32 vcc, 2, v5
        s_cmp_eq_u32 s56, 7
        s_cbranch_scc1 L_noflag{tag}
        s_cbranch_vccz L_noflag{tag}
        buffer_store_dwordx2 v[6:7], v{vZ}, s[24:27], s60 offen sc1
        ''')
        a.label(f'L_noflag{tag}')
        a('s_mov_b64 exec, -1')
        a('s_mov_b32 s59, 1')
    def ready_poll(lbl, n):
        a('s_mov_b32 s57, 0')
        a.label(lbl)
        a('ds_read2_b32 v[4:5], v2 offset0:1 offset1:2')
        a('s_waitcnt lgkmcnt(0)')
        a('v_add_u32 v4, v4, v5')
        a('v_cmp_ne_u32 vcc, 4, v4')
        a('s_cbranch_vccz L_q')
        a('s_add_u32 s57, s57, 1')
        a(f's_cmp_lt_u32 s57, {n}')
        a(f's_cbranch_scc1 {lbl}')
    a(f'''
    s_waitcnt lgkmcnt(0)
    s_mov_b64 exec, 1
    ds_add_u32 v2, v3 offset:4
    s_mov_b64 exec, -1
    s_mov_b32 s59, 0
    s_mov_b32 s55, 0
    ''')
    ready_poll('L_pq', 5)
    publish('a')
    a.label('L_pw')
    ready_poll('L_pw1', 64)
    a('s_branch L_pw')
    a.label('L_w3')
    for i in range(96): a(f'v_accvgpr_write_b32 a{i}, 0')
    stamp(a, 2)
    a('v_min_u32 v4, 8, v1')
    a(f'v_lshlrev_b32 v4, {WL}, v4')
    a(f's_mov_b32 s57, {WFLAG_OFF}')
    a.label('L_wq')
    a(f'buffer_load_dwordx2 v[6:7], v{vZ}, s[48:51], 0 offen sc1')
    a(f'buffer_load_dwordx2 v[{vF}:{vF+1}], v4, s[24:27], s57 offen sc1')
    a('s_waitcnt vmcnt(0)')
    a('v_cmp_eq_u32 s[58:59], 0, v7')
    a(f'v_cmp_ne_u64 vcc, v[6:7], v[{vF}:{vF+1}]')
    a('s_or_b64 vcc, vcc, s[58:59]')
    spin_tail(a, 'L_wq')
    a(f'v_readfirstlane_b32 s{sN}, v6')
    a(f'v_readfirstlane_b32 s{sN+1}, v7')
    stamp(a, 3)
    a(f's_mov_b32 s57, {WQK_OFF}')
    a(f's_mov_b32 s58, {WQ_LDS}')
    for q in range(5):
        a('s_mov_b32 m0, s58')
        a('s_add_u32 s58, s58, 4096')
        for p in range(4 if q < 4 else 2): a(f'buffer_load_dwordx4 v{vDMA}, s[24:27], s57 offen offset:{1024*p} sc1 lds')
        a('s_add_u32 s57, s57, 4096')
    stamp(a, 4, True)
    a.label('L_w3x')
    a('ds_read_b32 v4, v2')
    a('s_waitcnt lgkmcnt(0)')
    a('v_cmp_ne_u32 vcc, 3, v4')
    a('s_cbranch_vccnz L_w3x')
    xfrags(1)
    a('s_waitcnt vmcnt(0) lgkmcnt(0)')
    a('ds_write_b32 v2, v3 offset:8')
    a(f'v_lshlrev_b32 v{vFO2}, {FL}, v1')
    a(f's_mov_b32 s57, {FLAG_OFF}')
    f64 = f'buffer_load_dwordx2 v[{vF}:{vF+1}], v{vFO2}, s[24:27], s57 offen sc1'
    a.label('L_w3p')
    a('ds_read_b32 v4, v2 offset:4')
    a('s_waitcnt lgkmcnt(0)')
    a('v_cmp_ne_u32 vcc, 3, v4')
    a('s_cbranch_vccnz L_w3p')
    a('s_branch L_q3')
    a.label('L_q')
    stamp(a, 5)
    def q_reads():
        a(f'v_add_u32 v4, {WQ_LDS}, v{vDMA}')
        for f in range(18): a(f'ds_read_b128 {wreg(f)}, v4 offset:{1024*f}')
        for s in range(6): a(f'ds_read_b128 {rng("a", aV+4*s, 4)}, v8 offset:{128*s}')
    q_reads()
    blocks = [(ti, ct) for ti in range(2) for ct in range(3)]
    def qfin(n):
        ti, ct = blocks[n]; S = vS[n % 4]; X = aX['own' if ti == 0 else 'B0'] + 8 * ct
        out = [f'v_cvt_pk_bf16_f32 v{S+j}, v{S+2*j}, v{S+2*j+1}' for j in range(8)]
        out += [f'v_accvgpr_write_b32 a{X+j}, v{S+j}' for j in range(8)]
        if ti == 1: out += [f'ds_write_b128 v31, v[{S+4*k}:{S+4*k+3}] offset:{(2*ct+k)*1024}' for k in range(2)]
        return out
    def blk(n):
        ti, ct = blocks[n]; d = rng('v', vS[n % 4], 16); X = aX['B1' if ti == 0 else 'B2']
        return [f'v_mfma_f32_32x32x16_bf16 {d}, {wreg(6*ct+s)}, {rng("a", X+4*s, 4)}, {"0" if s == 0 else d}' for s in range(6)]
    def lqk(t, sbuf):
        d = rng('v', vS[sbuf], 16)
        return [f'v_mfma_f32_32x32x16_bf16 {d}, {rng("a", aV+4*s, 4)}, {rng("a", aX[t]+4*s, 4)}, {"0" if s == 0 else d}' for s in range(6)]
    def mops(t, sbuf):
        S = vS[sbuf]
        return [f'v_max3_f32 v9, v{S}, v{S+1}, v{S+2}', f'v_max_f32 v9, v9, v{S+3}'] + [f'v_sub_f32 v{vM[t]+i}, 0, v9' for i in range(16)]
    m0_, m1_, m2_ = blk(0), blk(1), blk(2)
    m0_[0] = 's_waitcnt lgkmcnt(15)\n' + m0_[0]
    m1_[0] = 's_waitcnt lgkmcnt(12)\n' + m1_[0]
    m2_[0] = 's_waitcnt lgkmcnt(6)\n' + m2_[0]
    def addr_setup():
        lane_addr(a, vKA[3], vVA[3], vVB[3], 21, 31)
        for i in range(4):
            a(f's_add_u32 s60, s{sW}, {1+i}')
            a('s_and_b32 s60, s60, 3')
            a(f's_mul_i32 s60, s60, {TILE}')
            if i == 0: a(f's_mov_b32 s{sK0}, s60')
            a(f'v_add_u32 v{vKA[i]}, s60, v{vKA[3]}')
            if i == 3: a(f's_add_u32 s60, s60, {2*GB}')
            a(f'v_add_u32 v{vVA[i]}, s60, v{vVA[3]}')
            a(f'v_add_u32 v{vVB[i]}, s60, v{vVB[3]}')
        for i in range(24): a(f'v_accvgpr_write_b32 a{aV+i}, 0')
    def zero_p():
        for i in range(4):
            a(f'v_mov_b32 v{vS[3]+i}, 0')
            a(f'v_mov_b32 v{vS[3]+8+i}, 0')
        a(f'v_mov_b32 v{vHI}, 0x{HI:08x}')
        a(f's_add_u32 s{sFO}, s{sFO}, {64*FS}')
    weave(a, m0_ + m1_, [('at', 8)] + qfin(0))
    a('s_cmp_eq_u32 s59, 1')
    a('s_cbranch_scc1 L_pub_done')
    publish('b')
    a.label('L_pub_done')
    l0 = lqk('own', 2)
    b3_ = blk(3)
    b3_[0] = 's_waitcnt lgkmcnt(0)\n' + b3_[0]
    a(f's_lshl_b32 s60, s{sW}, 10')
    a(f's_add_u32 s60, s60, {MX_LDS}')
    a(f'v_add_u32 v3, s60, v{vDMA}')
    weave(a, m2_ + b3_ + blk(4) + blk(5) + l0 + lqk('B0', 3),
          [('at', 2)] + qfin(1) + [('at', 8)] + qfin(2) + [('at', 14)] + qfin(3) + [('at', 20)] + qfin(4) + [('at', 26)] + qfin(5)
          + [('at', 32)] + mops('own', 2))
    stamp(a, 6); stamp(a, 7)
    addr_setup()
    for x in mops('B0', 3): a(x)
    a(f'ds_write_b128 v3, {rng("v", vM["B0"], 4)}')
    zero_p()
    a('s_waitcnt lgkmcnt(0)')
    a('s_barrier')
    stamp(a, 8)
    for s in range(6): a(kread(vKA[0], s))
    a('s_branch L_owner')
    a.label('L_q3')
    stamp(a, 5)
    q_reads()
    pa = OPT.get('pollat', 0)
    if pa == 0: a(f64)
    l0 = lqk('own', 3)
    l0[0] = 's_waitcnt lgkmcnt(0)\ns_nop 1\n' + l0[0]
    weave(a, m0_ + m1_ + m2_, ([('at', 6), f64] if pa == 1 else []) + [('at', 8)] + qfin(0) + ([('at', 13), f64] if pa == 2 else []) + [('at', 14)] + qfin(1))
    if pa == 3: a(f64)
    a('s_nop 11')
    for x in qfin(2): a(x)
    for x in l0: a(x)
    if pa == 4: a(f64)
    stamp(a, 6)
    a('s_mov_b32 s55, 0')
    a.label('L_gw')
    a('s_waitcnt vmcnt(0)')
    a(flag_cmp())
    a('s_cmp_eq_u32 s55, 1')
    a('s_mov_b64 s[58:59], vcc')
    a('s_cbranch_scc1 L_gw1')
    a('s_cmp_lg_u32 s58, 0')
    a('s_cbranch_scc1 L_gwn')
    a.label('L_gw0')
    g_dma(0)
    a('s_mov_b32 s55, 1')
    a.label('L_gw1')
    a('s_cmp_eq_u32 s59, 0')
    a('s_cbranch_scc1 L_gw2')
    a.label('L_gwn')
    a(f64)
    a(f's_add_u32 s{sSP}, s{sSP}, 1')
    a(f's_cmp_lt_u32 s{sSP}, {SPIN_MAX:#x}')
    a('s_cbranch_scc1 L_gw')
    a('s_mov_b32 s59, 0')
    a('s_cmp_eq_u32 s55, 0')
    a('s_cbranch_scc1 L_gw0')
    a.label('L_gw2')
    g_dma(1)
    stamp(a, 7)
    addr_setup()
    for x in mops('own', 3): a(x)
    zero_p()
    a(f'v_add_u32 v2, {QX_LDS}, v{vDMA}')
    a('s_waitcnt vmcnt(24)')
    a('s_barrier')
    stamp(a, 8)
    for s in range(6): a(kread(vKA[0], s))

    def first_qk(extra, nwait):
        a(f's_waitcnt lgkmcnt({nwait})')
        weave(a, [qk_mfma('own', 0, s) for s in range(6)], extra)
        a('s_waitcnt lgkmcnt(0)')
        a('s_nop 9')
        stamp(a, 11); stamp(a, 12, True)
        if OPT['stamps']: a('s_waitcnt lgkmcnt(0)')
    vhalf = [vread(vVA[0], vVB[0], 0, ct) for ct in range(3)]
    wv = [f'ds_read_b128 {wreg(f)}, v{vDMA} offset:{(1 + f//6)*TILE + (f%6)*PC}' for f in range(18)]
    PA, PB = vS[0], vS[2]

    ex = []
    for e, t in enumerate(('B0', 'B1', 'B2')):
        ex += [f'ds_read_b128 {rng("a", aX[t]+4*s, 4)}, v2 offset:{e*6144 + 1024*s}' for s in range(6)]
        ex += [f'ds_read_b128 {rng("v", vM[t]+4*k, 4)}, v2 offset:{24576 + 1024*e}' for k in range(4)]
    for x in ex[:6]: a(x)
    first_qk(ex[6:], 6)
    gen_loop(a, True)
    gen_loop(a, True, last=True)
    stamp(a, 13); stamp(a, 14, True)
    a(f's_mov_b32 s58, 0x{LO:08x}')
    wr = (part_writes(0) + part_writes(1) + part_writes(2))[20:]
    mf = [pv_mfma('own', 3, t, ct) for t in range(2) for ct in range(3)]
    hs = half_softmax_ops(0, 'own')
    for x in wr[:6]: a(x)
    a('s_waitcnt lgkmcnt(6)')
    fill = []
    for g in range(6):
        fill += [('at', g)] + (vhalf[g] if g < 3 else []) + (wr[6+3*(g-1):6+3*g] if g >= 1 else [])
    weave(a, mf, fill)
    a('s_waitcnt lgkmcnt(0)')
    if OPT.get('epi'): stamp(a, 2)
    a('s_barrier')
    if OPT.get('epi'): stamp(a, 3)
    for x in wv[:12] + hs: a(x)
    a('s_nop 1')
    weave(a, [pv_mfma('own', 0, 0, ct) for ct in range(3)], wv[12:])
    for x in lsum_ops('own', 2, 'h'): a(x)
    cv = cvt_ops('own', PA)
    a('s_nop 1')
    a('v_mov_b32 v3, v2')
    for x in cv[:8]: a(x)
    a('s_waitcnt lgkmcnt(0)')
    weave(a, proj_mfmas('own', PA), cv[8:] + [('at', 8)] + fin_ops('own', 0, 2) + [('at', 14)] + fin_ops('own', 1, 2))
    a('s_nop 7')
    for x in fin_ops('own', 2, 2, pk=True) + store_ops(PB, sXo, 60) + store_ops2(PB, sXo, 60): a(x)
    stamp(a, 15)
    stamp_store(a)
    a('s_endpgm')
    a.label('L_owner')
    first_qk([], 0)
    gen_loop(a, False)
    stamp(a, 13); stamp(a, 14, True)
    a(f's_mul_i32 s60, s{sW}, {MERGE}')
    a(f's_add_u32 s60, s60, {MERGE0}')
    a(f'v_add_u32 v6, s60, v{vDMA}')
    a('v_lshlrev_b32 v7, 2, v1')
    a('v_add_u32 v7, s60, v7')
    a(f's_mov_b32 s58, 0x{LO:08x}')
    a('s_waitcnt lgkmcnt(0)')
    mf = [qk_mfma('B0', 1, s) for s in range(6)] + [pv_mfma('own', 3, t, ct) for t in range(2) for ct in range(3)]
    hs = half_softmax_ops(0, 'own')
    fill = wv[0:4] + wv[8:10] + [('at', 1)] + wv[4:8] + wv[10:12] + [('at', 2)] + wv[12:18] + [('at', 3)] + hs[:9]
    fill += [('at', 6)] + vhalf[0] + hs[9:13] + [('at', 7)] + vhalf[1] + hs[13:17] + [('at', 8)] + vhalf[2] + hs[17:]
    hb = half_softmax_ops(1, 'B0')
    fill += [('at', 9)] + hb[:10]
    weave(a, mf, fill)
    a('s_waitcnt lgkmcnt(0)')
    mf = [pv_mfma('own', 0, 0, ct) for ct in range(3)] + [pv_mfma('B0', 1, 0, ct) for ct in range(3)]
    ls = lsum_ops('own', 2, 'oo')
    weave(a, mf, hb[10:] + [('at', 3)] + ls[:7])
    for x in ls[7:]: a(x)
    cv = cvt_ops('own', PA)
    for x in cv[:8]: a(x)
    a('v_mov_b32 v3, v2')
    if OPT.get('epi'): stamp(a, 2)
    a('v_mov_b32 v10, v2')
    b = rO['B0'][1]
    TT = [56 + 4 * j for j in range(10)]
    rdm = lambda j: f'ds_read_b128 v[{TT[j%10]}:{TT[j%10]+3}], v6 offset:{1024*j}'
    adds = lambda j: [f'v_add_f32 v{b+4*j+i}, v{b+4*j+i}, v{TT[j%10]+i}' for i in range(4)]
    fill = ['s_barrier'] + ([f's_memtime s[{ST0+6}:{ST0+7}]'] if OPT.get('epi') else []) + ['ds_read_b32 v8, v7 offset:12288', rdm(0), rdm(1)] + cv[8:11]
    fill += [('at', 1), rdm(2), rdm(3)] + cv[11:15] + [('at', 2), rdm(4), rdm(5)] + cv[15:19] + [('at', 3), rdm(6)] + cv[19:]
    fill += [('at', 4), rdm(7), rdm(8), rdm(9)]
    fill += [('at', 5), 's_waitcnt lgkmcnt(8)'] + adds(0) + adds(1)[:2]
    fill += [('at', 6), rdm(10)] + adds(1)[2:] + [f'v_add_f32 v{vL["B0"]}, v{vL["B0"]}, v8']
    fill += [('at', 7), 's_waitcnt lgkmcnt(1)', rdm(11)]
    for j in range(2, 10): fill += adds(j)
    fill += ['s_waitcnt lgkmcnt(0)'] + adds(10) + adds(11)
    ls = lsum_ops('B0', 2, 'ob')
    f0 = fin_ops('own', 0, 10)
    fill += ls[:7] + f0[:12]
    weave(a, proj_mfmas('own', PA), fill)
    if OPT.get('epi'): stamp(a, 4)
    for x in ls[7:]: a(x)
    cv = cvt_ops('B0', PB)
    for x in cv[:8]: a(x)
    a('v_mov_b32 v3, v2')
    so = store_ops(PA, sXo, 60)
    st2 = store_ops2(PA, sXo, 60, waits=False)
    fill = cv[8:] + f0[12:] + fin_ops('own', 1, 10) + fin_ops('own', 2, 10) + so
    weave(a, proj_mfmas('B0', PB), fill)
    if OPT.get('epi'): stamp(a, 5)
    f0 = fin_ops('B0', 0, 2, pk=True); f1 = fin_ops('B0', 1, 2, pk=True)
    for x in f0[:16]: a(x)
    a('s_waitcnt lgkmcnt(0)')
    for x in st2[:3] + f0[16:] + f1[:16] + st2[3:] + f1[16:]: a(x)
    if OPT.get('epi'): stamp(a, 6)
    a('s_nop 3')
    for x in fin_ops('B0', 2, 2, pk=True) + store_ops(PB, sXb, 60) + store_ops2(PB, sXb, 60): a(x)
    stamp(a, 15)
    stamp_store(a)
    a('s_endpgm')
    slow_path(a, 'h'); slow_path(a, 'o')
    gen_spare_vo(a)
    redo(a, 'own', 2, 'h'); redo(a, 'own', 2, 'oo'); redo(a, 'B0', 2, 'ob')

DOC = """;
"""

def build(path):
    a = Asm()
    a.raw(f'.globl {NAME}')
    a.raw('.p2align 8')
    a.raw(f'.type {NAME},@function')
    a.label(NAME)
    a(f's_cmp_ge_u32 s2, {NSP+NCONS}')
    a('s_cbranch_scc1 L_end')
    stamp(a, 0, True); stamp(a, 1)
    a(f'''
    s_load_dwordx8 s[4:11], s[0:1], 0
    s_load_dwordx2 s[12:13], s[0:1], 32
    s_load_dwordx4 s[44:47], s[0:1], 40
    v_lshrrev_b32 v2, 6, v0
    v_and_b32 v1, 63, v0
    v_readfirstlane_b32 s{sW}, v2
    s_mov_b32 s18, {X_BYTES}
    s_mov_b32 s19, 0x20000
    s_mov_b32 s26, {WS_BYTES}
    s_mov_b32 s27, 0x20000
    s_mov_b32 s50, 256
    s_mov_b32 s51, 0x20000
    s_waitcnt lgkmcnt(0)
    s_mov_b32 s16, s4
    s_mov_b32 s17, s5
    s_mov_b32 s24, s46
    s_mov_b32 s25, s47
    s_mov_b32 s48, s44
    s_mov_b32 s49, s45
    s_cmp_lt_u32 s2, {NSP}
    s_cbranch_scc1 L_spare
    ''')
    gen_consumer(a)
    a.label('L_end')
    a('s_endpgm')
    out = HEADER
    out += f'; @launch grid=({NSP+NCONS},1,1) block=(256,1,1) lds={LDS_TOTAL}\n'
    out += DOC
    out += '.amdgcn_target "amdgcn-amd-amdhsa--gfx950"\n.text\n'
    out += a.text()
    out += '.section .rodata,"a"\n.p2align 6\n'
    out += kd(NAME, 512, 256)
    open(path, 'w').write(out)

if __name__ == '__main__':
    for o in sys.argv[2:]:
        if '=' in o:
            k, v = o.split('=')
            OPT[k] = int(v) if v.isdigit() else v.replace('+', ' ')
        else:
            OPT[o] = True
    build(sys.argv[1] if len(sys.argv) > 1 else 'k22.s')
```
